```python
import torch

def _softmax(x, axis=-1):
    return torch.softmax(x, dim=axis)

def _gelu(x):
    return torch.nn.functional.gelu(x, approximate='tanh')

def _silu(x):
    return torch.nn.functional.silu(x)

def _sigmoid(x):
    return torch.sigmoid(x)

def _layernorm(x, axis=-1, eps=1e-05):
    m = x.mean(dim=axis, keepdim=True)
    v = x.var(dim=axis, keepdim=True, unbiased=False)
    return (x - m) / torch.sqrt(v + eps)

def _scatter_add(tgt, idx, src, axis=0):
    return tgt.clone().index_add_(axis, idx, src)

def _segment_sum(src, seg, n):
    out = torch.zeros((n,) + src.shape[1:], dtype=src.dtype)
    return out.index_add_(0, seg, src)

def _pad(x, pw):
    flat = tuple((v for pair in reversed(pw) for v in pair))
    return torch.nn.functional.pad(x, flat)
kernel_name = 'adaLN_cond__ssm_conv_h3__mixer_channel_mlp__prompt'

def setup_inputs():

    _w = lambda a: (lambda t: t.to(torch.bfloat16) if t.is_floating_point() else t)(torch.as_tensor(a))

    def _A_setup():
        B, S, D = (1, 2048, 1024)
        ks = 4
        return {'q': _w((lambda *s: torch.randn(*s, dtype=torch.bfloat16) * 0.05)(B, S, D)), 'k': _w((lambda *s: torch.randn(*s, dtype=torch.bfloat16) * 0.4)(B, S, D)), 'v': _w((lambda *s: torch.randn(*s, dtype=torch.bfloat16) * 0.4)(B, S, D)), 'shift_k': _w((lambda *s: torch.randn(*s, dtype=torch.bfloat16) * 0.4)(D, ks) * 0.5), 'ssm_k': _w((lambda *s: torch.randn(*s, dtype=torch.bfloat16) * 0.4)(D, S) * (1.0 / S ** 0.5)), 'ssm_D': _w((lambda *s: torch.randn(*s, dtype=torch.bfloat16) * 0.4)(D))}
    _A_in = _A_setup()

    def _B_setup():
        B, S, D, F = (1, 2048, 1024, 3584)
        return {'x': _w((lambda *s: torch.randn(*s, dtype=torch.bfloat16) * 0.05)(B, S, D)), 'w1': _w((lambda *s: torch.randn(*s, dtype=torch.bfloat16) * 3.2)(D, F) * D ** (-0.5)), 'b1': _w((lambda *s: torch.randn(*s, dtype=torch.bfloat16) * 1.6)(F)), 'w2': _w((lambda *s: torch.randn(*s, dtype=torch.bfloat16) * 0.2)(F, D) * F ** (-0.5)), 'b2': _w((lambda *s: torch.randn(*s, dtype=torch.bfloat16) * 0.4)(D))}
    _B_in = _B_setup()
    return {'A_q': _A_in['q'], 'A_k': _A_in['k'], 'A_v': _A_in['v'], 'A_shift_k': _A_in['shift_k'], 'A_ssm_k': _A_in['ssm_k'], 'A_ssm_D': _A_in['ssm_D'], 'B_x': _B_in['x'], 'B_w1': _B_in['w1'], 'B_b1': _B_in['b1'], 'B_w2': _B_in['w2'], 'B_b2': _B_in['b2'], 'c': _w((lambda *s: torch.randn(*s, dtype=torch.bfloat16) * 0.2)(1, 1024) * 8.0), 'w_mod': _w((lambda *s: torch.randn(*s, dtype=torch.bfloat16) * 0.2)(1024, 6 * 1024) * 1024 ** (-0.5) * 8.0)}

def reference(A_q, A_k, A_v, A_shift_k, A_ssm_k, A_ssm_D, B_x, B_w1, B_b1, B_w2, B_b2, c, w_mod):

    def _A_ref(q, k, v, shift_k, ssm_k, ssm_D):
        B, S, D = q.shape
        ks = shift_k.shape[-1]
        k_pad = _pad(k, ((0, 0), (ks - 1, 0), (0, 0)))
        k_shift = torch.zeros_like(k)
        for t in range(ks):
            k_shift = k_shift + k_pad[:, t:t + S, :] * shift_k[:, ks - 1 - t][None, None, :]
        kv = k_shift * v
        L = 2 * S
        kv_pad = _pad(kv, ((0, 0), (0, S), (0, 0)))
        kf_pad = _pad(ssm_k, ((0, 0), (0, S)))
        kv_f = (lambda x, axes=(-2, -1): torch.fft.rfft2(x.float(), dim=axes))(kv_pad[:, None, :, :], axes=(1, 2))
        kf_f = (lambda x, axes=(-2, -1): torch.fft.rfft2(x.float(), dim=axes))(kf_pad[:, None, :], axes=(1, 2))
        kf_f = (lambda x, *d: x.permute(*d))(kf_f, 1, 2, 0)
        y_f = kv_f * kf_f[None, :, :, :]
        y = (lambda x, s, axes=(-2, -1): torch.fft.irfft2(x, s=s, dim=axes).to(torch.bfloat16))(y_f, (1, L), axes=(1, 2))[:, 0, :S, :]
        y = y + kv * ssm_D[None, None, :]
        return q * y

    def _B_ref(x, w1, b1, w2, b2):
        y = _layernorm(x, axis=-1)
        h = _gelu(torch.einsum('bsd,df->bsf', y, w1) + b1)
        return torch.einsum('bsf,fd->bsd', h, w2) + b2
    x = A_q
    mod = (_silu(c) @ w_mod).reshape(c.shape[0], 6, 1, -1)
    sa, ca, ga, sb, cb, gb = (mod[:, 0].clone(), mod[:, 1].clone(), mod[:, 2].clone(), mod[:, 3].clone(), mod[:, 4].clone(), mod[:, 5].clone())
    h = _layernorm(x, axis=-1) * (1 + ca) + sa
    x = x + ga * _A_ref(h, A_k, A_v, A_shift_k, A_ssm_k, A_ssm_D)
    h = _layernorm(x, axis=-1) * (1 + cb) + sb
    x = x + gb * _B_ref(h, B_w1, B_b1, B_w2, B_b2)
    return x
```

```python
class Asm:
    def __init__(self):
        self.L = []
    def __call__(self, s):
        for line in s.split("\n"):
            line = line.strip()
            if line:
                self.L.append(line if line.endswith(":") else "    " + line)
    def c(self, s):
        self.L.append("    ; " + s)
    def text(self):
        return "\n".join(self.L)

def vr(b, n=1):
    return f"v{b}" if n == 1 else f"v[{b}:{b+n-1}]"
def ar(b, n=1):
    return f"a{b}" if n == 1 else f"a[{b}:{b+n-1}]"
def sr(b, n=1):
    return f"s{b}" if n == 1 else f"s[{b}:{b+n-1}]"

def srd(a, d, base, nbytes, off=0):
    if off:
        a(f"s_add_u32 s{d}, s{base}, {off}")
        a(f"s_addc_u32 s{d+1}, s{base+1}, 0")
    else:
        a(f"s_mov_b32 s{d}, s{base}")
        a(f"s_mov_b32 s{d+1}, s{base+1}")
    a(f"s_mov_b32 s{d+2}, {nbytes}")
    a(f"s_mov_b32 s{d+3}, 0x20000")

def kernel_text(name, body):
    return f""".globl {name}
.p2align 8
.type {name},@function
{name}:
{body}
"""

def kernel_desc(name, vgpr, sgpr, accum=None):
    if accum is None:
        accum = min(256, (vgpr + 3) // 4 * 4)
    return f""".amdhsa_kernel {name}
  .amdhsa_next_free_vgpr {vgpr}
  .amdhsa_next_free_sgpr {sgpr}
  .amdhsa_accum_offset {accum}
  .amdhsa_group_segment_fixed_size 0
  .amdhsa_kernarg_size 128
  .amdhsa_user_sgpr_count 2
  .amdhsa_user_sgpr_kernarg_segment_ptr 1
  .amdhsa_system_sgpr_workgroup_id_x 1
  .amdhsa_float_denorm_mode_32 3
.end_amdhsa_kernel
"""
```

```python
from asmlib import *
from gen import *

def interleave(a, M, R, start=0, per=1):
    k = 0
    for i, m in enumerate(M):
        a(m)
        if i >= start:
            for _ in range(per):
                if k < len(R):
                    a(R[k]); k += 1
    assert k == len(R), (k, len(R))

def gen_kc():
    a = Asm()
    SLOT, NS, NST = 45056, 3, 16
    BF, BH = 16384, 16384 + 24576
    head(a, 256, "KC_end")
    a(f"""
    s_load_dwordx4 s[4:7], s[0:1], {KW1}
    s_load_dwordx2 s[10:11], s[0:1], {KWS}
    v_lshrrev_b32 v1, 6, v0
    v_and_b32 v2, 63, v0
    v_readfirstlane_b32 s3, v1
    s_and_b32 s44, s2, 7
    s_lshr_b32 s45, s2, 3
    s_lshr_b32 s46, s44, 1
    s_lshl_b32 s46, s46, 2
    s_lshr_b32 s47, s45, 3
    s_add_u32 s46, s46, s47          ; mt
    s_and_b32 s47, s44, 1
    s_lshl_b32 s47, s47, 3
    s_and_b32 s48, s45, 7
    s_add_u32 s47, s47, s48          ; nc
    s_and_b32 s48, s47, 1            ; parity
    s_mul_i32 s49, s47, 448
    s_lshl_b32 s50, s48, 6
    s_add_u32 s50, s50, s49
    s_cmp_eq_u32 s48, 0
    s_cselect_b32 s51, 384, 0
    s_add_u32 s51, s51, s49
    s_waitcnt lgkmcnt(0)
    """)
    srd(a, 16, 10, MB4, WS_Y2); srd(a, 20, 4, 1024*3584*2); srd(a, 24, 6, 3584*2); srd(a, 28, 10, 2048*3584*2, WS_H)
    a("""
    s_cmp_ge_u32 s3, 4
    s_cbranch_scc0 KC_compute
    """)
    a(f"""
    s_sub_u32 s3, s3, 4
    v_lshrrev_b32 v3, 3, v2
    v_and_b32 v4, 7, v2              ; position
    v_lshrrev_b32 v5, 4, v2
    v_xor_b32 v5, v5, v4
    s_lshl_b32 s52, s46, 7
    s_lshl_b32 s53, s3, 5
    s_add_u32 s52, s52, s53
    v_add_u32 v6, s52, v3
    v_lshlrev_b32 v6, 11, v6
    v_lshl_add_u32 v10, v5, 4, v6    ; vA0
    v_xor_b32 v5, 4, v5
    v_lshl_add_u32 v11, v5, 4, v6
    v_add_u32 v11, 16384, v11
    v_bfe_u32 v5, v2, 4, 1
    v_lshlrev_b32 v5, 1, v5
    v_xor_b32 v5, v5, v4
    s_lshl_b32 s53, s3, 4
    v_add_u32 v6, s53, v3
    v_mul_u32_u24 v6, 7168, v6
    v_add_u32 v6, s50, v6
    v_lshl_add_u32 v12, v5, 4, v6    ; vB0
    v_xor_b32 v5, 4, v5
    v_lshl_add_u32 v13, v5, 4, v6
    v_add_u32 v13, {8*7168}, v13     ; vB1
    v_lshrrev_b32 v6, 2, v2
    v_add_u32 v6, s53, v6
    v_mul_u32_u24 v6, 7168, v6
    v_add_u32 v6, s51, v6
    v_lshrrev_b32 v5, 5, v2
    v_lshlrev_b32 v5, 1, v5
    v_and_b32 v7, 3, v2
    v_xor_b32 v5, v5, v7
    v_lshl_add_u32 v14, v5, 4, v6    ; vBH
    s_lshl_b32 s54, s3, 12
    s_lshl_b32 s55, s3, 11
    s_add_u32 s55, s55, {BF}
    s_lshl_b32 s56, s3, 10
    s_add_u32 s56, s56, {BH}
    s_mov_b32 s57, 0
    s_mov_b32 s58, 0                 ; A soffset
    s_mov_b32 s59, 0                 ; B soffset
    """)
    def issue():
        wp = cfg.w_pol
        a("s_add_u32 s60, s54, s57")
        a("s_add_u32 s62, s58, 32768")
        for i in range(4):
            a(f"s_add_u32 m0, s60, {1024*i}")
            so = "s58" if i < 2 else "s62"
            a("s_nop 0")
            a(f"buffer_load_dwordx4 v{10+(i&1)}, s[16:19], {so} offen lds")
        a("s_add_u32 s60, s55, s57")
        a("s_add_u32 s62, s59, 128")
        a("s_add_u32 s63, s59, 256")
        for lc in range(3):
            for i2 in range(2):
                a(f"s_add_u32 m0, s60, {8192*lc+1024*i2}")
                a("s_nop 0")
                a(f"buffer_load_dwordx4 v{12+i2}, s[20:23], {['s59','s62','s63'][lc]} offen {wp} lds")
        a("s_add_u32 m0, s56, s57")
        a("s_add_u32 s58, s58, 128")
        a(f"buffer_load_dwordx4 v14, s[20:23], s59 offen {wp} lds")
        a(f"s_add_u32 s59, s59, {64*7168}")
        a(f"s_add_u32 s57, s57, {SLOT}")
        a(f"s_cmp_eq_u32 s57, {NS*SLOT}")
        a("s_cselect_b32 s57, 0, s57")
    a("s_mov_b32 s61, 0")
    a("KC_lpro:")
    issue()
    a(f"""
    s_add_u32 s61, s61, 1
    s_cmp_lt_u32 s61, {NS}
    s_cbranch_scc1 KC_lpro
    s_waitcnt vmcnt({11*(NS-1)})
    s_barrier
    s_mov_b32 s61, 0
    KC_lloop:
    s_waitcnt vmcnt({11*(NS-2)})
    s_barrier
    """)
    issue()
    a(f"""
    s_add_u32 s61, s61, 1
    s_cmp_lt_u32 s61, {NST-NS}
    s_cbranch_scc1 KC_lloop
    """)
    for r in range(NS):
        left = max(NS-2-r, 0)
        a(f"s_waitcnt vmcnt({11*left})")
        a("s_barrier")
    a("s_endpgm")
    ACC = 0 + 32
    acc = lambda u, mi: ACC + (u*4+mi)*4
    FW = lambda s, u: 144 + 44*s + 4*u
    FX = lambda s, mi: 144 + 44*s + 28 + 4*mi
    AW = lambda u: 16 + u
    AX = lambda kk: 24 + kk
    a("KC_compute:")
    a(f"""
    s_lshr_b32 s52, s3, 1            ; wm
    s_and_b32 s53, s3, 1             ; wn
    v_lshrrev_b32 v3, 4, v2          ; g
    v_and_b32 v4, 15, v2             ; i
    s_mul_i32 s54, s53, 192
    s_add_u32 s54, s54, s50
    v_lshl_add_u32 v5, v3, 3, s54
    s_lshl_b32 s54, s53, 5
    s_add_u32 s54, s54, s51
    v_lshl_add_u32 v6, v3, 3, s54
    """)
    for u in range(6): a(f"buffer_load_dwordx2 {vr(144+2*u,2)}, v5, s[24:27], 0 offen offset:{32*u}")
    a(f"buffer_load_dwordx2 {vr(156,2)}, v6, s[24:27], 0 offen")
    a(f"""
    s_lshl_b32 s54, s52, 13
    v_lshl_add_u32 v7, v4, 7, s54
    v_lshrrev_b32 v8, 1, v4
    v_xor_b32 v8, v8, v3
    v_lshl_add_u32 v{AX(0)}, v8, 4, v7
    v_xor_b32 v8, 4, v8
    v_lshl_add_u32 v{AX(1)}, v8, 4, v7
    v_lshrrev_b32 v7, 2, v4
    v_lshl_add_u32 v7, v3, 3, v7     ; row
    v_and_b32 v8, 3, v4
    v_lshlrev_b32 v8, 3, v8          ; (i&3)*8
    v_lshl_add_u32 v9, v7, 7, v8     ; row*128 + ..
    v_add_u32 v9, {BF}, v9
    v_and_b32 v10, 1, v3
    v_lshrrev_b32 v11, 3, v4
    v_lshl_add_u32 v11, v10, 1, v11  ; phi
    s_mul_i32 s54, s53, 6
    """)
    for u in range(6):
        a(f"""
        s_add_u32 s55, s54, {u}
        s_and_b32 s56, s55, 3
        s_lshr_b32 s55, s55, 2
        s_lshl_b32 s55, s55, 13
        v_xor_b32 v12, s56, v11
        v_lshl_add_u32 v12, v12, 5, v9
        v_add_u32 v{AW(u)}, s55, v12
        """)
    a(f"""
    v_lshl_add_u32 v9, v7, 6, v8
    v_xor_b32 v12, s53, v10
    v_lshl_add_u32 v12, v12, 5, v9
    v_add_u32 v{AW(6)}, {BH}, v12
    s_waitcnt vmcnt(0)
    """)
    for u in range(7):
        a(f"v_lshlrev_b32 v{acc(u,0)}, 16, v{144+2*u}")
        a(f"v_and_b32 v{acc(u,0)+1}, 0xffff0000, v{144+2*u}")
        a(f"v_lshlrev_b32 v{acc(u,0)+2}, 16, v{145+2*u}")
        a(f"v_and_b32 v{acc(u,0)+3}, 0xffff0000, v{145+2*u}")
        for mi in range(1, 4):
            a(f"v_mov_b64 {vr(acc(u,mi),2)}, {vr(acc(u,0),2)}")
            a(f"v_mov_b64 {vr(acc(u,mi)+2,2)}, {vr(acc(u,0)+2,2)}")
    def reads(kk):
        R = []
        xs = [f"ds_read_b128 {vr(FX(kk,mi),4)}, v{AX(kk)} offset:{2048*mi}" for mi in range(4)]
        ws = []
        for u in range(7):
            rb = 128 if u < 6 else 64
            for rd in range(2):
                ws.append(f"ds_read_b64_tr_b16 {vr(FW(kk,u)+2*rd,2)}, v{AW(u)} offset:{(32*kk+4*rd)*rb}")
        return ws[:2] + xs + ws[2:]
    def mfmas(kk):
        return [f"v_mfma_f32_16x16x32_bf16 {vr(acc(u,mi),4)}, {vr(FW(kk,u),4)}, {vr(FX(kk,mi),4)}, {vr(acc(u,mi),4)}"
                for u in range(7) for mi in range(4)]
    a("s_barrier")
    for r in reads(0): a(r)
    a(f"""
    s_mov_b32 s57, 0
    s_mov_b32 s61, 0
    s_waitcnt lgkmcnt(0)
    KC_cloop:
    s_add_u32 s57, s57, 1
    s_cmp_eq_u32 s57, {NS}
    s_cselect_b32 s58, {(-(NS-1)*SLOT) & 0xffffffff}, s59
    s_cselect_b32 s57, 0, s57
    """.replace("s_mov_b32 s57, 0\n", f"s_mov_b32 s57, 0\n    s_mov_b32 s59, {SLOT}\n", 1))
    upd = [f"v_add_u32 v{r}, s58, v{r}" for r in [AW(u) for u in range(7)] + [AX(0), AX(1)]]
    M = mfmas(0)
    interleave(a, M[:27], reads(1) + upd)
    a("s_waitcnt lgkmcnt(0)")
    a("s_barrier")
    a(M[27])
    M = mfmas(1)
    interleave(a, M[:27], reads(0))
    a(f"""
    s_add_u32 s61, s61, 1
    s_cmp_lt_u32 s61, {NST}
    s_waitcnt lgkmcnt(0)
    """)
    a(M[27])
    a("s_cbranch_scc1 KC_cloop")
    c0 = -2*0.7978845608028654*LOG2E
    c1 = c0*0.044715
    a(f"""
    v_mov_b32 v4, {f32(c1)}
    v_mov_b32 v5, {f32(c0)}
    s_lshl_b32 s54, s46, 3
    s_lshl_b32 s55, s52, 2
    s_add_u32 s54, s54, s55
    s_mul_i32 s54, s54, {112*1024}
    s_mul_i32 s55, s47, 7
    s_add_u32 s56, s55, s48
    s_mul_i32 s57, s53, 3
    s_add_u32 s56, s56, s57
    s_lshl_b32 s56, s56, 10
    s_add_u32 s56, s56, s54
    v_lshl_add_u32 v6, v2, 4, s56
    s_cmp_eq_u32 s48, 0
    s_cselect_b32 s57, 6, 0
    s_add_u32 s55, s55, s57
    s_lshl_b32 s55, s55, 10
    s_add_u32 s55, s55, s54
    s_lshl_b32 s57, s53, 3
    s_add_u32 s55, s55, s57
    v_lshl_add_u32 v7, v2, 4, s55
    s_mov_b32 s54, 0
    """)
    def gelu(x, n, t, out):
        for j in range(0, n, 2): a(f"v_pk_mul_f32 {vr(t+j,2)}, {vr(x[j],2)}, {vr(x[j],2)}")
        for j in range(0, n, 2): a(f"v_pk_fma_f32 {vr(t+j,2)}, {vr(t+j,2)}, v[4:5], v[4:5] op_sel:[0,0,1] op_sel_hi:[1,0,1]")
        for j in range(0, n, 2): a(f"v_pk_mul_f32 {vr(t+j,2)}, {vr(t+j,2)}, {vr(x[j],2)}")
        for j in range(n): a(f"v_exp_f32 v{t+j}, v{t+j}")
        a("s_nop 0")
        for j in range(0, n, 2): a(f"v_pk_add_f32 {vr(t+j,2)}, {vr(t+j,2)}, 1.0 op_sel_hi:[1,0]")
        for j in range(n): a(f"v_rcp_f32 v{t+j}, v{t+j}")
        a("s_nop 0")
        for j in range(0, n, 2): a(f"v_pk_mul_f32 {vr(t+j,2)}, {vr(t+j,2)}, {vr(x[j],2)}")
        for j in range(0, n, 2): a(f"v_cvt_pk_bf16_f32 v{out+j//2}, v{t+j}, v{t+j+1}")
    k = 0
    for mi in range(4):
        for b in range(3):
            x = [acc(2*b, mi)+r for r in range(4)] + [acc(2*b+1, mi)+r for r in range(4)]
            out = 160 + 4*(k % 8); k += 1
            gelu(x, 8, 144, out)
            a(f"buffer_store_dwordx4 {vr(out,4)}, v6, s[28:31], s54 offen offset:{1024*b} {cfg.st_pol}")
        x = [acc(6, mi)+r for r in range(4)]
        out = 160 + 4*(k % 8); k += 1
        gelu(x, 4, 144, out)
        a(f"buffer_store_dwordx2 {vr(out,2)}, v7, s[28:31], s54 offen {cfg.st_pol}")
        if mi < 3: a(f"s_add_u32 s54, s54, {112*1024}")
    a("KC_end:")
    a("s_endpgm")
    return dict(name="kc_kernel", body=a.text(), vgpr=232, sgpr=72, grid=256, block=512, lds=NS*SLOT)

def gen_kd():
    a = Asm()
    SLOT, NS, NST = 32768, 4, 28
    BB = 16384
    head(a, 256, "KD_end")
    a(f"""
    s_load_dwordx2 s[4:5], s[0:1], {KW2}
    s_load_dwordx2 s[10:11], s[0:1], {KWS}
    v_lshrrev_b32 v1, 6, v0
    v_and_b32 v2, 63, v0
    v_readfirstlane_b32 s3, v1
    s_and_b32 s44, s2, 7
    s_lshr_b32 s45, s2, 3
    s_lshr_b32 s46, s44, 1
    s_lshl_b32 s46, s46, 2
    s_lshr_b32 s47, s45, 3
    s_add_u32 s46, s46, s47          ; mt
    s_and_b32 s48, s44, 1            ; fh
    s_and_b32 s47, s45, 7            ; nt
    s_waitcnt lgkmcnt(0)
    """)
    srd(a, 16, 10, 2048*3584*2, WS_H); srd(a, 20, 4, 3584*1024*2); srd(a, 28, 10, 256*65536, WS_EX)
    a("""
    s_cmp_ge_u32 s3, 4
    s_cbranch_scc0 KD_compute
    """)
    a(f"""
    s_sub_u32 s3, s3, 4
    s_lshl_b32 s52, s46, 3
    s_lshl_b32 s53, s3, 1
    s_add_u32 s52, s52, s53
    s_mul_i32 s52, s52, 112
    s_mul_i32 s53, s48, 56
    s_add_u32 s52, s52, s53
    s_lshl_b32 s52, s52, 10
    v_lshl_add_u32 v10, v2, 4, s52
    v_add_u32 v11, {112*1024}, v10
    v_lshrrev_b32 v3, 3, v2
    v_and_b32 v4, 7, v2
    v_lshrrev_b32 v5, 4, v2
    v_lshlrev_b32 v5, 1, v5
    v_xor_b32 v5, v5, v4
    s_mul_i32 s52, s48, 1792
    s_lshl_b32 s53, s3, 4
    s_add_u32 s52, s52, s53
    v_add_u32 v6, s52, v3
    v_lshlrev_b32 v6, 11, v6
    s_lshl_b32 s53, s47, 8
    v_add_u32 v6, s53, v6
    v_lshl_add_u32 v12, v5, 4, v6
    v_add_u32 v13, 16384, v12
    s_lshl_b32 s54, s3, 12
    s_lshl_b32 s55, s3, 11
    s_add_u32 s55, s55, {BB}
    s_mov_b32 s57, 0
    s_mov_b32 s58, 0
    s_mov_b32 s59, 0
    """)
    def issue():
        wp = cfg.w_pol
        a("s_add_u32 m0, s54, s57")
        a("s_add_u32 s60, s55, s57")
        a("buffer_load_dwordx4 v10, s[16:19], s58 offen lds")
        a("buffer_load_dwordx4 v10, s[16:19], s58 offen offset:1024 lds")
        a("s_add_u32 m0, m0, 2048")
        a("s_add_u32 s62, s59, 128")
        a("buffer_load_dwordx4 v11, s[16:19], s58 offen lds")
        a("buffer_load_dwordx4 v11, s[16:19], s58 offen offset:1024 lds")
        for lc in range(2):
            for i2 in range(2):
                a(f"s_add_u32 m0, s60, {8192*lc+1024*i2}")
                a("s_nop 0")
                a(f"buffer_load_dwordx4 v{12+i2}, s[20:23], {['s59','s62'][lc]} offen {wp} lds")
        a("s_add_u32 s58, s58, 2048")
        a(f"s_add_u32 s59, s59, {64*2048}")
        a(f"s_add_u32 s57, s57, {SLOT}")
        a(f"s_cmp_eq_u32 s57, {NS*SLOT}")
        a("s_cselect_b32 s57, 0, s57")
    a("s_mov_b32 s61, 0")
    a("KD_lpro:")
    issue()
    a(f"""
    s_add_u32 s61, s61, 1
    s_cmp_lt_u32 s61, {NS}
    s_cbranch_scc1 KD_lpro
    s_waitcnt vmcnt({8*(NS-1)})
    s_barrier
    s_mov_b32 s61, 0
    KD_lloop:
    s_waitcnt vmcnt({8*(NS-2)})
    s_barrier
    """)
    issue()
    a(f"""
    s_add_u32 s61, s61, 1
    s_cmp_lt_u32 s61, {NST-NS}
    s_cbranch_scc1 KD_lloop
    """)
    for r in range(NS):
        left = max(NS-2-r, 0)
        a(f"s_waitcnt vmcnt({8*left})")
        a("s_barrier")
    a("s_endpgm")
    ACC = 32
    acc = lambda u, mi: ACC + (mi*4+u)*4
    FW = lambda s, u: 96 + 32*s + 4*u
    FX = lambda s, mi: 96 + 32*s + 16 + 4*mi
    AW = lambda u: 16 + u
    AX = 20
    a("KD_compute:")
    a(f"""
    s_lshr_b32 s52, s3, 1            ; wm
    s_and_b32 s53, s3, 1             ; wn
    v_lshrrev_b32 v3, 4, v2          ; g
    v_and_b32 v4, 15, v2             ; i
    s_lshl_b32 s54, s52, 13
    v_lshl_add_u32 v{AX}, v2, 4, s54
    v_lshrrev_b32 v7, 2, v4
    v_lshl_add_u32 v7, v3, 2, v7
    v_and_b32 v8, 3, v4
    v_lshlrev_b32 v8, 3, v8
    v_lshl_add_u32 v9, v7, 7, v8
    s_lshl_b32 s54, s53, 13
    s_add_u32 s54, s54, {BB}
    v_add_u32 v9, s54, v9
    v_bfe_u32 v11, v7, 1, 2
    """)
    for u in range(4):
        a(f"v_xor_b32 v12, {u}, v11")
        a(f"v_lshl_add_u32 v{AW(u)}, v12, 5, v9")
    for r in range(0, 64, 2): a(f"v_mov_b64 {vr(ACC+r,2)}, 0")
    def reads(kk):
        xs = [f"ds_read_b128 {vr(FX(kk,mi),4)}, v{AX} offset:{2048*mi+1024*kk}" for mi in range(4)]
        ws = []
        for u in range(4):
            for rd in range(2):
                ws.append(f"ds_read_b64_tr_b16 {vr(FW(kk,u)+2*rd,2)}, v{AW(u)} offset:{(32*kk+16*rd)*128}")
        return ws[:2] + xs + ws[2:]
    def mfmas(kk):
        return [f"v_mfma_f32_16x16x32_bf16 {vr(acc(u,mi),4)}, {vr(FW(kk,u),4)}, {vr(FX(kk,mi),4)}, {vr(acc(u,mi),4)}"
                for u in range(4) for mi in range(4)]
    a("s_barrier")
    for r in reads(0): a(r)
    a(f"""
    s_mov_b32 s57, 0
    s_mov_b32 s59, {SLOT}
    s_mov_b32 s61, 0
    s_waitcnt lgkmcnt(0)
    KD_cloop:
    s_add_u32 s57, s57, 1
    s_cmp_eq_u32 s57, {NS}
    s_cselect_b32 s58, {(-(NS-1)*SLOT) & 0xffffffff}, s59
    s_cselect_b32 s57, 0, s57
    """)
    upd = [f"v_add_u32 v{r}, s58, v{r}" for r in [AW(u) for u in range(4)] + [AX]]
    M = mfmas(0)
    R = reads(1) + upd
    interleave(a, M[:6], R[:12], per=2)
    interleave(a, M[6:15], R[12:])
    a("s_waitcnt lgkmcnt(0)")
    a("s_barrier")
    a(M[15])
    M = mfmas(1)
    R = reads(0)
    interleave(a, M[:6], R, per=2)
    interleave(a, M[6:15], [])
    a(f"""
    s_add_u32 s61, s61, 1
    s_cmp_lt_u32 s61, {NST}
    s_waitcnt lgkmcnt(0)
    """)
    a(M[15])
    a("s_cbranch_scc1 KD_cloop")
    a(f"""
    s_lshl_b32 s54, s46, 3
    s_add_u32 s54, s54, s47
    s_lshl_b32 s54, s54, 1
    s_add_u32 s54, s54, s48
    s_lshl_b32 s54, s54, 2
    s_add_u32 s54, s54, s3
    s_lshl_b32 s54, s54, 14
    v_lshl_add_u32 v6, v2, 4, s54
    s_mov_b32 s54, 0
    s_nop 4
    """)
    for mi in range(4):
        for u in range(4):
            a(f"buffer_store_dwordx4 {vr(acc(u,mi),4)}, v6, s[28:31], s54 offen offset:{1024*u} {cfg.st_pol}")
        if mi < 3: a("s_add_u32 s54, s54, 4096")
    a("KD_end:")
    a("s_endpgm")
    return dict(name="kd_kernel", body=a.text(), vgpr=160, sgpr=72, grid=256, block=512, lds=NS*SLOT)

def final_epilogue(a, accs, x1srd, outsrd, voff, G, B, tmp, sofs):
    pass

def gen_ke():
    a = Asm()
    head(a, 256, "KE_end")
    a(f"""
    s_load_dwordx2 s[4:5], s[0:1], {KB2}
    s_load_dwordx2 s[6:7], s[0:1], {KOUT}
    s_load_dwordx2 s[10:11], s[0:1], {KWS}
    v_lshrrev_b32 v1, 6, v0
    v_and_b32 v2, 63, v0
    v_readfirstlane_b32 s3, v1
    s_lshr_b32 s44, s2, 1            ; tile
    s_and_b32 s48, s2, 1             ; hh
    s_lshr_b32 s46, s44, 3           ; mt
    s_and_b32 s47, s44, 7            ; nt
    s_lshr_b32 s52, s3, 1            ; wm
    s_and_b32 s53, s3, 1             ; wn
    s_waitcnt lgkmcnt(0)
    """)
    srd(a, 16, 10, 256*65536, WS_EX); srd(a, 20, 4, 2048); srd(a, 24, 10, 2*6144*4, WS_MODP)
    srd(a, 28, 10, MB4, WS_X1); srd(a, 32, 6, MB4)
    a(f"""
    s_lshl_b32 s54, s44, 3
    s_add_u32 s54, s54, s3
    s_lshl_b32 s54, s54, 14
    s_lshl_b32 s55, s48, 13
    s_add_u32 s54, s54, s55
    v_lshl_add_u32 v6, v2, 4, s54
    s_mov_b32 s55, 4096
    s_mov_b32 s56, 65536
    s_mov_b32 s57, {65536+4096}
    """)
    for k in range(2):
        for u in range(4):
            a(f"buffer_load_dwordx4 {vr(32+16*k+4*u,4)}, v6, s[16:19], {['0','s55'][k]} offen offset:{1024*u}")
            a(f"buffer_load_dwordx4 {vr(64+16*k+4*u,4)}, v6, s[16:19], {['s56','s57'][k]} offen offset:{1024*u}")
    a(f"""
    v_lshrrev_b32 v3, 4, v2
    v_and_b32 v4, 15, v2
    v_and_b32 v7, 1, v3
    v_lshrrev_b32 v8, 1, v3
    v_lshlrev_b32 v7, 4, v7
    v_lshl_add_u32 v7, v8, 3, v7
    s_lshl_b32 s54, s47, 7
    s_lshl_b32 s55, s53, 6
    s_add_u32 s54, s54, s55
    v_add_u32 v7, s54, v7            ; d (p=0)
    v_lshlrev_b32 v8, 1, v7
    v_lshlrev_b32 v9, 2, v7
    s_lshl_b32 s54, s46, 7
    s_lshl_b32 s55, s52, 6
    s_add_u32 s54, s54, s55
    s_lshl_b32 s55, s48, 5
    s_add_u32 s54, s54, s55
    v_add_u32 v10, s54, v4           ; row (k=0)
    v_lshl_add_u32 v10, v10, 11, v8
    s_mov_b32 s54, {5*4096}
    s_mov_b32 s55, {5*4096+24576}
    s_mov_b32 s58, 32768
    """)
    for p in range(2):
        a(f"buffer_load_dwordx4 {vr(96+4*p,4)}, v8, s[20:23], 0 offen offset:{64*p}")
        for h in range(2):
            a(f"buffer_load_dwordx4 {vr(104+8*p+4*h,4)}, v9, s[24:27], s54 offen offset:{128*p+16*h}")
            a(f"buffer_load_dwordx4 {vr(120+8*p+4*h,4)}, v9, s[24:27], s55 offen offset:{128*p+16*h}")
    for k in range(2):
        for p in range(2):
            a(f"buffer_load_dwordx4 {vr(136+8*k+4*p,4)}, v10, s[28:31], {['0','s58'][k]} offen offset:{64*p}")
    a("s_waitcnt vmcnt(0)")
    for r in range(32): a(f"v_add_f32 v{32+r}, v{32+r}, v{64+r}")
    for r in range(16): a(f"v_add_f32 v{104+r}, v{104+r}, v{120+r}")
    for j in range(8):
        a(f"v_lshlrev_b32 v{64+2*j}, 16, v{96+j}")
        a(f"v_and_b32 v{65+2*j}, 0xffff0000, v{96+j}")
    for k in range(2):
        for p in range(2):
            t0 = 32+16*k+8*p; t1 = t0+4
            for r in range(4): a(f"v_permlane16_swap_b32 v{t0+r}, v{t1+r}")
    a("s_nop 1")
    for k in range(2):
        for p in range(2):
            t0 = 32+16*k+8*p
            x = 136+8*k+4*p
            for j in range(4):
                a(f"v_lshlrev_b32 v{80+2*j}, 16, v{x+j}")
                a(f"v_and_b32 v{81+2*j}, 0xffff0000, v{x+j}")
            for e in range(8): a(f"v_add_f32 v{t0+e}, v{t0+e}, v{64+8*p+e}")
            for e in range(8): a(f"v_fma_f32 v{t0+e}, v{t0+e}, v{104+8*p+e}, v{80+e}")
            for j in range(4): a(f"v_cvt_pk_bf16_f32 v{x+j}, v{t0+2*j}, v{t0+2*j+1}")
            a(f"buffer_store_dwordx4 {vr(x,4)}, v10, s[32:35], {['0','s58'][k]} offen offset:{64*p}")
    a("KE_end:")
    a("s_endpgm")
    return dict(name="ke_kernel", body=a.text(), vgpr=160, sgpr=72, grid=256, block=256, lds=0)
```

```python
import sys, math
from asmlib import *

NAME = "adaLN_cond__ssm_conv_h3__mixer_channel_mlp__prompt"
S, D, F = 2048, 1024, 3584
KQ, KK, KV, KSH, KSSM, KSD, KBX, KW1, KB1, KW2, KB2, KC_, KWM, KOUT, KDBG, KWS = [8*i for i in range(16)]
WS_U    = 0x0000000
WS_MODP = 0x0400000
WS_Y    = 0x0800000
WS_X1   = 0x0C00000
WS_Y2   = 0x1000000
WS_H    = 0x1400000
WS_EX   = 0x2400000
MB4 = 0x400000
LOG2E = 1.4426950408889634

import struct
def f32(x):
    return "0x%08x" % struct.unpack("<I", struct.pack("<f", x))[0]

class Cfg:
    nt_in = "nt"
    w_pol = ""
    st_pol = ""
cfg = Cfg()

def head(a, nwg, endlbl):
    a(f"s_cmp_ge_u32 s2, {nwg}")
    a(f"s_cbranch_scc1 {endlbl}")

def gen_k0():
    a = Asm()
    head(a, 256, "K0_end")
    a(f"""
    s_load_dwordx4 s[4:7], s[0:1], {KK}
    s_load_dwordx2 s[8:9], s[0:1], {KSH}
    s_load_dwordx4 s[12:15], s[0:1], {KC_}
    s_load_dwordx2 s[10:11], s[0:1], {KWS}
    v_lshrrev_b32 v1, 6, v0
    v_and_b32 v2, 63, v0
    v_readfirstlane_b32 s3, v1
    s_and_b32 s44, s2, 7
    s_lshr_b32 s45, s2, 3
    s_lshr_b32 s46, s45, 4
    s_lshl_b32 s44, s44, 1
    s_add_u32 s44, s44, s46          ; cg
    s_and_b32 s45, s45, 15           ; rb
    s_lshl_b32 s46, s45, 7
    s_lshl_b32 s47, s3, 4
    s_add_u32 s46, s46, s47
    s_lshl_b32 s47, s46, 11
    s_lshl_b32 s48, s44, 7
    s_add_u32 s47, s47, s48
    v_lshrrev_b32 v7, 3, v2          ; l>>3
    v_and_b32 v15, 7, v2             ; l&7
    v_lshlrev_b32 v3, 11, v7
    v_lshl_add_u32 v3, v15, 4, v3
    v_add_u32 v3, s47, v3            ; vk
    v_add_u32 v4, 0xffffc000, v3
    s_mul_i32 s49, s3, 5120
    s_mov_b32 s50, 16384
    s_waitcnt lgkmcnt(0)
    """)
    srd(a, 16, 4, MB4); srd(a, 20, 6, MB4); srd(a, 24, 8, 8192)
    srd(a, 28, 10, MB4, WS_U); srd(a, 32, 12, 2048); srd(a, 36, 14, 1024*6144*2); srd(a, 40, 10, 2*6144*4, WS_MODP)
    nt = cfg.nt_in
    a(f"""
    s_add_u32 m0, s49, 1024
    s_nop 0
    buffer_load_dwordx4 v3, s[16:19], 0 offen {nt} lds
    s_add_u32 m0, s49, 2048
    s_nop 0
    buffer_load_dwordx4 v3, s[16:19], s50 offen {nt} lds
    s_add_u32 m0, s49, 3072
    s_nop 0
    buffer_load_dwordx4 v3, s[20:23], 0 offen {nt} lds
    s_add_u32 m0, s49, 4096
    s_nop 0
    buffer_load_dwordx4 v3, s[20:23], s50 offen {nt} lds
    s_mov_b32 m0, s49
    s_mov_b32 exec_lo, 0
    buffer_load_dwordx4 v4, s[16:19], 0 offen {nt} lds
    s_mov_b32 exec_lo, -1
    s_lshl_b32 s51, s44, 9
    v_lshl_add_u32 v5, v2, 3, s51
    buffer_load_dwordx2 v[8:9], v5, s[24:27], 0 offen
    s_cmp_ge_u32 s2, 192
    s_cbranch_scc1 K0_nogemv_ld
    s_lshr_b32 s52, s2, 1
    s_and_b32 s53, s2, 1             ; k half
    s_lshl_b32 s54, s53, 9
    s_lshl_b32 s55, s3, 6
    s_add_u32 s54, s54, s55
    v_lshl_add_u32 v60, v7, 3, s54
    v_lshlrev_b32 v61, 1, v60
    s_mov_b32 s55, 12288
    v_mul_lo_u32 v108, v60, s55
    s_lshl_b32 s55, s52, 7
    v_lshl_add_u32 v109, v15, 4, s55
    v_add_u32 v108, v108, v109
    buffer_load_dwordx4 v[60:63], v61, s[32:35], 0 offen
    s_mov_b32 s55, 0
    """)
    for i in range(8):
        a(f"buffer_load_dwordx4 {vr(64+4*i,4)}, v108, s[36:39], s55 offen {nt}")
        if i < 7: a("s_add_u32 s55, s55, 12288")
    a("""
    s_waitcnt vmcnt(9)
    s_branch K0_phaseA
    K0_nogemv_ld:
    s_waitcnt vmcnt(0)
    K0_phaseA:
    v_lshrrev_b32 v5, 4, v2          ; g
    v_and_b32 v6, 15, v2             ; i
    v_lshrrev_b32 v10, 2, v6
    v_and_b32 v11, 3, v6
    v_lshlrev_b32 v10, 7, v10
    v_lshl_add_u32 v10, v5, 5, v10
    v_lshl_add_u32 v10, v11, 3, v10
    v_add_u32 v5, s49, v10
    """)
    for p in range(5):
        a(f"ds_read_b64_tr_b16 {vr(16+2*p,2)}, v5 offset:{512+512*p}")
    for p in range(4):
        a(f"ds_read_b64_tr_b16 {vr(26+2*p,2)}, v5 offset:{3072+512*p}")
    a("""
    v_alignbit_b32 v10, v8, v8, 16   ; A=(w1,w0)
    v_alignbit_b32 v11, v9, v9, 16   ; B=(w3,w2)
    v_and_b32 v12, 0xffff, v8        ; C=(w0,0)
    s_mov_b32 s56, 0xffff
    v_bfi_b32 v13, s56, v9, v8       ; D=(w2,w1)
    v_and_b32 v14, 0xffff0000, v9    ; E=(0,w3)
    v_lshrrev_b32 v6, 2, v2
    v_lshlrev_b32 v6, 14, v6
    v_and_b32 v50, 3, v2
    v_lshl_add_u32 v6, v50, 4, v6
    s_lshl_b32 s56, s44, 18
    s_lshl_b32 s57, s46, 3           ; (row0/8)*64
    s_add_u32 s56, s56, s57
    v_add_u32 v6, s56, v6
    s_waitcnt lgkmcnt(0)
    """)
    P = lambda q: 16 + q + 2
    ks = lambda t: 34 + t
    for q in range(8):
        a(f"v_dot2_f32_bf16 v{ks(2*q)}, v{P(q)}, v12, 0")
        a(f"v_dot2_f32_bf16 v{ks(2*q+1)}, v{P(q)}, v10, 0")
    for q in range(8):
        a(f"v_dot2_f32_bf16 v{ks(2*q)}, v{P(q-1)}, v13, v{ks(2*q)}")
        a(f"v_dot2_f32_bf16 v{ks(2*q+1)}, v{P(q-1)}, v11, v{ks(2*q+1)}")
    for q in range(8):
        a(f"v_dot2_f32_bf16 v{ks(2*q)}, v{P(q-2)}, v14, v{ks(2*q)}")
    for q in range(8):
        a(f"v_lshlrev_b32 v{110+2*q}, 16, v{26+q}")
        a(f"v_and_b32 v{111+2*q}, 0xffff0000, v{26+q}")
    for t in range(16):
        a(f"v_mul_f32 v{ks(t)}, v{ks(t)}, v{110+t}")
    for h in range(2):
        for j in range(4):
            a(f"v_cvt_pk_bf16_f32 v{52+4*h+j}, v{ks(8*h+7-2*j)}, v{ks(8*h+6-2*j)}")
    a(f"buffer_store_dwordx4 v[52:55], v6, s[28:31], 0 offen {cfg.st_pol}")
    a(f"buffer_store_dwordx4 v[56:59], v6, s[28:31], 0 offen offset:64 {cfg.st_pol}")
    a("""
    s_cmp_ge_u32 s2, 192
    s_cbranch_scc1 K0_end
    s_waitcnt vmcnt(10)
    """)
    for q in range(4):
        a(f"v_lshlrev_b32 v{110+2*q}, 16, v{60+q}")
        a(f"v_and_b32 v{111+2*q}, 0xffff0000, v{60+q}")
    for i in range(8): a(f"v_mul_f32 v{118+i}, {f32(-LOG2E)}, v{110+i}")
    for i in range(8): a(f"v_exp_f32 v{118+i}, v{118+i}")
    a("s_nop 0")
    for i in range(8): a(f"v_add_f32 v{118+i}, 1.0, v{118+i}")
    for i in range(8): a(f"v_rcp_f32 v{118+i}, v{118+i}")
    a("s_nop 0")
    for i in range(8): a(f"v_mul_f32 v{110+i}, v{110+i}, v{118+i}")
    for q in range(4): a(f"v_cvt_pk_bf16_f32 v{96+q}, v{110+2*q}, v{111+2*q}")
    a("s_mov_b32 s56, 0x05040100")
    a("s_mov_b32 s57, 0x07060302")
    for q in range(4):
        a(f"s_waitcnt vmcnt({2 + 6 - 2*q})")
        for j in range(4):
            w0 = 64 + 8*q + j; w1 = w0 + 4
            a(f"v_perm_b32 v{110+2*j}, v{w1}, v{w0}, s56")
            a(f"v_perm_b32 v{111+2*j}, v{w1}, v{w0}, s57")
        for j in range(8):
            src2 = "0" if q == 0 else f"v{100+j}"
            a(f"v_dot2_f32_bf16 v{100+j}, v{110+j}, v{96+q}, {src2}")
    a("s_nop 3")
    for j in range(4): a(f"v_permlane32_swap_b32 v{100+j}, v{104+j}")
    a("s_nop 1")
    for j in range(4): a(f"v_add_f32 v{100+j}, v{100+j}, v{104+j}")
    a("s_nop 1")
    for j in range(2): a(f"v_permlane16_swap_b32 v{100+j}, v{102+j}")
    a("s_nop 1")
    for j in range(2): a(f"v_add_f32 v{100+j}, v{100+j}, v{102+j}")
    a("s_nop 1")
    for j in range(2): a(f"v_add_f32_dpp v{100+j}, v{100+j}, v{100+j} row_ror:8 row_mask:0xf bank_mask:0xf")
    a("""
    v_lshrrev_b32 v110, 4, v2
    v_lshlrev_b32 v110, 3, v110
    v_lshl_add_u32 v110, v15, 5, v110
    s_lshl_b32 s56, s3, 8
    s_add_u32 s56, s56, 40960
    v_add_u32 v110, s56, v110
    ds_write_b64 v110, v[100:101]
    s_waitcnt lgkmcnt(0)
    s_barrier
    s_cmp_lg_u32 s3, 0
    s_cbranch_scc1 K0_end
    v_lshlrev_b32 v110, 2, v2
    """)
    for w in range(8): a(f"ds_read_b32 v{100+w}, v110 offset:{40960+256*w}")
    a("""
    s_mul_i32 s56, s53, 24576
    s_lshl_b32 s57, s52, 8
    s_add_u32 s56, s56, s57
    s_waitcnt lgkmcnt(0)
    v_add_f32 v100, v100, v101
    v_add_f32 v102, v102, v103
    v_add_f32 v104, v104, v105
    v_add_f32 v106, v106, v107
    v_add_f32 v100, v100, v102
    v_add_f32 v104, v104, v106
    v_add_f32 v100, v100, v104
    buffer_store_dword v100, v110, s[40:43], s56 offen
    K0_end:
    s_endpgm
    """)
    return dict(name="k0_kernel", body=a.text(), vgpr=128, sgpr=64, grid=256, block=512, lds=43008)

CP_STR, CH_STR = 4160, 16640
UR_BASE, UR_STR = 4*16640, 4640
def gen_k1():
    a = Asm()
    head(a, 256, "K1_end")
    a(f"""
    s_load_dwordx4 s[4:7], s[0:1], {KSSM}
    s_load_dwordx2 s[10:11], s[0:1], {KWS}
    v_lshrrev_b32 v1, 6, v0
    v_and_b32 v2, 63, v0
    v_readfirstlane_b32 s3, v1
    s_and_b32 s44, s2, 7
    s_lshr_b32 s45, s2, 3
    s_lshl_b32 s44, s44, 5
    s_add_u32 s44, s44, s45          ; cq
    s_lshl_b32 s45, s44, 2
    s_add_u32 s45, s45, s3           ; channel d
    s_lshl_b32 s46, s45, 12
    v_lshl_add_u32 v3, v2, 4, s46
    s_lshl_b32 s47, s44, 14          ; cq*16384
    s_lshl_b32 s48, s3, 12
    s_add_u32 s48, s48, s47
    v_lshl_add_u32 v4, v2, 4, s48    ; U offset
    s_mul_i32 s49, s3, {CH_STR}      ; chbase
    s_waitcnt lgkmcnt(0)
    """)
    srd(a, 16, 4, MB4); srd(a, 20, 6, 2048); srd(a, 24, 10, MB4, WS_U); srd(a, 28, 10, MB4, WS_Y)
    nt = cfg.nt_in
    for j in range(4):
        a(f"buffer_load_dwordx4 {vr(176+4*j,4)}, v4, s[24:27], 0 offen offset:{1024*j}")
    for j in range(4):
        for sft in range(3):
            a(f"buffer_load_dwordx4 {vr(32+12*j+4*sft,4)}, v3, s[16:19], 0 offen offset:{1024*j+4*sft} {nt}")
    a(f"""
    s_lshl_b32 s50, s45, 1
    v_mov_b32 v5, s50
    buffer_load_ushort v6, v5, s[20:23], 0 offen
    v_and_b32 v7, 3, v2
    v_mul_u32_u24 v7, {UR_STR}, v7
    v_lshrrev_b32 v8, 2, v2
    v_lshlrev_b32 v8, 4, v8
    v_sub_u32 v7, v7, v8
    s_lshl_b32 s50, s3, 10
    s_sub_u32 s50, {UR_BASE + 255*16 - 3*256}, s50
    v_add_u32 v7, s50, v7
    v_mov_b32 v12, 0
    v_mov_b32 v13, 0
    v_mov_b32 v14, 0
    v_mov_b32 v15, 0
    s_mul_i32 s51, s3, {UR_STR}
    s_add_u32 s51, s51, {UR_BASE}    ; URc
    v_lshl_add_u32 v8, v2, 4, s51
    s_mov_b64 exec, 0x3fffffff
    ds_write_b128 v8, v[12:15] offset:4096
    s_mov_b64 exec, -1
    v_lshl_add_u32 v9, v2, 4, s49
    v_and_b32 v10, 15, v2            ; i' / a'
    v_lshrrev_b32 v11, 4, v2         ; g
    v_add_u32 v16, 1, v10            ; o+16
    v_and_b32 v17, 3, v16            ; c'
    v_sub_u32 v16, v16, v17          ; o-c'+16
    v_lshlrev_b32 v16, 1, v16        ; 2(o-c')+32
    v_mul_u32_u24 v17, {CP_STR}, v17
    v_add_u32 v16, v16, v17
    v_lshl_add_u32 v16, v11, 4, v16
    v_add_u32 v16, s49, v16          ; vA
    v_lshlrev_b32 v17, 5, v10
    v_sub_u32 v17, 480, v17
    v_lshl_add_u32 v17, v11, 4, v17
    v_add_u32 v17, s51, v17          ; vB
    ; e = 15 - i' - 8g
    v_lshlrev_b32 v18, 3, v11
    v_add_u32 v18, v18, v10
    v_sub_u32 v18, 15, v18
    s_waitcnt vmcnt(13)
    """)
    for j in range(4):
        a(f"ds_write_b128 v7, {vr(176+4*j,4)} offset:{256*(3-j)}")
    for j in range(4):
        A, B, C = 32+12*j, 36+12*j, 40+12*j
        a(f"s_waitcnt vmcnt({1+3*(3-j)})")
        o1, o3 = 80+8*j, 84+8*j
        for i in range(4): a(f"v_alignbit_b32 v{o1+i}, v{B+i}, v{A+i}, 16")
        for i in range(4): a(f"v_alignbit_b32 v{o3+i}, v{C+i}, v{B+i}, 16")
        a(f"ds_write_b128 v9, {vr(A,4)} offset:{32+1024*j}")
        a(f"ds_write_b128 v9, {vr(B,4)} offset:{2*CP_STR+32+1024*j}")
        a(f"ds_write_b128 v9, {vr(o1,4)} offset:{CP_STR+32+1024*j}")
        a(f"ds_write_b128 v9, {vr(o3,4)} offset:{3*CP_STR+32+1024*j}")
    a(f"""
    v_readfirstlane_b32 s52, v32
    v_readfirstlane_b32 s53, v33
    s_nop 1
    s_lshl_b32 s54, s52, 16
    s_lshr_b32 s55, s52, 16
    s_lshl_b32 s56, s53, 16
    s_or_b32 s55, s55, s56
    v_writelane_b32 v15, s54, 3
    v_writelane_b32 v15, s52, 5
    v_writelane_b32 v14, s54, 7
    v_writelane_b32 v15, s55, 7
    v_lshrrev_b32 v19, 1, v2
    v_mul_u32_u24 v19, {CP_STR}, v19
    v_and_b32 v20, 1, v2
    v_lshl_add_u32 v19, v20, 4, v19
    v_add_u32 v19, s49, v19
    s_mov_b64 exec, 0xff
    ds_write_b128 v19, v[12:15]
    s_mov_b64 exec, -1
    s_waitcnt vmcnt(0)
    v_lshlrev_b32 v21, 16, v6
    """)
    for j in range(4):
        a(f"v_cmp_eq_u32 vcc, {2*j}, v18")
        a("s_nop 1")
        a(f"v_cndmask_b32 v{24+j}, 0, v6, vcc")
        a(f"v_cmp_eq_u32 vcc, {2*j+1}, v18")
        a("s_nop 1")
        a(f"v_cndmask_b32 v{24+j}, v{24+j}, v21, vcc")
    a("s_waitcnt lgkmcnt(0)")
    a("s_barrier")
    ACC = 192
    FA = lambda s, w: 32 + 64*s + 4*w
    FB = lambda s, v: 64 + 64*s + 4*v
    def reads(z0):
        s = z0 & 1
        R = []
        for i in range(8):
            R.append(f"ds_read_b128 {vr(FB(s,i),4)}, v17 offset:{512*(7-i)+64*z0}")
            R.append(f"ds_read_b64 {vr(FA(s,i),2)}, v16 offset:{512*i+64*z0}")
            R.append(f"ds_read_b64 {vr(FA(s,i)+2,2)}, v16 offset:{512*i+64*z0+8}")
        return R
    for r in reads(0): a(r)
    a("s_waitcnt lgkmcnt(0)")
    for n in range(8):
        a(f"v_mfma_f32_16x16x32_bf16 {vr(ACC+4*n,4)}, v[24:27], {vr(FB(0,n),4)}, 0")
    for z0 in range(8):
        s = z0 & 1
        R = reads(z0+1) if z0 < 7 else []
        M = [(w, v) for w in range(8) for v in range(8-w)]
        for i, (w, v) in enumerate(M):
            a(f"v_mfma_f32_16x16x32_bf16 {vr(ACC+4*(w+v),4)}, {vr(FA(s,w),4)}, {vr(FB(s,v),4)}, {vr(ACC+4*(w+v),4)}")
            if i < len(R): a(R[i])
        if z0 < 7: a("s_waitcnt lgkmcnt(0)")
    a(f"""
    v_lshlrev_b32 v20, 5, v10
    v_lshl_add_u32 v20, v11, 3, v20
    v_add_u32 v20, s49, v20
    s_lshl_b32 s50, s3, 10
    v_lshl_add_u32 v21, v2, 2, s50
    s_mov_b32 s56, 0x05040100
    s_mov_b32 s57, 0x07060302
    s_nop 4
    """)
    for n in range(8):
        a(f"v_cvt_pk_bf16_f32 v{32+2*n}, v{ACC+4*n}, v{ACC+4*n+1}")
        a(f"v_cvt_pk_bf16_f32 v{33+2*n}, v{ACC+4*n+2}, v{ACC+4*n+3}")
        a(f"ds_write_b64 v20, {vr(32+2*n,2)} offset:{512*n}")
    a("s_waitcnt lgkmcnt(0)")
    a("s_barrier")
    for j in range(4):
        a(f"ds_read2st64_b32 {vr(64+4*j,2)}, v21 offset0:{j} offset1:{65+j}")
        a(f"ds_read2st64_b32 {vr(66+4*j,2)}, v21 offset0:{130+j} offset1:{195+j}")
    for j in range(4):
        a(f"s_waitcnt lgkmcnt({6-2*j})")
        b = 64+4*j; o = 96+4*j
        a(f"v_perm_b32 v{o}, v{b+1}, v{b}, s56")
        a(f"v_perm_b32 v{o+1}, v{b+3}, v{b+2}, s56")
        a(f"v_perm_b32 v{o+2}, v{b+1}, v{b}, s57")
        a(f"v_perm_b32 v{o+3}, v{b+3}, v{b+2}, s57")
        a(f"buffer_store_dwordx4 {vr(o,4)}, v4, s[28:31], 0 offen offset:{1024*j} {cfg.st_pol}")
    a("K1_end:")
    a("s_endpgm")
    return dict(name="k1_kernel", body=a.text(), vgpr=224, sgpr=64, grid=256, block=256, lds=UR_BASE+4*UR_STR)

def wave_stats(a, s1, s2, t, mean_rs, rstd):
    steps = ["quad_perm:[1,0,3,2] row_mask:0xf", "quad_perm:[2,3,0,1] row_mask:0xf", "row_half_mirror row_mask:0xf",
             "row_mirror row_mask:0xf", "row_bcast:15 row_mask:0xa", "row_bcast:31 row_mask:0xc"]
    a("s_nop 1")
    for st in steps:
        a(f"v_add_f32_dpp v{s1}, v{s1}, v{s1} {st} bank_mask:0xf")
        a(f"v_add_f32_dpp v{s2}, v{s2}, v{s2} {st} bank_mask:0xf")
        a("s_nop 0")
    a(f"""
    v_readlane_b32 s60, v{s1}, 63
    v_readlane_b32 s61, v{s2}, 63
    s_nop 1
    v_mul_f32 v{t}, s60, v250             ; mean
    v_mul_f32 v{rstd}, s61, v250          ; E[x^2]
    v_fma_f32 v{rstd}, -v{t}, v{t}, v{rstd}
    v_max_f32 v{rstd}, 0, v{rstd}
    v_add_f32 v{rstd}, {f32(1e-5)}, v{rstd}
    v_rsq_f32 v{rstd}, v{rstd}
    s_nop 0
    v_mul_f32 v{mean_rs}, v{t}, v{rstd}
    v_sub_f32 v{mean_rs}, 0, v{mean_rs}
    """.replace("v250", "v126"))

def gen_kb():
    a = Asm()
    head(a, 256, "KB_end")
    MODL = 16384
    a(f"""
    s_load_dwordx2 s[4:5], s[0:1], {KQ}
    s_load_dwordx2 s[10:11], s[0:1], {KWS}
    v_lshrrev_b32 v1, 6, v0
    v_and_b32 v2, 63, v0
    v_readfirstlane_b32 s3, v1
    s_and_b32 s44, s2, 7
    s_lshr_b32 s45, s2, 3
    s_lshl_b32 s44, s44, 5
    s_add_u32 s44, s44, s45
    s_lshl_b32 s45, s44, 3
    s_add_u32 s45, s45, s3           ; row
    s_lshl_b32 s46, s45, 11
    v_lshl_add_u32 v3, v2, 4, s46
    v_lshrrev_b32 v4, 2, v2
    v_and_b32 v5, 7, v4
    v_lshlrev_b32 v5, 1, v5
    v_lshrrev_b32 v4, 3, v4
    v_add_u32 v5, v5, v4             ; G (0..15)
    v_lshrrev_b32 v6, 3, v5
    v_and_b32 v7, 3, v2
    v_xor_b32 v6, v6, v7
    v_lshlrev_b32 v5, 14, v5
    s_lshl_b32 s47, s3, 19           ; (2w*16)*16384
    s_lshl_b32 s48, s44, 6
    s_add_u32 s47, s47, s48
    v_add_u32 v5, s47, v5
    v_lshl_add_u32 v8, v6, 4, v5
    v_xor_b32 v6, 2, v6
    v_lshl_add_u32 v9, v6, 4, v5
    v_lshlrev_b32 v10, 4, v0
    s_mov_b32 s49, 0x40000
    s_mov_b32 s50, 8192
    s_mov_b32 s51, 16384
    s_mov_b32 s52, 24576
    s_mov_b32 s53, 32768
    s_mov_b32 s54, 40960
    s_waitcnt lgkmcnt(0)
    """)
    srd(a, 16, 4, MB4); srd(a, 20, 10, MB4, WS_Y); srd(a, 24, 10, 2*6144*4, WS_MODP)
    srd(a, 28, 10, MB4, WS_X1); srd(a, 32, 10, MB4, WS_Y2)
    a(f"""
    s_lshl_b32 s55, s3, 11
    s_mov_b32 m0, s55
    buffer_load_dwordx4 v[16:19], v10, s[24:27], 0 offen
    buffer_load_dwordx4 v8, s[20:23], 0 offen lds
    s_add_u32 m0, s55, 1024
    buffer_load_dwordx4 v[20:23], v10, s[24:27], s52 offen
    buffer_load_dwordx4 v9, s[20:23], s49 offen lds
    buffer_load_dwordx4 v[24:27], v10, s[24:27], s50 offen
    buffer_load_dwordx4 v[28:31], v10, s[24:27], s53 offen
    buffer_load_dwordx4 v[32:35], v10, s[24:27], s51 offen
    buffer_load_dwordx4 v[36:39], v10, s[24:27], s54 offen
    buffer_load_dwordx4 v[40:43], v3, s[16:19], 0 offen {cfg.nt_in}
    buffer_load_dwordx4 v[44:47], v3, s[16:19], 0 offen offset:1024 {cfg.nt_in}
    v_lshrrev_b32 v11, 7, v0         ; (vec&1)*2 + h
    v_lshlrev_b32 v11, 11, v11
    v_and_b32 v12, 1, v0
    v_lshl_add_u32 v11, v12, 10, v11
    v_bfe_u32 v12, v0, 1, 6
    v_lshl_add_u32 v11, v12, 4, v11
    v_cmp_le_u32 vcc, 256, v0
    v_mov_b32 v126, {f32(1.0/1024)}
    s_nop 0
    v_cndmask_b32_e64 v13, 0, 1.0, vcc
    v_sub_f32 v14, 1.0, v13
    v_lshrrev_b32 v4, 3, v2
    v_lshlrev_b32 v4, 10, v4
    v_and_b32 v5, 7, v2
    v_lshl_add_u32 v4, v5, 6, v4
    v_bfe_u32 v5, v2, 2, 2
    s_lshr_b32 s56, s3, 1
    v_xor_b32 v5, s56, v5
    v_lshl_add_u32 v4, v5, 4, v4
    s_and_b32 s56, s3, 1
    s_lshl_b32 s56, s56, 3
    v_add_u32 v4, s56, v4
    v_lshlrev_b32 v5, 4, v2
    s_waitcnt vmcnt(2)
    """)
    for i in range(3):
        for e in range(4):
            a(f"v_add_f32 v{16+8*i+e}, v{16+8*i+e}, v{20+8*i+e}")
        if i != 1:
            for e in range(4):
                a(f"v_add_f32 v{16+8*i+e}, v{16+8*i+e}, v{13 if i == 0 else 14}")
        a(f"ds_write_b128 v11, {vr(16+8*i,4)} offset:{MODL+8192*i}")
    a("s_waitcnt vmcnt(0)")
    Q, Y, T = 48, 64, 80
    for j in range(8):
        a(f"v_lshlrev_b32 v{Q+2*j}, 16, v{40+j}")
        a(f"v_and_b32 v{Q+2*j+1}, 0xffff0000, v{40+j}")
    a("s_waitcnt lgkmcnt(0)")
    a("s_barrier")
    for h in range(2):
        for e in range(2):
            a(f"ds_read_b64 {vr(40+4*h+2*e,2)}, v4 offset:{8192*h+512*e}")
    def modread(vec, dst):
        for h in range(2):
            for half in range(2):
                a(f"ds_read_b128 {vr(dst+8*h+4*half,4)}, v5 offset:{MODL+4096*vec+2048*h+1024*half}")
    M0, M1, M2 = 16, 96, 112
    M2 = 128
    modread(1, M0); modread(0, M1); modread(2, M2)
    def stats(X):
        a(f"v_add_f32 v6, v{X}, v{X+1}")
        a(f"v_mul_f32 v7, v{X}, v{X}")
        a(f"v_fmac_f32 v7, v{X+1}, v{X+1}")
        for j in range(2, 16):
            a(f"v_add_f32 v6, v6, v{X+j}")
            a(f"v_fmac_f32 v7, v{X+j}, v{X+j}")
        wave_stats(a, 6, 7, 8, 9, 10)
    stats(Q)
    a("s_waitcnt lgkmcnt(0)")
    for j in range(8):
        a(f"v_lshlrev_b32 v{Y+2*j}, 16, v{40+j}")
        a(f"v_and_b32 v{Y+2*j+1}, 0xffff0000, v{40+j}")
    for j in range(16): a(f"v_fma_f32 v{T+j}, v{Q+j}, v10, v9")
    for j in range(16): a(f"v_fma_f32 v{T+j}, v{T+j}, v{M0+j}, v{M1+j}")
    modread(4, M0); modread(3, M1)
    for j in range(16): a(f"v_mul_f32 v{T+j}, v{T+j}, v{Y+j}")
    for j in range(16): a(f"v_fmac_f32 v{Q+j}, v{T+j}, v{M2+j}")
    for j in range(8): a(f"v_cvt_pk_bf16_f32 v{40+j}, v{Q+2*j}, v{Q+2*j+1}")
    a(f"buffer_store_dwordx4 v[40:43], v3, s[28:31], 0 offen {cfg.st_pol}")
    a(f"buffer_store_dwordx4 v[44:47], v3, s[28:31], 0 offen offset:1024 {cfg.st_pol}")
    stats(Q)
    a("s_waitcnt lgkmcnt(0)")
    for j in range(16): a(f"v_fma_f32 v{T+j}, v{Q+j}, v10, v9")
    for j in range(16): a(f"v_fma_f32 v{T+j}, v{T+j}, v{M0+j}, v{M1+j}")
    stats(T)
    for j in range(16): a(f"v_fma_f32 v{T+j}, v{T+j}, v10, v9")
    for j in range(8): a(f"v_cvt_pk_bf16_f32 v{Y+j}, v{T+2*j}, v{T+2*j+1}")
    a(f"buffer_store_dwordx4 {vr(Y,4)}, v3, s[32:35], 0 offen {cfg.st_pol}")
    a(f"buffer_store_dwordx4 {vr(Y+4,4)}, v3, s[32:35], 0 offen offset:1024 {cfg.st_pol}")
    a("KB_end:")
    a("s_endpgm")
    return dict(name="kb_kernel", body=a.text(), vgpr=144, sgpr=64, grid=256, block=512, lds=MODL+24576)

def emit(kernels):
    ref = open(f"cdna_kernels/{NAME}.s.ref").read().splitlines()
    hdr = [l for l in ref if l.startswith(";") and "@launch" not in l and "Override" not in l and "grid=ceil" not in l]
    out = list(hdr)
    for k in kernels:
        out.append(f"; @launch kernel={k['name']} grid=({k['grid']},1,1) block=({k['block']},1,1) lds={k['lds']}")
    out.append('.amdgcn_target "amdgcn-amd-amdhsa--gfx950"')
    out.append(".text")
    seen = []
    for k in kernels:
        if k['name'] in seen: continue
        seen.append(k['name'])
        out.append(kernel_text(k['name'], k['body']))
    out.append('.section .rodata,"a"')
    seen = []
    for k in kernels:
        if k['name'] in seen: continue
        seen.append(k['name'])
        out.append(".p2align 6")
        out.append(kernel_desc(k['name'], k['vgpr'], k['sgpr'], k.get('accum')))
    return "\n".join(out) + "\n"

if __name__ == "__main__":
    import gemm
    ks = [gen_k0(), gen_k1(), gen_kb(), gemm.gen_kc(), gemm.gen_kd(), gemm.gen_ke()]
    dst = sys.argv[1] if len(sys.argv) > 1 else f"cdna_kernels/{NAME}.s"
    open(dst, "w").write(emit(ks))
    print("wrote", dst)
```

```python
from asmlib import *
from gen import *

def interleave(a, M, R, start=0, per=1):
    k = 0
    for i, m in enumerate(M):
        a(m)
        if i >= start:
            for _ in range(per):
                if k < len(R):
                    a(R[k]); k += 1
    assert k == len(R), (k, len(R))

def gen_kc():
    a = Asm()
    SLOT, NS, NST = 45056, 3, 16
    BF, BH = 16384, 16384 + 24576
    head(a, 256, "KC_end")
    a(f"""
    s_load_dwordx4 s[4:7], s[0:1], {KW1}
    s_load_dwordx2 s[10:11], s[0:1], {KWS}
    v_lshrrev_b32 v1, 6, v0
    v_and_b32 v2, 63, v0
    v_readfirstlane_b32 s3, v1
    s_and_b32 s44, s2, 7
    s_lshr_b32 s45, s2, 3
    s_lshr_b32 s46, s44, 1
    s_lshl_b32 s46, s46, 2
    s_lshr_b32 s47, s45, 3
    s_add_u32 s46, s46, s47          ; mt
    s_and_b32 s47, s44, 1
    s_lshl_b32 s47, s47, 3
    s_and_b32 s48, s45, 7
    s_add_u32 s47, s47, s48          ; nc
    s_and_b32 s48, s47, 1            ; parity
    s_mul_i32 s49, s47, 448
    s_lshl_b32 s50, s48, 6
    s_add_u32 s50, s50, s49
    s_cmp_eq_u32 s48, 0
    s_cselect_b32 s51, 384, 0
    s_add_u32 s51, s51, s49
    s_waitcnt lgkmcnt(0)
    """)
    srd(a, 16, 10, MB4, WS_Y2); srd(a, 20, 4, 1024*3584*2); srd(a, 24, 6, 3584*2); srd(a, 28, 10, 2048*3584*2, WS_H)
    a("""
    s_cmp_ge_u32 s3, 4
    s_cbranch_scc0 KC_compute
    """)
    a(f"""
    s_sub_u32 s3, s3, 4
    v_lshrrev_b32 v3, 3, v2
    v_and_b32 v4, 7, v2              ; position
    v_lshrrev_b32 v5, 4, v2
    v_xor_b32 v5, v5, v4
    s_lshl_b32 s52, s46, 7
    s_lshl_b32 s53, s3, 5
    s_add_u32 s52, s52, s53
    v_add_u32 v6, s52, v3
    v_lshlrev_b32 v6, 11, v6
    v_lshl_add_u32 v10, v5, 4, v6    ; vA0
    v_xor_b32 v5, 4, v5
    v_lshl_add_u32 v11, v5, 4, v6
    v_add_u32 v11, 16384, v11
    v_bfe_u32 v5, v2, 4, 1
    v_lshlrev_b32 v5, 1, v5
    v_xor_b32 v5, v5, v4
    s_lshl_b32 s53, s3, 4
    v_add_u32 v6, s53, v3
    v_mul_u32_u24 v6, 7168, v6
    v_add_u32 v6, s50, v6
    v_lshl_add_u32 v12, v5, 4, v6    ; vB0
    v_xor_b32 v5, 4, v5
    v_lshl_add_u32 v13, v5, 4, v6
    v_add_u32 v13, {8*7168}, v13     ; vB1
    v_lshrrev_b32 v6, 2, v2
    v_add_u32 v6, s53, v6
    v_mul_u32_u24 v6, 7168, v6
    v_add_u32 v6, s51, v6
    v_lshrrev_b32 v5, 5, v2
    v_lshlrev_b32 v5, 1, v5
    v_and_b32 v7, 3, v2
    v_xor_b32 v5, v5, v7
    v_lshl_add_u32 v14, v5, 4, v6    ; vBH
    s_lshl_b32 s54, s3, 12
    s_lshl_b32 s55, s3, 11
    s_add_u32 s55, s55, {BF}
    s_lshl_b32 s56, s3, 10
    s_add_u32 s56, s56, {BH}
    s_mov_b32 s57, 0
    s_mov_b32 s58, 0                 ; A soffset
    s_mov_b32 s59, 0                 ; B soffset
    """)
    def issue():
        wp = cfg.w_pol
        a("s_add_u32 s60, s54, s57")
        a("s_add_u32 s62, s58, 32768")
        for i in range(4):
            a(f"s_add_u32 m0, s60, {1024*i}")
            so = "s58" if i < 2 else "s62"
            a("s_nop 0")
            a(f"buffer_load_dwordx4 v{10+(i&1)}, s[16:19], {so} offen lds")
        a("s_add_u32 s60, s55, s57")
        a("s_add_u32 s62, s59, 128")
        a("s_add_u32 s63, s59, 256")
        for lc in range(3):
            for i2 in range(2):
                a(f"s_add_u32 m0, s60, {8192*lc+1024*i2}")
                a("s_nop 0")
                a(f"buffer_load_dwordx4 v{12+i2}, s[20:23], {['s59','s62','s63'][lc]} offen {wp} lds")
        a("s_add_u32 m0, s56, s57")
        a("s_add_u32 s58, s58, 128")
        a(f"buffer_load_dwordx4 v14, s[20:23], s59 offen {wp} lds")
        a(f"s_add_u32 s59, s59, {64*7168}")
        a(f"s_add_u32 s57, s57, {SLOT}")
        a(f"s_cmp_eq_u32 s57, {NS*SLOT}")
        a("s_cselect_b32 s57, 0, s57")
    a("s_mov_b32 s61, 0")
    a("KC_lpro:")
    issue()
    a(f"""
    s_add_u32 s61, s61, 1
    s_cmp_lt_u32 s61, {NS}
    s_cbranch_scc1 KC_lpro
    s_waitcnt vmcnt({11*(NS-1)})
    s_barrier
    s_mov_b32 s61, 0
    KC_lloop:
    s_waitcnt vmcnt({11*(NS-2)})
    s_barrier
    """)
    issue()
    a(f"""
    s_add_u32 s61, s61, 1
    s_cmp_lt_u32 s61, {NST-NS}
    s_cbranch_scc1 KC_lloop
    """)
    for r in range(NS):
        left = max(NS-2-r, 0)
        a(f"s_waitcnt vmcnt({11*left})")
        a("s_barrier")
    fin(a, 3)
    ACC = 0 + 32
    acc = lambda u, mi: ACC + (u*4+mi)*4
    FW = lambda s, u: 144 + 44*s + 4*u
    FX = lambda s, mi: 144 + 44*s + 28 + 4*mi
    AW = lambda u: 16 + u
    AX = lambda kk: 24 + kk
    a("KC_compute:")
    a(f"""
    s_lshr_b32 s52, s3, 1            ; wm
    s_and_b32 s53, s3, 1             ; wn
    v_lshrrev_b32 v3, 4, v2          ; g
    v_and_b32 v4, 15, v2             ; i
    s_mul_i32 s54, s53, 192
    s_add_u32 s54, s54, s50
    v_lshl_add_u32 v5, v3, 3, s54
    s_lshl_b32 s54, s53, 5
    s_add_u32 s54, s54, s51
    v_lshl_add_u32 v6, v3, 3, s54
    """)
    for u in range(6): a(f"buffer_load_dwordx2 {vr(144+2*u,2)}, v5, s[24:27], 0 offen offset:{32*u}")
    a(f"buffer_load_dwordx2 {vr(156,2)}, v6, s[24:27], 0 offen")
    a(f"""
    s_lshl_b32 s54, s52, 13
    v_lshl_add_u32 v7, v4, 7, s54
    v_lshrrev_b32 v8, 1, v4
    v_xor_b32 v8, v8, v3
    v_lshl_add_u32 v{AX(0)}, v8, 4, v7
    v_xor_b32 v8, 4, v8
    v_lshl_add_u32 v{AX(1)}, v8, 4, v7
    v_lshrrev_b32 v7, 2, v4
    v_lshl_add_u32 v7, v3, 3, v7     ; row
    v_and_b32 v8, 3, v4
    v_lshlrev_b32 v8, 3, v8          ; (i&3)*8
    v_lshl_add_u32 v9, v7, 7, v8     ; row*128 + ..
    v_add_u32 v9, {BF}, v9
    v_and_b32 v10, 1, v3
    v_lshrrev_b32 v11, 3, v4
    v_lshl_add_u32 v11, v10, 1, v11  ; phi
    s_mul_i32 s54, s53, 6
    """)
    for u in range(6):
        a(f"""
        s_add_u32 s55, s54, {u}
        s_and_b32 s56, s55, 3
        s_lshr_b32 s55, s55, 2
        s_lshl_b32 s55, s55, 13
        v_xor_b32 v12, s56, v11
        v_lshl_add_u32 v12, v12, 5, v9
        v_add_u32 v{AW(u)}, s55, v12
        """)
    a(f"""
    v_lshl_add_u32 v9, v7, 6, v8
    v_xor_b32 v12, s53, v10
    v_lshl_add_u32 v12, v12, 5, v9
    v_add_u32 v{AW(6)}, {BH}, v12
    s_waitcnt vmcnt(0)
    """)
    for u in range(7):
        a(f"v_lshlrev_b32 v{acc(u,0)}, 16, v{144+2*u}")
        a(f"v_and_b32 v{acc(u,0)+1}, 0xffff0000, v{144+2*u}")
        a(f"v_lshlrev_b32 v{acc(u,0)+2}, 16, v{145+2*u}")
        a(f"v_and_b32 v{acc(u,0)+3}, 0xffff0000, v{145+2*u}")
        for mi in range(1, 4):
            a(f"v_mov_b64 {vr(acc(u,mi),2)}, {vr(acc(u,0),2)}")
            a(f"v_mov_b64 {vr(acc(u,mi)+2,2)}, {vr(acc(u,0)+2,2)}")
    def reads(kk):
        R = []
        xs = [f"ds_read_b128 {vr(FX(kk,mi),4)}, v{AX(kk)} offset:{2048*mi}" for mi in range(4)]
        ws = []
        for u in range(7):
            rb = 128 if u < 6 else 64
            for rd in range(2):
                ws.append(f"ds_read_b64_tr_b16 {vr(FW(kk,u)+2*rd,2)}, v{AW(u)} offset:{(32*kk+4*rd)*rb}")
        return ws[:2] + xs + ws[2:]
    def mfmas(kk):
        return [f"v_mfma_f32_16x16x32_bf16 {vr(acc(u,mi),4)}, {vr(FW(kk,u),4)}, {vr(FX(kk,mi),4)}, {vr(acc(u,mi),4)}"
                for u in range(7) for mi in range(4)]
    stamp(a, 0)
    a("s_barrier")
    stamp(a, 1)
    for r in reads(0): a(r)
    a(f"""
    s_mov_b32 s57, 0
    s_mov_b32 s61, 0
    s_waitcnt lgkmcnt(0)
    KC_cloop:
    s_add_u32 s57, s57, 1
    s_cmp_eq_u32 s57, {NS}
    s_cselect_b32 s58, {(-(NS-1)*SLOT) & 0xffffffff}, s59
    s_cselect_b32 s57, 0, s57
    """.replace("s_mov_b32 s57, 0\n", f"s_mov_b32 s57, 0\n    s_mov_b32 s59, {SLOT}\n", 1))
    upd = [f"v_add_u32 v{r}, s58, v{r}" for r in [AW(u) for u in range(7)] + [AX(0), AX(1)]]
    M = mfmas(0)
    interleave(a, M[:27], reads(1) + upd)
    a("s_waitcnt lgkmcnt(0)")
    a("s_barrier")
    a(M[27])
    M = mfmas(1)
    interleave(a, M[:27], reads(0))
    a(f"""
    s_add_u32 s61, s61, 1
    s_cmp_lt_u32 s61, {NST}
    s_waitcnt lgkmcnt(0)
    """)
    a(M[27])
    a("s_cbranch_scc1 KC_cloop")
    stamp(a, 2)
    c0 = -2*0.7978845608028654*LOG2E
    c1 = c0*0.044715
    a(f"""
    v_mov_b32 v4, {f32(c1)}
    v_mov_b32 v5, {f32(c0)}
    s_lshl_b32 s54, s46, 3
    s_lshl_b32 s55, s52, 2
    s_add_u32 s54, s54, s55
    s_mul_i32 s54, s54, {112*1024}
    s_mul_i32 s55, s47, 7
    s_add_u32 s56, s55, s48
    s_mul_i32 s57, s53, 3
    s_add_u32 s56, s56, s57
    s_lshl_b32 s56, s56, 10
    s_add_u32 s56, s56, s54
    v_lshl_add_u32 v6, v2, 4, s56
    s_cmp_eq_u32 s48, 0
    s_cselect_b32 s57, 6, 0
    s_add_u32 s55, s55, s57
    s_lshl_b32 s55, s55, 10
    s_add_u32 s55, s55, s54
    s_lshl_b32 s57, s53, 3
    s_add_u32 s55, s55, s57
    v_lshl_add_u32 v7, v2, 4, s55
    s_mov_b32 s54, 0
    """)
    def gelu(x, n, t, out):
        for j in range(0, n, 2): a(f"v_pk_mul_f32 {vr(t+j,2)}, {vr(x[j],2)}, {vr(x[j],2)}")
        for j in range(0, n, 2): a(f"v_pk_fma_f32 {vr(t+j,2)}, {vr(t+j,2)}, v[4:5], v[4:5] op_sel:[0,0,1] op_sel_hi:[1,0,1]")
        for j in range(0, n, 2): a(f"v_pk_mul_f32 {vr(t+j,2)}, {vr(t+j,2)}, {vr(x[j],2)}")
        for j in range(n): a(f"v_exp_f32 v{t+j}, v{t+j}")
        a("s_nop 0")
        for j in range(0, n, 2): a(f"v_pk_add_f32 {vr(t+j,2)}, {vr(t+j,2)}, 1.0 op_sel_hi:[1,0]")
        for j in range(n): a(f"v_rcp_f32 v{t+j}, v{t+j}")
        a("s_nop 0")
        for j in range(0, n, 2): a(f"v_pk_mul_f32 {vr(t+j,2)}, {vr(t+j,2)}, {vr(x[j],2)}")
        for j in range(0, n, 2): a(f"v_cvt_pk_bf16_f32 v{out+j//2}, v{t+j}, v{t+j+1}")
    k = 0
    for mi in range(4):
        for b in range(3):
            x = [acc(2*b, mi)+r for r in range(4)] + [acc(2*b+1, mi)+r for r in range(4)]
            out = 160 + 4*(k % 8); k += 1
            gelu(x, 8, 144, out)
            a(f"buffer_store_dwordx4 {vr(out,4)}, v6, s[28:31], s54 offen offset:{1024*b} {cfg.st_pol}")
        x = [acc(6, mi)+r for r in range(4)]
        out = 160 + 4*(k % 8); k += 1
        gelu(x, 4, 144, out)
        a(f"buffer_store_dwordx2 {vr(out,2)}, v7, s[28:31], s54 offen {cfg.st_pol}")
        if mi < 3: a(f"s_add_u32 s54, s54, {112*1024}")
    stamp(a, 3)
    fin(a, 3, "KC_end")
    return dict(name="kc_kernel", body=a.text(), vgpr=232, sgpr=72, grid=256, block=512, lds=NS*SLOT)

def gen_kd():
    a = Asm()
    SLOT, NS, NST = 32768, 4, 28
    BB = 16384
    head(a, 256, "KD_end")
    a(f"""
    s_load_dwordx2 s[4:5], s[0:1], {KW2}
    s_load_dwordx2 s[10:11], s[0:1], {KWS}
    v_lshrrev_b32 v1, 6, v0
    v_and_b32 v2, 63, v0
    v_readfirstlane_b32 s3, v1
    s_and_b32 s44, s2, 7
    s_lshr_b32 s45, s2, 3
    s_lshr_b32 s46, s44, 1
    s_lshl_b32 s46, s46, 2
    s_lshr_b32 s47, s45, 3
    s_add_u32 s46, s46, s47          ; mt
    s_and_b32 s48, s44, 1            ; fh
    s_and_b32 s47, s45, 7            ; nt
    s_waitcnt lgkmcnt(0)
    """)
    srd(a, 16, 10, 2048*3584*2, WS_H); srd(a, 20, 4, 3584*1024*2); srd(a, 28, 10, 256*65536, WS_EX)
    a("""
    s_cmp_ge_u32 s3, 4
    s_cbranch_scc0 KD_compute
    """)
    a(f"""
    s_sub_u32 s3, s3, 4
    s_lshl_b32 s52, s46, 3
    s_lshl_b32 s53, s3, 1
    s_add_u32 s52, s52, s53
    s_mul_i32 s52, s52, 112
    s_mul_i32 s53, s48, 56
    s_add_u32 s52, s52, s53
    s_lshl_b32 s52, s52, 10
    v_lshl_add_u32 v10, v2, 4, s52
    v_add_u32 v11, {112*1024}, v10
    v_lshrrev_b32 v3, 3, v2
    v_and_b32 v4, 7, v2
    v_lshrrev_b32 v5, 4, v2
    v_lshlrev_b32 v5, 1, v5
    v_xor_b32 v5, v5, v4
    s_mul_i32 s52, s48, 1792
    s_lshl_b32 s53, s3, 4
    s_add_u32 s52, s52, s53
    v_add_u32 v6, s52, v3
    v_lshlrev_b32 v6, 11, v6
    s_lshl_b32 s53, s47, 8
    v_add_u32 v6, s53, v6
    v_lshl_add_u32 v12, v5, 4, v6
    v_add_u32 v13, 16384, v12
    s_lshl_b32 s54, s3, 12
    s_lshl_b32 s55, s3, 11
    s_add_u32 s55, s55, {BB}
    s_mov_b32 s57, 0
    s_mov_b32 s58, 0
    s_mov_b32 s59, 0
    """)
    def issue():
        wp = cfg.w_pol
        a("s_add_u32 m0, s54, s57")
        a("s_add_u32 s60, s55, s57")
        a("buffer_load_dwordx4 v10, s[16:19], s58 offen lds")
        a("buffer_load_dwordx4 v10, s[16:19], s58 offen offset:1024 lds")
        a("s_add_u32 m0, m0, 2048")
        a("s_add_u32 s62, s59, 128")
        a("buffer_load_dwordx4 v11, s[16:19], s58 offen lds")
        a("buffer_load_dwordx4 v11, s[16:19], s58 offen offset:1024 lds")
        for lc in range(2):
            for i2 in range(2):
                a(f"s_add_u32 m0, s60, {8192*lc+1024*i2}")
                a("s_nop 0")
                a(f"buffer_load_dwordx4 v{12+i2}, s[20:23], {['s59','s62'][lc]} offen {wp} lds")
        a("s_add_u32 s58, s58, 2048")
        a(f"s_add_u32 s59, s59, {64*2048}")
        a(f"s_add_u32 s57, s57, {SLOT}")
        a(f"s_cmp_eq_u32 s57, {NS*SLOT}")
        a("s_cselect_b32 s57, 0, s57")
    a("s_mov_b32 s61, 0")
    a("KD_lpro:")
    issue()
    a(f"""
    s_add_u32 s61, s61, 1
    s_cmp_lt_u32 s61, {NS}
    s_cbranch_scc1 KD_lpro
    s_waitcnt vmcnt({8*(NS-1)})
    s_barrier
    s_mov_b32 s61, 0
    KD_lloop:
    s_waitcnt vmcnt({8*(NS-2)})
    s_barrier
    """)
    issue()
    a(f"""
    s_add_u32 s61, s61, 1
    s_cmp_lt_u32 s61, {NST-NS}
    s_cbranch_scc1 KD_lloop
    """)
    for r in range(NS):
        left = max(NS-2-r, 0)
        a(f"s_waitcnt vmcnt({8*left})")
        a("s_barrier")
    fin(a, 4)
    ACC = 32
    acc = lambda u, mi: ACC + (mi*4+u)*4
    FW = lambda s, u: 96 + 32*s + 4*u
    FX = lambda s, mi: 96 + 32*s + 16 + 4*mi
    AW = lambda u: 16 + u
    AX = 20
    a("KD_compute:")
    a(f"""
    s_lshr_b32 s52, s3, 1            ; wm
    s_and_b32 s53, s3, 1             ; wn
    v_lshrrev_b32 v3, 4, v2          ; g
    v_and_b32 v4, 15, v2             ; i
    s_lshl_b32 s54, s52, 13
    v_lshl_add_u32 v{AX}, v2, 4, s54
    v_lshrrev_b32 v7, 2, v4
    v_lshl_add_u32 v7, v3, 2, v7
    v_and_b32 v8, 3, v4
    v_lshlrev_b32 v8, 3, v8
    v_lshl_add_u32 v9, v7, 7, v8
    s_lshl_b32 s54, s53, 13
    s_add_u32 s54, s54, {BB}
    v_add_u32 v9, s54, v9
    v_bfe_u32 v11, v7, 1, 2
    """)
    for u in range(4):
        a(f"v_xor_b32 v12, {u}, v11")
        a(f"v_lshl_add_u32 v{AW(u)}, v12, 5, v9")
    for r in range(0, 64, 2): a(f"v_mov_b64 {vr(ACC+r,2)}, 0")
    def reads(kk):
        xs = [f"ds_read_b128 {vr(FX(kk,mi),4)}, v{AX} offset:{2048*mi+1024*kk}" for mi in range(4)]
        ws = []
        for u in range(4):
            for rd in range(2):
                ws.append(f"ds_read_b64_tr_b16 {vr(FW(kk,u)+2*rd,2)}, v{AW(u)} offset:{(32*kk+16*rd)*128}")
        return ws[:2] + xs + ws[2:]
    def mfmas(kk):
        return [f"v_mfma_f32_16x16x32_bf16 {vr(acc(u,mi),4)}, {vr(FW(kk,u),4)}, {vr(FX(kk,mi),4)}, {vr(acc(u,mi),4)}"
                for u in range(4) for mi in range(4)]
    stamp(a, 0)
    a("s_barrier")
    stamp(a, 1)
    for r in reads(0): a(r)
    a(f"""
    s_mov_b32 s57, 0
    s_mov_b32 s59, {SLOT}
    s_mov_b32 s61, 0
    s_waitcnt lgkmcnt(0)
    KD_cloop:
    s_add_u32 s57, s57, 1
    s_cmp_eq_u32 s57, {NS}
    s_cselect_b32 s58, {(-(NS-1)*SLOT) & 0xffffffff}, s59
    s_cselect_b32 s57, 0, s57
    """)
    upd = [f"v_add_u32 v{r}, s58, v{r}" for r in [AW(u) for u in range(4)] + [AX]]
    M = mfmas(0)
    R = reads(1) + upd
    interleave(a, M[:6], R[:12], per=2)
    interleave(a, M[6:15], R[12:])
    a("s_waitcnt lgkmcnt(0)")
    a("s_barrier")
    a(M[15])
    M = mfmas(1)
    R = reads(0)
    interleave(a, M[:6], R, per=2)
    interleave(a, M[6:15], [])
    a(f"""
    s_add_u32 s61, s61, 1
    s_cmp_lt_u32 s61, {NST}
    s_waitcnt lgkmcnt(0)
    """)
    a(M[15])
    a("s_cbranch_scc1 KD_cloop")
    stamp(a, 2)
    a(f"""
    s_lshl_b32 s54, s46, 3
    s_add_u32 s54, s54, s47
    s_lshl_b32 s54, s54, 1
    s_add_u32 s54, s54, s48
    s_lshl_b32 s54, s54, 2
    s_add_u32 s54, s54, s3
    s_lshl_b32 s54, s54, 14
    v_lshl_add_u32 v6, v2, 4, s54
    s_mov_b32 s54, 0
    s_nop 4
    """)
    for mi in range(4):
        for u in range(4):
            a(f"buffer_store_dwordx4 {vr(acc(u,mi),4)}, v6, s[28:31], s54 offen offset:{1024*u} {cfg.st_pol}")
        if mi < 3: a("s_add_u32 s54, s54, 4096")
    stamp(a, 3)
    fin(a, 4, "KD_end")
    return dict(name="kd_kernel", body=a.text(), vgpr=160, sgpr=72, grid=256, block=512, lds=NS*SLOT)

def final_epilogue(a, accs, x1srd, outsrd, voff, G, B, tmp, sofs):
    pass

def gen_ke():
    a = Asm()
    head(a, 256, "KE_end")
    a(f"""
    s_load_dwordx2 s[4:5], s[0:1], {KB2}
    s_load_dwordx2 s[6:7], s[0:1], {KOUT}
    s_load_dwordx2 s[10:11], s[0:1], {KWS}
    v_lshrrev_b32 v1, 6, v0
    v_and_b32 v2, 63, v0
    v_readfirstlane_b32 s3, v1
    s_lshr_b32 s44, s2, 1            ; tile
    s_and_b32 s48, s2, 1             ; hh
    s_lshr_b32 s46, s44, 3           ; mt
    s_and_b32 s47, s44, 7            ; nt
    s_lshr_b32 s52, s3, 1            ; wm
    s_and_b32 s53, s3, 1             ; wn
    s_waitcnt lgkmcnt(0)
    """)
    srd(a, 16, 10, 256*65536, WS_EX); srd(a, 20, 4, 2048); srd(a, 24, 10, 2*6144*4, WS_MODP)
    srd(a, 28, 10, MB4, WS_X1); srd(a, 32, 6, MB4)
    a(f"""
    s_lshl_b32 s54, s44, 3
    s_add_u32 s54, s54, s3
    s_lshl_b32 s54, s54, 14
    s_lshl_b32 s55, s48, 13
    s_add_u32 s54, s54, s55
    v_lshl_add_u32 v6, v2, 4, s54
    s_mov_b32 s55, 4096
    s_mov_b32 s56, 65536
    s_mov_b32 s57, {65536+4096}
    """)
    for k in range(2):
        for u in range(4):
            a(f"buffer_load_dwordx4 {vr(32+16*k+4*u,4)}, v6, s[16:19], {['0','s55'][k]} offen offset:{1024*u}")
            a(f"buffer_load_dwordx4 {vr(64+16*k+4*u,4)}, v6, s[16:19], {['s56','s57'][k]} offen offset:{1024*u}")
    a(f"""
    v_lshrrev_b32 v3, 4, v2
    v_and_b32 v4, 15, v2
    v_and_b32 v7, 1, v3
    v_lshrrev_b32 v8, 1, v3
    v_lshlrev_b32 v7, 4, v7
    v_lshl_add_u32 v7, v8, 3, v7
    s_lshl_b32 s54, s47, 7
    s_lshl_b32 s55, s53, 6
    s_add_u32 s54, s54, s55
    v_add_u32 v7, s54, v7            ; d (p=0)
    v_lshlrev_b32 v8, 1, v7
    v_lshlrev_b32 v9, 2, v7
    s_lshl_b32 s54, s46, 7
    s_lshl_b32 s55, s52, 6
    s_add_u32 s54, s54, s55
    s_lshl_b32 s55, s48, 5
    s_add_u32 s54, s54, s55
    v_add_u32 v10, s54, v4           ; row (k=0)
    v_lshl_add_u32 v10, v10, 11, v8
    s_mov_b32 s54, {5*4096}
    s_mov_b32 s55, {5*4096+24576}
    s_mov_b32 s58, 32768
    """)
    for p in range(2):
        a(f"buffer_load_dwordx4 {vr(96+4*p,4)}, v8, s[20:23], 0 offen offset:{64*p}")
        for h in range(2):
            a(f"buffer_load_dwordx4 {vr(104+8*p+4*h,4)}, v9, s[24:27], s54 offen offset:{128*p+16*h}")
            a(f"buffer_load_dwordx4 {vr(120+8*p+4*h,4)}, v9, s[24:27], s55 offen offset:{128*p+16*h}")
    for k in range(2):
        for p in range(2):
            a(f"buffer_load_dwordx4 {vr(136+8*k+4*p,4)}, v10, s[28:31], {['0','s58'][k]} offen offset:{64*p}")
    a("s_waitcnt vmcnt(0)")
    for r in range(32): a(f"v_add_f32 v{32+r}, v{32+r}, v{64+r}")
    for r in range(16): a(f"v_add_f32 v{104+r}, v{104+r}, v{120+r}")
    for j in range(8):
        a(f"v_lshlrev_b32 v{64+2*j}, 16, v{96+j}")
        a(f"v_and_b32 v{65+2*j}, 0xffff0000, v{96+j}")
    for k in range(2):
        for p in range(2):
            t0 = 32+16*k+8*p; t1 = t0+4
            for r in range(4): a(f"v_permlane16_swap_b32 v{t0+r}, v{t1+r}")
    a("s_nop 1")
    for k in range(2):
        for p in range(2):
            t0 = 32+16*k+8*p
            x = 136+8*k+4*p
            for j in range(4):
                a(f"v_lshlrev_b32 v{80+2*j}, 16, v{x+j}")
                a(f"v_and_b32 v{81+2*j}, 0xffff0000, v{x+j}")
            for e in range(8): a(f"v_add_f32 v{t0+e}, v{t0+e}, v{64+8*p+e}")
            for e in range(8): a(f"v_fma_f32 v{t0+e}, v{t0+e}, v{104+8*p+e}, v{80+e}")
            for j in range(4): a(f"v_cvt_pk_bf16_f32 v{x+j}, v{t0+2*j}, v{t0+2*j+1}")
            a(f"buffer_store_dwordx4 {vr(x,4)}, v10, s[32:35], {['0','s58'][k]} offen offset:{64*p}")
    fin(a, 5, "KE_end")
    return dict(name="ke_kernel", body=a.text(), vgpr=160, sgpr=72, grid=256, block=256, lds=0)
```

```python
import sys, math
from asmlib import *

NAME = "adaLN_cond__ssm_conv_h3__mixer_channel_mlp__prompt"
S, D, F = 2048, 1024, 3584
KQ, KK, KV, KSH, KSSM, KSD, KBX, KW1, KB1, KW2, KB2, KC_, KWM, KOUT, KDBG, KWS = [8*i for i in range(16)]
WS_U    = 0x0000000
WS_MODP = 0x0400000
WS_Y    = 0x0800000
WS_X1   = 0x0C00000
WS_Y2   = 0x1000000
WS_H    = 0x1400000
WS_EX   = 0x2400000
MB4 = 0x400000
LOG2E = 1.4426950408889634

import struct
def f32(x):
    return "0x%08x" % struct.unpack("<I", struct.pack("<f", x))[0]

WS_ST   = 0x3800000
class Cfg:
    stamps = False
    nt_in = "nt"
    w_pol = ""
    st_pol = ""
cfg = Cfg()

def head(a, nwg, endlbl):
    a(f"s_cmp_ge_u32 s2, {nwg}")
    a(f"s_cbranch_scc1 {endlbl}_x" if cfg.stamps else f"s_cbranch_scc1 {endlbl}")
    if cfg.stamps:
        a("s_memrealtime s[76:77]")
        a("s_memtime s[78:79]")
        a(f"s_load_dwordx2 s[98:99], s[0:1], {KWS}")
        for i in range(80, 92, 2): a(f"s_mov_b64 s[{i}:{i+1}], 0")
        a("v_readfirstlane_b32 s97, v0")

def stamp(a, i):
    if cfg.stamps:
        a(f"s_memtime s[{80+2*i}:{81+2*i}]")

def fin(a, kidx, lbl=None):
    if lbl: a(f"{lbl}:")
    if cfg.stamps:
        a(f"""
        s_waitcnt vmcnt(0)
        s_memrealtime s[92:93]
        s_memtime s[94:95]
        s_waitcnt lgkmcnt(0)
        s_mov_b64 exec, 1
        s_lshr_b32 s97, s97, 6
        s_add_u32 s96, s2, {kidx*256}
        s_lshl_b32 s96, s96, 4
        s_add_u32 s96, s96, s97
        s_lshl_b32 s96, s96, 6
        s_add_u32 s96, s96, {WS_ST}
        v_mov_b32 v0, s96
        v_mov_b32 v4, s76
        v_mov_b32 v5, s92
        v_mov_b32 v6, s78
        v_mov_b32 v7, s94
        global_store_dwordx4 v0, v[4:7], s[98:99]
        s_nop 1
        v_mov_b32 v4, s80
        v_mov_b32 v5, s82
        v_mov_b32 v6, s84
        v_mov_b32 v7, s86
        global_store_dwordx4 v0, v[4:7], s[98:99] offset:16
        s_nop 1
        v_mov_b32 v4, s88
        v_mov_b32 v5, s90
        global_store_dwordx2 v0, v[4:5], s[98:99] offset:32
        """)
        if lbl: a(f"{lbl}_x:")
    a("s_endpgm")

def gen_k0():
    a = Asm()
    head(a, 256, "K0_end")
    a(f"""
    s_load_dwordx4 s[4:7], s[0:1], {KK}
    s_load_dwordx2 s[8:9], s[0:1], {KSH}
    s_load_dwordx4 s[12:15], s[0:1], {KC_}
    s_load_dwordx2 s[10:11], s[0:1], {KWS}
    v_lshrrev_b32 v1, 6, v0
    v_and_b32 v2, 63, v0
    v_readfirstlane_b32 s3, v1
    s_and_b32 s44, s2, 7
    s_lshr_b32 s45, s2, 3
    s_lshr_b32 s46, s45, 4
    s_lshl_b32 s44, s44, 1
    s_add_u32 s44, s44, s46          ; cg
    s_and_b32 s45, s45, 15           ; rb
    s_lshl_b32 s46, s45, 7
    s_lshl_b32 s47, s3, 4
    s_add_u32 s46, s46, s47
    s_lshl_b32 s47, s46, 11
    s_lshl_b32 s48, s44, 7
    s_add_u32 s47, s47, s48
    v_lshrrev_b32 v7, 3, v2          ; l>>3
    v_and_b32 v15, 7, v2             ; l&7
    v_lshlrev_b32 v3, 11, v7
    v_lshl_add_u32 v3, v15, 4, v3
    v_add_u32 v3, s47, v3            ; vk
    v_add_u32 v4, 0xffffc000, v3
    s_mul_i32 s49, s3, 5120
    s_mov_b32 s50, 16384
    s_waitcnt lgkmcnt(0)
    """)
    srd(a, 16, 4, MB4); srd(a, 20, 6, MB4); srd(a, 24, 8, 8192)
    srd(a, 28, 10, MB4, WS_U); srd(a, 32, 12, 2048); srd(a, 36, 14, 1024*6144*2); srd(a, 40, 10, 2*6144*4, WS_MODP)
    nt = cfg.nt_in
    a(f"""
    s_add_u32 m0, s49, 1024
    s_nop 0
    buffer_load_dwordx4 v3, s[16:19], 0 offen {nt} lds
    s_add_u32 m0, s49, 2048
    s_nop 0
    buffer_load_dwordx4 v3, s[16:19], s50 offen {nt} lds
    s_add_u32 m0, s49, 3072
    s_nop 0
    buffer_load_dwordx4 v3, s[20:23], 0 offen {nt} lds
    s_add_u32 m0, s49, 4096
    s_nop 0
    buffer_load_dwordx4 v3, s[20:23], s50 offen {nt} lds
    s_mov_b32 m0, s49
    s_mov_b32 exec_lo, 0
    buffer_load_dwordx4 v4, s[16:19], 0 offen {nt} lds
    s_mov_b32 exec_lo, -1
    s_lshl_b32 s51, s44, 9
    v_lshl_add_u32 v5, v2, 3, s51
    buffer_load_dwordx2 v[8:9], v5, s[24:27], 0 offen
    s_cmp_ge_u32 s2, 192
    s_cbranch_scc1 K0_nogemv_ld
    s_lshr_b32 s52, s2, 1
    s_and_b32 s53, s2, 1             ; k half
    s_lshl_b32 s54, s53, 9
    s_lshl_b32 s55, s3, 6
    s_add_u32 s54, s54, s55
    v_lshl_add_u32 v60, v7, 3, s54
    v_lshlrev_b32 v61, 1, v60
    s_mov_b32 s55, 12288
    v_mul_lo_u32 v108, v60, s55
    s_lshl_b32 s55, s52, 7
    v_lshl_add_u32 v109, v15, 4, s55
    v_add_u32 v108, v108, v109
    buffer_load_dwordx4 v[60:63], v61, s[32:35], 0 offen
    s_mov_b32 s55, 0
    """)
    for i in range(8):
        a(f"buffer_load_dwordx4 {vr(64+4*i,4)}, v108, s[36:39], s55 offen {nt}")
        if i < 7: a("s_add_u32 s55, s55, 12288")
    a("""
    s_waitcnt vmcnt(9)
    s_branch K0_phaseA
    K0_nogemv_ld:
    s_waitcnt vmcnt(0)
    K0_phaseA:
    """)
    stamp(a, 0)
    a("""
    v_lshrrev_b32 v5, 4, v2          ; g
    v_and_b32 v6, 15, v2             ; i
    v_lshrrev_b32 v10, 2, v6
    v_and_b32 v11, 3, v6
    v_lshlrev_b32 v10, 7, v10
    v_lshl_add_u32 v10, v5, 5, v10
    v_lshl_add_u32 v10, v11, 3, v10
    v_add_u32 v5, s49, v10
    """)
    for p in range(5):
        a(f"ds_read_b64_tr_b16 {vr(16+2*p,2)}, v5 offset:{512+512*p}")
    for p in range(4):
        a(f"ds_read_b64_tr_b16 {vr(26+2*p,2)}, v5 offset:{3072+512*p}")
    a("""
    v_alignbit_b32 v10, v8, v8, 16   ; A=(w1,w0)
    v_alignbit_b32 v11, v9, v9, 16   ; B=(w3,w2)
    v_and_b32 v12, 0xffff, v8        ; C=(w0,0)
    s_mov_b32 s56, 0xffff
    v_bfi_b32 v13, s56, v9, v8       ; D=(w2,w1)
    v_and_b32 v14, 0xffff0000, v9    ; E=(0,w3)
    v_lshrrev_b32 v6, 2, v2
    v_lshlrev_b32 v6, 14, v6
    v_and_b32 v50, 3, v2
    v_lshl_add_u32 v6, v50, 4, v6
    s_lshl_b32 s56, s44, 18
    s_lshl_b32 s57, s46, 3           ; (row0/8)*64
    s_add_u32 s56, s56, s57
    v_add_u32 v6, s56, v6
    s_waitcnt lgkmcnt(0)
    """)
    P = lambda q: 16 + q + 2
    ks = lambda t: 34 + t
    for q in range(8):
        a(f"v_dot2_f32_bf16 v{ks(2*q)}, v{P(q)}, v12, 0")
        a(f"v_dot2_f32_bf16 v{ks(2*q+1)}, v{P(q)}, v10, 0")
    for q in range(8):
        a(f"v_dot2_f32_bf16 v{ks(2*q)}, v{P(q-1)}, v13, v{ks(2*q)}")
        a(f"v_dot2_f32_bf16 v{ks(2*q+1)}, v{P(q-1)}, v11, v{ks(2*q+1)}")
    for q in range(8):
        a(f"v_dot2_f32_bf16 v{ks(2*q)}, v{P(q-2)}, v14, v{ks(2*q)}")
    for q in range(8):
        a(f"v_lshlrev_b32 v{110+2*q}, 16, v{26+q}")
        a(f"v_and_b32 v{111+2*q}, 0xffff0000, v{26+q}")
    for t in range(16):
        a(f"v_mul_f32 v{ks(t)}, v{ks(t)}, v{110+t}")
    for h in range(2):
        for j in range(4):
            a(f"v_cvt_pk_bf16_f32 v{52+4*h+j}, v{ks(8*h+7-2*j)}, v{ks(8*h+6-2*j)}")
    a(f"buffer_store_dwordx4 v[52:55], v6, s[28:31], 0 offen {cfg.st_pol}")
    a(f"buffer_store_dwordx4 v[56:59], v6, s[28:31], 0 offen offset:64 {cfg.st_pol}")
    stamp(a, 1)
    a("""
    s_cmp_ge_u32 s2, 192
    s_cbranch_scc1 K0_end
    s_waitcnt vmcnt(10)
    """)
    for q in range(4):
        a(f"v_lshlrev_b32 v{110+2*q}, 16, v{60+q}")
        a(f"v_and_b32 v{111+2*q}, 0xffff0000, v{60+q}")
    for i in range(8): a(f"v_mul_f32 v{118+i}, {f32(-LOG2E)}, v{110+i}")
    for i in range(8): a(f"v_exp_f32 v{118+i}, v{118+i}")
    a("s_nop 0")
    for i in range(8): a(f"v_add_f32 v{118+i}, 1.0, v{118+i}")
    for i in range(8): a(f"v_rcp_f32 v{118+i}, v{118+i}")
    a("s_nop 0")
    for i in range(8): a(f"v_mul_f32 v{110+i}, v{110+i}, v{118+i}")
    for q in range(4): a(f"v_cvt_pk_bf16_f32 v{96+q}, v{110+2*q}, v{111+2*q}")
    a("s_mov_b32 s56, 0x05040100")
    a("s_mov_b32 s57, 0x07060302")
    for q in range(4):
        a(f"s_waitcnt vmcnt({2 + 6 - 2*q})")
        for j in range(4):
            w0 = 64 + 8*q + j; w1 = w0 + 4
            a(f"v_perm_b32 v{110+2*j}, v{w1}, v{w0}, s56")
            a(f"v_perm_b32 v{111+2*j}, v{w1}, v{w0}, s57")
        for j in range(8):
            src2 = "0" if q == 0 else f"v{100+j}"
            a(f"v_dot2_f32_bf16 v{100+j}, v{110+j}, v{96+q}, {src2}")
    stamp(a, 2)
    a("s_nop 3")
    for j in range(4): a(f"v_permlane32_swap_b32 v{100+j}, v{104+j}")
    a("s_nop 1")
    for j in range(4): a(f"v_add_f32 v{100+j}, v{100+j}, v{104+j}")
    a("s_nop 1")
    for j in range(2): a(f"v_permlane16_swap_b32 v{100+j}, v{102+j}")
    a("s_nop 1")
    for j in range(2): a(f"v_add_f32 v{100+j}, v{100+j}, v{102+j}")
    a("s_nop 1")
    for j in range(2): a(f"v_add_f32_dpp v{100+j}, v{100+j}, v{100+j} row_ror:8 row_mask:0xf bank_mask:0xf")
    a("""
    v_lshrrev_b32 v110, 4, v2
    v_lshlrev_b32 v110, 3, v110
    v_lshl_add_u32 v110, v15, 5, v110
    s_lshl_b32 s56, s3, 8
    s_add_u32 s56, s56, 40960
    v_add_u32 v110, s56, v110
    ds_write_b64 v110, v[100:101]
    s_waitcnt lgkmcnt(0)
    s_barrier
    s_cmp_lg_u32 s3, 0
    s_cbranch_scc1 K0_end
    v_lshlrev_b32 v110, 2, v2
    """)
    for w in range(8): a(f"ds_read_b32 v{100+w}, v110 offset:{40960+256*w}")
    a("""
    s_mul_i32 s56, s53, 24576
    s_lshl_b32 s57, s52, 8
    s_add_u32 s56, s56, s57
    s_waitcnt lgkmcnt(0)
    v_add_f32 v100, v100, v101
    v_add_f32 v102, v102, v103
    v_add_f32 v104, v104, v105
    v_add_f32 v106, v106, v107
    v_add_f32 v100, v100, v102
    v_add_f32 v104, v104, v106
    v_add_f32 v100, v100, v104
    buffer_store_dword v100, v110, s[40:43], s56 offen
    """)
    fin(a, 0, "K0_end")
    return dict(name="k0_kernel", body=a.text(), vgpr=128, sgpr=64, grid=256, block=512, lds=43008)

CP_STR, CH_STR = 4160, 16640
UR_BASE, UR_STR = 4*16640, 4640
def gen_k1():
    a = Asm()
    head(a, 256, "K1_end")
    a(f"""
    s_load_dwordx4 s[4:7], s[0:1], {KSSM}
    s_load_dwordx2 s[10:11], s[0:1], {KWS}
    v_lshrrev_b32 v1, 6, v0
    v_and_b32 v2, 63, v0
    v_readfirstlane_b32 s3, v1
    s_and_b32 s44, s2, 7
    s_lshr_b32 s45, s2, 3
    s_lshl_b32 s44, s44, 5
    s_add_u32 s44, s44, s45          ; cq
    s_lshl_b32 s45, s44, 2
    s_add_u32 s45, s45, s3           ; channel d
    s_lshl_b32 s46, s45, 12
    v_lshl_add_u32 v3, v2, 4, s46
    s_lshl_b32 s47, s44, 14          ; cq*16384
    s_lshl_b32 s48, s3, 12
    s_add_u32 s48, s48, s47
    v_lshl_add_u32 v4, v2, 4, s48    ; U offset
    s_mul_i32 s49, s3, {CH_STR}      ; chbase
    s_waitcnt lgkmcnt(0)
    """)
    srd(a, 16, 4, MB4); srd(a, 20, 6, 2048); srd(a, 24, 10, MB4, WS_U); srd(a, 28, 10, MB4, WS_Y)
    nt = cfg.nt_in
    for j in range(4):
        a(f"buffer_load_dwordx4 {vr(176+4*j,4)}, v4, s[24:27], 0 offen offset:{1024*j}")
    for j in range(4):
        for sft in range(3):
            a(f"buffer_load_dwordx4 {vr(32+12*j+4*sft,4)}, v3, s[16:19], 0 offen offset:{1024*j+4*sft} {nt}")
    a(f"""
    s_lshl_b32 s50, s45, 1
    v_mov_b32 v5, s50
    buffer_load_ushort v6, v5, s[20:23], 0 offen
    v_and_b32 v7, 3, v2
    v_mul_u32_u24 v7, {UR_STR}, v7
    v_lshrrev_b32 v8, 2, v2
    v_lshlrev_b32 v8, 4, v8
    v_sub_u32 v7, v7, v8
    s_lshl_b32 s50, s3, 10
    s_sub_u32 s50, {UR_BASE + 255*16 - 3*256}, s50
    v_add_u32 v7, s50, v7
    v_mov_b32 v12, 0
    v_mov_b32 v13, 0
    v_mov_b32 v14, 0
    v_mov_b32 v15, 0
    s_mul_i32 s51, s3, {UR_STR}
    s_add_u32 s51, s51, {UR_BASE}    ; URc
    v_lshl_add_u32 v8, v2, 4, s51
    s_mov_b64 exec, 0x3fffffff
    ds_write_b128 v8, v[12:15] offset:4096
    s_mov_b64 exec, -1
    v_lshl_add_u32 v9, v2, 4, s49
    v_and_b32 v10, 15, v2            ; i' / a'
    v_lshrrev_b32 v11, 4, v2         ; g
    v_add_u32 v16, 1, v10            ; o+16
    v_and_b32 v17, 3, v16            ; c'
    v_sub_u32 v16, v16, v17          ; o-c'+16
    v_lshlrev_b32 v16, 1, v16        ; 2(o-c')+32
    v_mul_u32_u24 v17, {CP_STR}, v17
    v_add_u32 v16, v16, v17
    v_lshl_add_u32 v16, v11, 4, v16
    v_add_u32 v16, s49, v16          ; vA
    v_lshlrev_b32 v17, 5, v10
    v_sub_u32 v17, 480, v17
    v_lshl_add_u32 v17, v11, 4, v17
    v_add_u32 v17, s51, v17          ; vB
    ; e = 15 - i' - 8g
    v_lshlrev_b32 v18, 3, v11
    v_add_u32 v18, v18, v10
    v_sub_u32 v18, 15, v18
    s_waitcnt vmcnt(13)
    """)
    stamp(a, 0)
    for j in range(4):
        a(f"ds_write_b128 v7, {vr(176+4*j,4)} offset:{256*(3-j)}")
    for j in range(4):
        A, B, C = 32+12*j, 36+12*j, 40+12*j
        a(f"s_waitcnt vmcnt({1+3*(3-j)})")
        o1, o3 = 80+8*j, 84+8*j
        for i in range(4): a(f"v_alignbit_b32 v{o1+i}, v{B+i}, v{A+i}, 16")
        for i in range(4): a(f"v_alignbit_b32 v{o3+i}, v{C+i}, v{B+i}, 16")
        a(f"ds_write_b128 v9, {vr(A,4)} offset:{32+1024*j}")
        a(f"ds_write_b128 v9, {vr(B,4)} offset:{2*CP_STR+32+1024*j}")
        a(f"ds_write_b128 v9, {vr(o1,4)} offset:{CP_STR+32+1024*j}")
        a(f"ds_write_b128 v9, {vr(o3,4)} offset:{3*CP_STR+32+1024*j}")
    a(f"""
    v_readfirstlane_b32 s52, v32
    v_readfirstlane_b32 s53, v33
    s_nop 1
    s_lshl_b32 s54, s52, 16
    s_lshr_b32 s55, s52, 16
    s_lshl_b32 s56, s53, 16
    s_or_b32 s55, s55, s56
    v_writelane_b32 v15, s54, 3
    v_writelane_b32 v15, s52, 5
    v_writelane_b32 v14, s54, 7
    v_writelane_b32 v15, s55, 7
    v_lshrrev_b32 v19, 1, v2
    v_mul_u32_u24 v19, {CP_STR}, v19
    v_and_b32 v20, 1, v2
    v_lshl_add_u32 v19, v20, 4, v19
    v_add_u32 v19, s49, v19
    s_mov_b64 exec, 0xff
    ds_write_b128 v19, v[12:15]
    s_mov_b64 exec, -1
    s_waitcnt vmcnt(0)
    v_lshlrev_b32 v21, 16, v6
    """)
    for j in range(4):
        a(f"v_cmp_eq_u32 vcc, {2*j}, v18")
        a("s_nop 1")
        a(f"v_cndmask_b32 v{24+j}, 0, v6, vcc")
        a(f"v_cmp_eq_u32 vcc, {2*j+1}, v18")
        a("s_nop 1")
        a(f"v_cndmask_b32 v{24+j}, v{24+j}, v21, vcc")
    a("s_waitcnt lgkmcnt(0)")
    a("s_barrier")
    stamp(a, 1)
    ACC = 192
    FA = lambda s, w: 32 + 64*s + 4*w
    FB = lambda s, v: 64 + 64*s + 4*v
    def reads(z0):
        s = z0 & 1
        R = []
        for i in range(8):
            R.append(f"ds_read_b128 {vr(FB(s,i),4)}, v17 offset:{512*(7-i)+64*z0}")
            R.append(f"ds_read_b64 {vr(FA(s,i),2)}, v16 offset:{512*i+64*z0}")
            R.append(f"ds_read_b64 {vr(FA(s,i)+2,2)}, v16 offset:{512*i+64*z0+8}")
        return R
    for r in reads(0): a(r)
    a("s_waitcnt lgkmcnt(0)")
    for n in range(8):
        a(f"v_mfma_f32_16x16x32_bf16 {vr(ACC+4*n,4)}, v[24:27], {vr(FB(0,n),4)}, 0")
    for z0 in range(8):
        s = z0 & 1
        R = reads(z0+1) if z0 < 7 else []
        M = [(w, v) for w in range(8) for v in range(8-w)]
        for i, (w, v) in enumerate(M):
            a(f"v_mfma_f32_16x16x32_bf16 {vr(ACC+4*(w+v),4)}, {vr(FA(s,w),4)}, {vr(FB(s,v),4)}, {vr(ACC+4*(w+v),4)}")
            if i < len(R): a(R[i])
        if z0 < 7: a("s_waitcnt lgkmcnt(0)")
    stamp(a, 2)
    a(f"""
    v_lshlrev_b32 v20, 5, v10
    v_lshl_add_u32 v20, v11, 3, v20
    v_add_u32 v20, s49, v20
    s_lshl_b32 s50, s3, 10
    v_lshl_add_u32 v21, v2, 2, s50
    s_mov_b32 s56, 0x05040100
    s_mov_b32 s57, 0x07060302
    s_nop 4
    """)
    for n in range(8):
        a(f"v_cvt_pk_bf16_f32 v{32+2*n}, v{ACC+4*n}, v{ACC+4*n+1}")
        a(f"v_cvt_pk_bf16_f32 v{33+2*n}, v{ACC+4*n+2}, v{ACC+4*n+3}")
        a(f"ds_write_b64 v20, {vr(32+2*n,2)} offset:{512*n}")
    a("s_waitcnt lgkmcnt(0)")
    a("s_barrier")
    for j in range(4):
        a(f"ds_read2st64_b32 {vr(64+4*j,2)}, v21 offset0:{j} offset1:{65+j}")
        a(f"ds_read2st64_b32 {vr(66+4*j,2)}, v21 offset0:{130+j} offset1:{195+j}")
    for j in range(4):
        a(f"s_waitcnt lgkmcnt({6-2*j})")
        b = 64+4*j; o = 96+4*j
        a(f"v_perm_b32 v{o}, v{b+1}, v{b}, s56")
        a(f"v_perm_b32 v{o+1}, v{b+3}, v{b+2}, s56")
        a(f"v_perm_b32 v{o+2}, v{b+1}, v{b}, s57")
        a(f"v_perm_b32 v{o+3}, v{b+3}, v{b+2}, s57")
        a(f"buffer_store_dwordx4 {vr(o,4)}, v4, s[28:31], 0 offen offset:{1024*j} {cfg.st_pol}")
    fin(a, 1, "K1_end")
    return dict(name="k1_kernel", body=a.text(), vgpr=224, sgpr=64, grid=256, block=256, lds=UR_BASE+4*UR_STR)

def wave_stats(a, s1, s2, t, mean_rs, rstd):
    steps = ["quad_perm:[1,0,3,2] row_mask:0xf", "quad_perm:[2,3,0,1] row_mask:0xf", "row_half_mirror row_mask:0xf",
             "row_mirror row_mask:0xf", "row_bcast:15 row_mask:0xa", "row_bcast:31 row_mask:0xc"]
    a("s_nop 1")
    for st in steps:
        a(f"v_add_f32_dpp v{s1}, v{s1}, v{s1} {st} bank_mask:0xf")
        a(f"v_add_f32_dpp v{s2}, v{s2}, v{s2} {st} bank_mask:0xf")
        a("s_nop 0")
    a(f"""
    v_readlane_b32 s60, v{s1}, 63
    v_readlane_b32 s61, v{s2}, 63
    s_nop 1
    v_mul_f32 v{t}, s60, v250             ; mean
    v_mul_f32 v{rstd}, s61, v250          ; E[x^2]
    v_fma_f32 v{rstd}, -v{t}, v{t}, v{rstd}
    v_max_f32 v{rstd}, 0, v{rstd}
    v_add_f32 v{rstd}, {f32(1e-5)}, v{rstd}
    v_rsq_f32 v{rstd}, v{rstd}
    s_nop 0
    v_mul_f32 v{mean_rs}, v{t}, v{rstd}
    v_sub_f32 v{mean_rs}, 0, v{mean_rs}
    """.replace("v250", "v126"))

def gen_kb():
    a = Asm()
    head(a, 256, "KB_end")
    MODL = 16384
    a(f"""
    s_load_dwordx2 s[4:5], s[0:1], {KQ}
    s_load_dwordx2 s[10:11], s[0:1], {KWS}
    v_lshrrev_b32 v1, 6, v0
    v_and_b32 v2, 63, v0
    v_readfirstlane_b32 s3, v1
    s_and_b32 s44, s2, 7
    s_lshr_b32 s45, s2, 3
    s_lshl_b32 s44, s44, 5
    s_add_u32 s44, s44, s45
    s_lshl_b32 s45, s44, 3
    s_add_u32 s45, s45, s3           ; row
    s_lshl_b32 s46, s45, 11
    v_lshl_add_u32 v3, v2, 4, s46
    v_lshrrev_b32 v4, 2, v2
    v_and_b32 v5, 7, v4
    v_lshlrev_b32 v5, 1, v5
    v_lshrrev_b32 v4, 3, v4
    v_add_u32 v5, v5, v4             ; G (0..15)
    v_lshrrev_b32 v6, 3, v5
    v_and_b32 v7, 3, v2
    v_xor_b32 v6, v6, v7
    v_lshlrev_b32 v5, 14, v5
    s_lshl_b32 s47, s3, 19           ; (2w*16)*16384
    s_lshl_b32 s48, s44, 6
    s_add_u32 s47, s47, s48
    v_add_u32 v5, s47, v5
    v_lshl_add_u32 v8, v6, 4, v5
    v_xor_b32 v6, 2, v6
    v_lshl_add_u32 v9, v6, 4, v5
    v_lshlrev_b32 v10, 4, v0
    s_mov_b32 s49, 0x40000
    s_mov_b32 s50, 8192
    s_mov_b32 s51, 16384
    s_mov_b32 s52, 24576
    s_mov_b32 s53, 32768
    s_mov_b32 s54, 40960
    s_waitcnt lgkmcnt(0)
    """)
    srd(a, 16, 4, MB4); srd(a, 20, 10, MB4, WS_Y); srd(a, 24, 10, 2*6144*4, WS_MODP)
    srd(a, 28, 10, MB4, WS_X1); srd(a, 32, 10, MB4, WS_Y2)
    a(f"""
    s_lshl_b32 s55, s3, 11
    s_mov_b32 m0, s55
    buffer_load_dwordx4 v[16:19], v10, s[24:27], 0 offen
    buffer_load_dwordx4 v8, s[20:23], 0 offen lds
    s_add_u32 m0, s55, 1024
    buffer_load_dwordx4 v[20:23], v10, s[24:27], s52 offen
    buffer_load_dwordx4 v9, s[20:23], s49 offen lds
    buffer_load_dwordx4 v[24:27], v10, s[24:27], s50 offen
    buffer_load_dwordx4 v[28:31], v10, s[24:27], s53 offen
    buffer_load_dwordx4 v[32:35], v10, s[24:27], s51 offen
    buffer_load_dwordx4 v[36:39], v10, s[24:27], s54 offen
    buffer_load_dwordx4 v[40:43], v3, s[16:19], 0 offen {cfg.nt_in}
    buffer_load_dwordx4 v[44:47], v3, s[16:19], 0 offen offset:1024 {cfg.nt_in}
    v_lshrrev_b32 v11, 7, v0         ; (vec&1)*2 + h
    v_lshlrev_b32 v11, 11, v11
    v_and_b32 v12, 1, v0
    v_lshl_add_u32 v11, v12, 10, v11
    v_bfe_u32 v12, v0, 1, 6
    v_lshl_add_u32 v11, v12, 4, v11
    v_cmp_le_u32 vcc, 256, v0
    v_mov_b32 v126, {f32(1.0/1024)}
    s_nop 0
    v_cndmask_b32_e64 v13, 0, 1.0, vcc
    v_sub_f32 v14, 1.0, v13
    v_lshrrev_b32 v4, 3, v2
    v_lshlrev_b32 v4, 10, v4
    v_and_b32 v5, 7, v2
    v_lshl_add_u32 v4, v5, 6, v4
    v_bfe_u32 v5, v2, 2, 2
    s_lshr_b32 s56, s3, 1
    v_xor_b32 v5, s56, v5
    v_lshl_add_u32 v4, v5, 4, v4
    s_and_b32 s56, s3, 1
    s_lshl_b32 s56, s56, 3
    v_add_u32 v4, s56, v4
    v_lshlrev_b32 v5, 4, v2
    s_waitcnt vmcnt(2)
    """)
    stamp(a, 0)
    for i in range(3):
        for e in range(4):
            a(f"v_add_f32 v{16+8*i+e}, v{16+8*i+e}, v{20+8*i+e}")
        if i != 1:
            for e in range(4):
                a(f"v_add_f32 v{16+8*i+e}, v{16+8*i+e}, v{13 if i == 0 else 14}")
        a(f"ds_write_b128 v11, {vr(16+8*i,4)} offset:{MODL+8192*i}")
    a("s_waitcnt vmcnt(0)")
    Q, Y, T = 48, 64, 80
    for j in range(8):
        a(f"v_lshlrev_b32 v{Q+2*j}, 16, v{40+j}")
        a(f"v_and_b32 v{Q+2*j+1}, 0xffff0000, v{40+j}")
    a("s_waitcnt lgkmcnt(0)")
    a("s_barrier")
    stamp(a, 1)
    for h in range(2):
        for e in range(2):
            a(f"ds_read_b64 {vr(40+4*h+2*e,2)}, v4 offset:{8192*h+512*e}")
    def modread(vec, dst):
        for h in range(2):
            for half in range(2):
                a(f"ds_read_b128 {vr(dst+8*h+4*half,4)}, v5 offset:{MODL+4096*vec+2048*h+1024*half}")
    M0, M1, M2 = 16, 96, 112
    M2 = 128
    modread(1, M0); modread(0, M1); modread(2, M2)
    def stats(X):
        a(f"v_add_f32 v6, v{X}, v{X+1}")
        a(f"v_mul_f32 v7, v{X}, v{X}")
        a(f"v_fmac_f32 v7, v{X+1}, v{X+1}")
        for j in range(2, 16):
            a(f"v_add_f32 v6, v6, v{X+j}")
            a(f"v_fmac_f32 v7, v{X+j}, v{X+j}")
        wave_stats(a, 6, 7, 8, 9, 10)
    stats(Q)
    a("s_waitcnt lgkmcnt(0)")
    for j in range(8):
        a(f"v_lshlrev_b32 v{Y+2*j}, 16, v{40+j}")
        a(f"v_and_b32 v{Y+2*j+1}, 0xffff0000, v{40+j}")
    for j in range(16): a(f"v_fma_f32 v{T+j}, v{Q+j}, v10, v9")
    for j in range(16): a(f"v_fma_f32 v{T+j}, v{T+j}, v{M0+j}, v{M1+j}")
    modread(4, M0); modread(3, M1)
    for j in range(16): a(f"v_mul_f32 v{T+j}, v{T+j}, v{Y+j}")
    for j in range(16): a(f"v_fmac_f32 v{Q+j}, v{T+j}, v{M2+j}")
    for j in range(8): a(f"v_cvt_pk_bf16_f32 v{40+j}, v{Q+2*j}, v{Q+2*j+1}")
    a(f"buffer_store_dwordx4 v[40:43], v3, s[28:31], 0 offen {cfg.st_pol}")
    a(f"buffer_store_dwordx4 v[44:47], v3, s[28:31], 0 offen offset:1024 {cfg.st_pol}")
    stats(Q)
    a("s_waitcnt lgkmcnt(0)")
    for j in range(16): a(f"v_fma_f32 v{T+j}, v{Q+j}, v10, v9")
    for j in range(16): a(f"v_fma_f32 v{T+j}, v{T+j}, v{M0+j}, v{M1+j}")
    stats(T)
    for j in range(16): a(f"v_fma_f32 v{T+j}, v{T+j}, v10, v9")
    for j in range(8): a(f"v_cvt_pk_bf16_f32 v{Y+j}, v{T+2*j}, v{T+2*j+1}")
    stamp(a, 2)
    a(f"buffer_store_dwordx4 {vr(Y,4)}, v3, s[32:35], 0 offen {cfg.st_pol}")
    a(f"buffer_store_dwordx4 {vr(Y+4,4)}, v3, s[32:35], 0 offen offset:1024 {cfg.st_pol}")
    fin(a, 2, "KB_end")
    return dict(name="kb_kernel", body=a.text(), vgpr=144, sgpr=64, grid=256, block=512, lds=MODL+24576)

def emit(kernels):
    ref = open(f"cdna_kernels/{NAME}.s.ref").read().splitlines()
    hdr = [l for l in ref if l.startswith(";") and "@launch" not in l and "Override" not in l and "grid=ceil" not in l]
    out = list(hdr)
    for k in kernels:
        out.append(f"; @launch kernel={k['name']} grid=({k['grid']},1,1) block=({k['block']},1,1) lds={k['lds']}")
    out.append('.amdgcn_target "amdgcn-amd-amdhsa--gfx950"')
    out.append(".text")
    seen = []
    for k in kernels:
        if k['name'] in seen: continue
        seen.append(k['name'])
        out.append(kernel_text(k['name'], k['body']))
    out.append('.section .rodata,"a"')
    seen = []
    for k in kernels:
        if k['name'] in seen: continue
        seen.append(k['name'])
        out.append(".p2align 6")
        out.append(kernel_desc(k['name'], k['vgpr'], 102 if cfg.stamps else k['sgpr'], k.get('accum')))
    return "\n".join(out) + "\n"

def main():
    import gemm
    for arg in sys.argv[2:]:
        k, v = arg.split("=")
        cur = getattr(cfg, k)
        setattr(cfg, k, (v == "1") if isinstance(cur, bool) else type(cur)(v.replace("+", " ")))
    ks = [gen_k0(), gen_k1(), gen_kb(), gemm.gen_kc(), gemm.gen_kd(), gemm.gen_ke()]
    dst = sys.argv[1] if len(sys.argv) > 1 else f"cdna_kernels/{NAME}.s"
    open(dst, "w").write(emit(ks))
    print("wrote", dst)

if __name__ == "__main__":
    import gen
    gen.main()
```

```python
import sys, math
from asmlib import *

NAME = "adaLN_cond__ssm_conv_h3__mixer_channel_mlp__prompt"
S, D, F = 2048, 1024, 3584
KQ, KK, KV, KSH, KSSM, KSD, KBX, KW1, KB1, KW2, KB2, KC_, KWM, KOUT, KDBG, KWS = [8*i for i in range(16)]
WS_U    = 0x0000000
WS_MODP = 0x0400000
WS_Y    = 0x0800000
WS_X1   = 0x0C00000
WS_Y2   = 0x1000000
WS_H    = 0x1400000
WS_EX   = 0x2400000
MB4 = 0x400000
LOG2E = 1.4426950408889634

import struct
def f32(x):
    return "0x%08x" % struct.unpack("<I", struct.pack("<f", x))[0]

WS_ST   = 0x3800000
class Cfg:
    stamps = False
    extra = ""
    pf_pol = ""
    nt_in = "nt"
    w_pol = ""
    st_pol = ""
cfg = Cfg()

def head(a, nwg, endlbl):
    a(f"s_cmp_ge_u32 s2, {nwg}")
    a(f"s_cbranch_scc1 {endlbl}_x" if cfg.stamps else f"s_cbranch_scc1 {endlbl}")
    if cfg.stamps:
        a("s_memrealtime s[76:77]")
        a("s_memtime s[78:79]")
        a(f"s_load_dwordx2 s[98:99], s[0:1], {KWS}")
        for i in range(80, 92, 2): a(f"s_mov_b64 s[{i}:{i+1}], 0")
        a("v_readfirstlane_b32 s97, v0")

def stamp(a, i):
    if cfg.stamps:
        a(f"s_memtime s[{80+2*i}:{81+2*i}]")

def fin(a, kidx, lbl=None):
    if lbl: a(f"{lbl}:")
    if cfg.stamps:
        a(f"""
        s_waitcnt vmcnt(0)
        s_memrealtime s[92:93]
        s_memtime s[94:95]
        s_waitcnt lgkmcnt(0)
        s_mov_b64 exec, 1
        s_lshr_b32 s97, s97, 6
        s_add_u32 s96, s2, {kidx*256}
        s_lshl_b32 s96, s96, 4
        s_add_u32 s96, s96, s97
        s_lshl_b32 s96, s96, 6
        s_add_u32 s96, s96, {WS_ST}
        v_mov_b32 v0, s96
        v_mov_b32 v4, s76
        v_mov_b32 v5, s92
        v_mov_b32 v6, s78
        v_mov_b32 v7, s94
        global_store_dwordx4 v0, v[4:7], s[98:99]
        s_nop 1
        v_mov_b32 v4, s80
        v_mov_b32 v5, s82
        v_mov_b32 v6, s84
        v_mov_b32 v7, s86
        global_store_dwordx4 v0, v[4:7], s[98:99] offset:16
        s_nop 1
        v_mov_b32 v4, s88
        v_mov_b32 v5, s90
        global_store_dwordx2 v0, v[4:5], s[98:99] offset:32
        """)
        if lbl: a(f"{lbl}_x:")
    a("s_endpgm")

def gen_k0():
    a = Asm()
    head(a, 256, "K0_end")
    a(f"""
    s_load_dwordx4 s[4:7], s[0:1], {KK}
    s_load_dwordx2 s[8:9], s[0:1], {KSH}
    s_load_dwordx4 s[12:15], s[0:1], {KC_}
    s_load_dwordx2 s[10:11], s[0:1], {KWS}
    v_lshrrev_b32 v1, 6, v0
    v_and_b32 v2, 63, v0
    v_readfirstlane_b32 s3, v1
    s_and_b32 s44, s2, 7
    s_lshr_b32 s45, s2, 3
    s_lshr_b32 s46, s45, 4
    s_lshl_b32 s44, s44, 1
    s_add_u32 s44, s44, s46          ; cg
    s_and_b32 s45, s45, 15           ; rb
    s_lshl_b32 s46, s45, 7
    s_lshl_b32 s47, s3, 4
    s_add_u32 s46, s46, s47
    s_lshl_b32 s47, s46, 11
    s_lshl_b32 s48, s44, 7
    s_add_u32 s47, s47, s48
    v_lshrrev_b32 v7, 3, v2          ; l>>3
    v_and_b32 v15, 7, v2             ; l&7
    v_lshlrev_b32 v3, 11, v7
    v_lshl_add_u32 v3, v15, 4, v3
    v_add_u32 v3, s47, v3            ; vk
    v_add_u32 v4, 0xffffc000, v3
    s_mul_i32 s49, s3, 5120
    s_mov_b32 s50, 16384
    s_waitcnt lgkmcnt(0)
    """)
    srd(a, 16, 4, MB4); srd(a, 20, 6, MB4); srd(a, 24, 8, 8192)
    srd(a, 28, 10, MB4, WS_U); srd(a, 32, 12, 2048); srd(a, 36, 14, 1024*6144*2); srd(a, 40, 10, 2*6144*4, WS_MODP)
    nt = cfg.nt_in
    a(f"""
    s_add_u32 m0, s49, 1024
    s_nop 0
    buffer_load_dwordx4 v3, s[16:19], 0 offen {nt} lds
    s_add_u32 m0, s49, 2048
    s_nop 0
    buffer_load_dwordx4 v3, s[16:19], s50 offen {nt} lds
    s_add_u32 m0, s49, 3072
    s_nop 0
    buffer_load_dwordx4 v3, s[20:23], 0 offen {nt} lds
    s_add_u32 m0, s49, 4096
    s_nop 0
    buffer_load_dwordx4 v3, s[20:23], s50 offen {nt} lds
    s_mov_b32 m0, s49
    s_mov_b32 exec_lo, 0
    buffer_load_dwordx4 v4, s[16:19], 0 offen {nt} lds
    s_mov_b32 exec_lo, -1
    s_lshl_b32 s51, s44, 9
    v_lshl_add_u32 v5, v2, 3, s51
    buffer_load_dwordx2 v[8:9], v5, s[24:27], 0 offen
    s_cmp_ge_u32 s2, 192
    s_cbranch_scc1 K0_nogemv_ld
    s_lshr_b32 s52, s2, 1
    s_and_b32 s53, s2, 1             ; k half
    s_lshl_b32 s54, s53, 9
    s_lshl_b32 s55, s3, 6
    s_add_u32 s54, s54, s55
    v_lshl_add_u32 v60, v7, 3, s54
    v_lshlrev_b32 v61, 1, v60
    s_mov_b32 s55, 12288
    v_mul_lo_u32 v108, v60, s55
    s_lshl_b32 s55, s52, 7
    v_lshl_add_u32 v109, v15, 4, s55
    v_add_u32 v108, v108, v109
    buffer_load_dwordx4 v[60:63], v61, s[32:35], 0 offen
    s_mov_b32 s55, 0
    """)
    for i in range(8):
        a(f"buffer_load_dwordx4 {vr(64+4*i,4)}, v108, s[36:39], s55 offen {nt}")
        if i < 7: a("s_add_u32 s55, s55, 12288")
    a("""
    s_waitcnt vmcnt(9)
    s_branch K0_phaseA
    K0_nogemv_ld:
    s_waitcnt vmcnt(0)
    K0_phaseA:
    """)
    stamp(a, 0)
    a("""
    v_lshrrev_b32 v5, 4, v2          ; g
    v_and_b32 v6, 15, v2             ; i
    v_lshrrev_b32 v10, 2, v6
    v_and_b32 v11, 3, v6
    v_lshlrev_b32 v10, 7, v10
    v_lshl_add_u32 v10, v5, 5, v10
    v_lshl_add_u32 v10, v11, 3, v10
    v_add_u32 v5, s49, v10
    """)
    for p in range(5):
        a(f"ds_read_b64_tr_b16 {vr(16+2*p,2)}, v5 offset:{512+512*p}")
    for p in range(4):
        a(f"ds_read_b64_tr_b16 {vr(26+2*p,2)}, v5 offset:{3072+512*p}")
    a("""
    v_alignbit_b32 v10, v8, v8, 16   ; A=(w1,w0)
    v_alignbit_b32 v11, v9, v9, 16   ; B=(w3,w2)
    v_and_b32 v12, 0xffff, v8        ; C=(w0,0)
    s_mov_b32 s56, 0xffff
    v_bfi_b32 v13, s56, v9, v8       ; D=(w2,w1)
    v_and_b32 v14, 0xffff0000, v9    ; E=(0,w3)
    v_lshrrev_b32 v6, 2, v2
    v_lshlrev_b32 v6, 14, v6
    v_and_b32 v50, 3, v2
    v_lshl_add_u32 v6, v50, 4, v6
    s_lshl_b32 s56, s44, 18
    s_lshl_b32 s57, s46, 3           ; (row0/8)*64
    s_add_u32 s56, s56, s57
    v_add_u32 v6, s56, v6
    s_waitcnt lgkmcnt(0)
    """)
    P = lambda q: 16 + q + 2
    ks = lambda t: 34 + t
    for q in range(8):
        a(f"v_dot2_f32_bf16 v{ks(2*q)}, v{P(q)}, v12, 0")
        a(f"v_dot2_f32_bf16 v{ks(2*q+1)}, v{P(q)}, v10, 0")
    for q in range(8):
        a(f"v_dot2_f32_bf16 v{ks(2*q)}, v{P(q-1)}, v13, v{ks(2*q)}")
        a(f"v_dot2_f32_bf16 v{ks(2*q+1)}, v{P(q-1)}, v11, v{ks(2*q+1)}")
    for q in range(8):
        a(f"v_dot2_f32_bf16 v{ks(2*q)}, v{P(q-2)}, v14, v{ks(2*q)}")
    for q in range(8):
        a(f"v_lshlrev_b32 v{110+2*q}, 16, v{26+q}")
        a(f"v_and_b32 v{111+2*q}, 0xffff0000, v{26+q}")
    for t in range(16):
        a(f"v_mul_f32 v{ks(t)}, v{ks(t)}, v{110+t}")
    for h in range(2):
        for j in range(4):
            a(f"v_cvt_pk_bf16_f32 v{52+4*h+j}, v{ks(8*h+7-2*j)}, v{ks(8*h+6-2*j)}")
    a(f"buffer_store_dwordx4 v[52:55], v6, s[28:31], 0 offen {cfg.st_pol}")
    a(f"buffer_store_dwordx4 v[56:59], v6, s[28:31], 0 offen offset:64 {cfg.st_pol}")
    stamp(a, 1)
    a("""
    s_cmp_ge_u32 s2, 192
    s_cbranch_scc1 K0_end
    s_waitcnt vmcnt(10)
    """)
    for q in range(4):
        a(f"v_lshlrev_b32 v{110+2*q}, 16, v{60+q}")
        a(f"v_and_b32 v{111+2*q}, 0xffff0000, v{60+q}")
    for i in range(8): a(f"v_mul_f32 v{118+i}, {f32(-LOG2E)}, v{110+i}")
    for i in range(8): a(f"v_exp_f32 v{118+i}, v{118+i}")
    a("s_nop 0")
    for i in range(8): a(f"v_add_f32 v{118+i}, 1.0, v{118+i}")
    for i in range(8): a(f"v_rcp_f32 v{118+i}, v{118+i}")
    a("s_nop 0")
    for i in range(8): a(f"v_mul_f32 v{110+i}, v{110+i}, v{118+i}")
    for q in range(4): a(f"v_cvt_pk_bf16_f32 v{96+q}, v{110+2*q}, v{111+2*q}")
    a("s_mov_b32 s56, 0x05040100")
    a("s_mov_b32 s57, 0x07060302")
    for q in range(4):
        a(f"s_waitcnt vmcnt({2 + 6 - 2*q})")
        for j in range(4):
            w0 = 64 + 8*q + j; w1 = w0 + 4
            a(f"v_perm_b32 v{110+2*j}, v{w1}, v{w0}, s56")
            a(f"v_perm_b32 v{111+2*j}, v{w1}, v{w0}, s57")
        for j in range(8):
            src2 = "0" if q == 0 else f"v{100+j}"
            a(f"v_dot2_f32_bf16 v{100+j}, v{110+j}, v{96+q}, {src2}")
    stamp(a, 2)
    a("s_nop 3")
    for j in range(4): a(f"v_permlane32_swap_b32 v{100+j}, v{104+j}")
    a("s_nop 1")
    for j in range(4): a(f"v_add_f32 v{100+j}, v{100+j}, v{104+j}")
    a("s_nop 1")
    for j in range(2): a(f"v_permlane16_swap_b32 v{100+j}, v{102+j}")
    a("s_nop 1")
    for j in range(2): a(f"v_add_f32 v{100+j}, v{100+j}, v{102+j}")
    a("s_nop 1")
    for j in range(2): a(f"v_add_f32_dpp v{100+j}, v{100+j}, v{100+j} row_ror:8 row_mask:0xf bank_mask:0xf")
    a("""
    v_lshrrev_b32 v110, 4, v2
    v_lshlrev_b32 v110, 3, v110
    v_lshl_add_u32 v110, v15, 5, v110
    s_lshl_b32 s56, s3, 8
    s_add_u32 s56, s56, 40960
    v_add_u32 v110, s56, v110
    ds_write_b64 v110, v[100:101]
    s_waitcnt lgkmcnt(0)
    s_barrier
    s_cmp_lg_u32 s3, 0
    s_cbranch_scc1 K0_end
    v_lshlrev_b32 v110, 2, v2
    """)
    for w in range(8): a(f"ds_read_b32 v{100+w}, v110 offset:{40960+256*w}")
    a("""
    s_mul_i32 s56, s53, 24576
    s_lshl_b32 s57, s52, 8
    s_add_u32 s56, s56, s57
    s_waitcnt lgkmcnt(0)
    v_add_f32 v100, v100, v101
    v_add_f32 v102, v102, v103
    v_add_f32 v104, v104, v105
    v_add_f32 v106, v106, v107
    v_add_f32 v100, v100, v102
    v_add_f32 v104, v104, v106
    v_add_f32 v100, v100, v104
    buffer_store_dword v100, v110, s[40:43], s56 offen
    """)
    fin(a, 0, "K0_end")
    return dict(name="k0_kernel", body=a.text(), vgpr=128, sgpr=64, grid=256, block=512, lds=43008)

CP_STR, CH_STR = 4160, 16640
UR_BASE, UR_STR = 4*16640, 4640
def gen_k1():
    a = Asm()
    head(a, 256, "K1_end")
    a(f"""
    s_load_dwordx4 s[4:7], s[0:1], {KSSM}
    s_load_dwordx2 s[10:11], s[0:1], {KWS}
    v_lshrrev_b32 v1, 6, v0
    v_and_b32 v2, 63, v0
    v_readfirstlane_b32 s3, v1
    s_and_b32 s44, s2, 7
    s_lshr_b32 s45, s2, 3
    s_lshl_b32 s44, s44, 5
    s_add_u32 s44, s44, s45          ; cq
    s_lshl_b32 s45, s44, 2
    s_add_u32 s45, s45, s3           ; channel d
    s_lshl_b32 s46, s45, 12
    v_lshl_add_u32 v3, v2, 4, s46
    s_lshl_b32 s47, s44, 14          ; cq*16384
    s_lshl_b32 s48, s3, 12
    s_add_u32 s48, s48, s47
    v_lshl_add_u32 v4, v2, 4, s48    ; U offset
    s_mul_i32 s49, s3, {CH_STR}      ; chbase
    s_waitcnt lgkmcnt(0)
    """)
    srd(a, 16, 4, MB4); srd(a, 20, 6, 2048); srd(a, 24, 10, MB4, WS_U); srd(a, 28, 10, MB4, WS_Y)
    nt = cfg.nt_in
    for j in range(4):
        a(f"buffer_load_dwordx4 {vr(176+4*j,4)}, v4, s[24:27], 0 offen offset:{1024*j}")
    for j in range(4):
        for sft in range(3):
            a(f"buffer_load_dwordx4 {vr(32+12*j+4*sft,4)}, v3, s[16:19], 0 offen offset:{1024*j+4*sft} {nt}")
    a(f"""
    s_lshl_b32 s50, s45, 1
    v_mov_b32 v5, s50
    buffer_load_ushort v6, v5, s[20:23], 0 offen
    v_and_b32 v7, 3, v2
    v_mul_u32_u24 v7, {UR_STR}, v7
    v_lshrrev_b32 v8, 2, v2
    v_lshlrev_b32 v8, 4, v8
    v_sub_u32 v7, v7, v8
    s_lshl_b32 s50, s3, 10
    s_sub_u32 s50, {UR_BASE + 255*16 - 3*256}, s50
    v_add_u32 v7, s50, v7
    v_mov_b32 v12, 0
    v_mov_b32 v13, 0
    v_mov_b32 v14, 0
    v_mov_b32 v15, 0
    s_mul_i32 s51, s3, {UR_STR}
    s_add_u32 s51, s51, {UR_BASE}    ; URc
    v_lshl_add_u32 v8, v2, 4, s51
    s_mov_b64 exec, 0x3fffffff
    ds_write_b128 v8, v[12:15] offset:4096
    s_mov_b64 exec, -1
    v_lshl_add_u32 v9, v2, 4, s49
    v_and_b32 v10, 15, v2            ; i' / a'
    v_lshrrev_b32 v11, 4, v2         ; g
    v_add_u32 v16, 1, v10            ; o+16
    v_and_b32 v17, 3, v16            ; c'
    v_sub_u32 v16, v16, v17          ; o-c'+16
    v_lshlrev_b32 v16, 1, v16        ; 2(o-c')+32
    v_mul_u32_u24 v17, {CP_STR}, v17
    v_add_u32 v16, v16, v17
    v_lshl_add_u32 v16, v11, 4, v16
    v_add_u32 v16, s49, v16          ; vA
    v_lshlrev_b32 v17, 5, v10
    v_sub_u32 v17, 480, v17
    v_lshl_add_u32 v17, v11, 4, v17
    v_add_u32 v17, s51, v17          ; vB
    ; e = 15 - i' - 8g
    v_lshlrev_b32 v18, 3, v11
    v_add_u32 v18, v18, v10
    v_sub_u32 v18, 15, v18
    s_waitcnt vmcnt(13)
    """)
    stamp(a, 0)
    for j in range(4):
        a(f"ds_write_b128 v7, {vr(176+4*j,4)} offset:{256*(3-j)}")
    for j in range(4):
        A, B, C = 32+12*j, 36+12*j, 40+12*j
        a(f"s_waitcnt vmcnt({1+3*(3-j)})")
        o1, o3 = 80+8*j, 84+8*j
        for i in range(4): a(f"v_alignbit_b32 v{o1+i}, v{B+i}, v{A+i}, 16")
        for i in range(4): a(f"v_alignbit_b32 v{o3+i}, v{C+i}, v{B+i}, 16")
        a(f"ds_write_b128 v9, {vr(A,4)} offset:{32+1024*j}")
        a(f"ds_write_b128 v9, {vr(B,4)} offset:{2*CP_STR+32+1024*j}")
        a(f"ds_write_b128 v9, {vr(o1,4)} offset:{CP_STR+32+1024*j}")
        a(f"ds_write_b128 v9, {vr(o3,4)} offset:{3*CP_STR+32+1024*j}")
    a(f"""
    v_readfirstlane_b32 s52, v32
    v_readfirstlane_b32 s53, v33
    s_nop 1
    s_lshl_b32 s54, s52, 16
    s_lshr_b32 s55, s52, 16
    s_lshl_b32 s56, s53, 16
    s_or_b32 s55, s55, s56
    v_writelane_b32 v15, s54, 3
    v_writelane_b32 v15, s52, 5
    v_writelane_b32 v14, s54, 7
    v_writelane_b32 v15, s55, 7
    v_lshrrev_b32 v19, 1, v2
    v_mul_u32_u24 v19, {CP_STR}, v19
    v_and_b32 v20, 1, v2
    v_lshl_add_u32 v19, v20, 4, v19
    v_add_u32 v19, s49, v19
    s_mov_b64 exec, 0xff
    ds_write_b128 v19, v[12:15]
    s_mov_b64 exec, -1
    s_waitcnt vmcnt(0)
    v_lshlrev_b32 v21, 16, v6
    """)
    for j in range(4):
        a(f"v_cmp_eq_u32 vcc, {2*j}, v18")
        a("s_nop 1")
        a(f"v_cndmask_b32 v{24+j}, 0, v6, vcc")
        a(f"v_cmp_eq_u32 vcc, {2*j+1}, v18")
        a("s_nop 1")
        a(f"v_cndmask_b32 v{24+j}, v{24+j}, v21, vcc")
    a("s_waitcnt lgkmcnt(0)")
    a("s_barrier")
    stamp(a, 1)
    ACC = 192
    FA = lambda s, w: 32 + 64*s + 4*w
    FB = lambda s, v: 64 + 64*s + 4*v
    def reads(z0):
        s = z0 & 1
        R = []
        for i in range(8):
            R.append(f"ds_read_b128 {vr(FB(s,i),4)}, v17 offset:{512*(7-i)+64*z0}")
            R.append(f"ds_read_b64 {vr(FA(s,i),2)}, v16 offset:{512*i+64*z0}")
            R.append(f"ds_read_b64 {vr(FA(s,i)+2,2)}, v16 offset:{512*i+64*z0+8}")
        return R
    for r in reads(0): a(r)
    a("s_waitcnt lgkmcnt(0)")
    for n in range(8):
        a(f"v_mfma_f32_16x16x32_bf16 {vr(ACC+4*n,4)}, v[24:27], {vr(FB(0,n),4)}, 0")
    for z0 in range(8):
        s = z0 & 1
        R = reads(z0+1) if z0 < 7 else []
        M = [(w, v) for w in range(8) for v in range(8-w)]
        for i, (w, v) in enumerate(M):
            a(f"v_mfma_f32_16x16x32_bf16 {vr(ACC+4*(w+v),4)}, {vr(FA(s,w),4)}, {vr(FB(s,v),4)}, {vr(ACC+4*(w+v),4)}")
            if i < len(R): a(R[i])
        if z0 < 7: a("s_waitcnt lgkmcnt(0)")
    stamp(a, 2)
    a(f"""
    v_lshlrev_b32 v20, 5, v10
    v_lshl_add_u32 v20, v11, 3, v20
    v_add_u32 v20, s49, v20
    s_lshl_b32 s50, s3, 10
    v_lshl_add_u32 v21, v2, 2, s50
    s_mov_b32 s56, 0x05040100
    s_mov_b32 s57, 0x07060302
    s_nop 4
    """)
    for n in range(8):
        a(f"v_cvt_pk_bf16_f32 v{32+2*n}, v{ACC+4*n}, v{ACC+4*n+1}")
        a(f"v_cvt_pk_bf16_f32 v{33+2*n}, v{ACC+4*n+2}, v{ACC+4*n+3}")
        a(f"ds_write_b64 v20, {vr(32+2*n,2)} offset:{512*n}")
    a("s_waitcnt lgkmcnt(0)")
    a("s_barrier")
    for j in range(4):
        a(f"ds_read2st64_b32 {vr(64+4*j,2)}, v21 offset0:{j} offset1:{65+j}")
        a(f"ds_read2st64_b32 {vr(66+4*j,2)}, v21 offset0:{130+j} offset1:{195+j}")
    for j in range(4):
        a(f"s_waitcnt lgkmcnt({6-2*j})")
        b = 64+4*j; o = 96+4*j
        a(f"v_perm_b32 v{o}, v{b+1}, v{b}, s56")
        a(f"v_perm_b32 v{o+1}, v{b+3}, v{b+2}, s56")
        a(f"v_perm_b32 v{o+2}, v{b+1}, v{b}, s57")
        a(f"v_perm_b32 v{o+3}, v{b+3}, v{b+2}, s57")
        a(f"buffer_store_dwordx4 {vr(o,4)}, v4, s[28:31], 0 offen offset:{1024*j} {cfg.st_pol}")
    fin(a, 1, "K1_end")
    return dict(name="k1_kernel", body=a.text(), vgpr=224, sgpr=64, grid=256, block=256, lds=UR_BASE+4*UR_STR)

def wave_stats(a, s1, s2, t, mean_rs, rstd):
    steps = ["quad_perm:[1,0,3,2] row_mask:0xf", "quad_perm:[2,3,0,1] row_mask:0xf", "row_half_mirror row_mask:0xf",
             "row_mirror row_mask:0xf", "row_bcast:15 row_mask:0xa", "row_bcast:31 row_mask:0xc"]
    a("s_nop 1")
    for st in steps:
        a(f"v_add_f32_dpp v{s1}, v{s1}, v{s1} {st} bank_mask:0xf")
        a(f"v_add_f32_dpp v{s2}, v{s2}, v{s2} {st} bank_mask:0xf")
        a("s_nop 0")
    a(f"""
    v_readlane_b32 s60, v{s1}, 63
    v_readlane_b32 s61, v{s2}, 63
    s_nop 1
    v_mul_f32 v{t}, s60, v250             ; mean
    v_mul_f32 v{rstd}, s61, v250          ; E[x^2]
    v_fma_f32 v{rstd}, -v{t}, v{t}, v{rstd}
    v_max_f32 v{rstd}, 0, v{rstd}
    v_add_f32 v{rstd}, {f32(1e-5)}, v{rstd}
    v_rsq_f32 v{rstd}, v{rstd}
    s_nop 0
    v_mul_f32 v{mean_rs}, v{t}, v{rstd}
    v_sub_f32 v{mean_rs}, 0, v{mean_rs}
    """.replace("v250", "v126"))

def gen_kb():
    a = Asm()
    head(a, 256, "KB_end")
    MODL = 16384
    a(f"""
    s_load_dwordx2 s[4:5], s[0:1], {KQ}
    s_load_dwordx2 s[10:11], s[0:1], {KWS}
    v_lshrrev_b32 v1, 6, v0
    v_and_b32 v2, 63, v0
    v_readfirstlane_b32 s3, v1
    s_and_b32 s44, s2, 7
    s_lshr_b32 s45, s2, 3
    s_lshl_b32 s44, s44, 5
    s_add_u32 s44, s44, s45
    s_lshl_b32 s45, s44, 3
    s_add_u32 s45, s45, s3           ; row
    s_lshl_b32 s46, s45, 11
    v_lshl_add_u32 v3, v2, 4, s46
    v_lshrrev_b32 v4, 2, v2
    v_and_b32 v5, 7, v4
    v_lshlrev_b32 v5, 1, v5
    v_lshrrev_b32 v4, 3, v4
    v_add_u32 v5, v5, v4             ; G (0..15)
    v_lshrrev_b32 v6, 3, v5
    v_and_b32 v7, 3, v2
    v_xor_b32 v6, v6, v7
    v_lshlrev_b32 v5, 14, v5
    s_lshl_b32 s47, s3, 19           ; (2w*16)*16384
    s_lshl_b32 s48, s44, 6
    s_add_u32 s47, s47, s48
    v_add_u32 v5, s47, v5
    v_lshl_add_u32 v8, v6, 4, v5
    v_xor_b32 v6, 2, v6
    v_lshl_add_u32 v9, v6, 4, v5
    v_lshlrev_b32 v10, 4, v0
    s_mov_b32 s49, 0x40000
    s_mov_b32 s50, 8192
    s_mov_b32 s51, 16384
    s_mov_b32 s52, 24576
    s_mov_b32 s53, 32768
    s_mov_b32 s54, 40960
    s_waitcnt lgkmcnt(0)
    """)
    srd(a, 16, 4, MB4); srd(a, 20, 10, MB4, WS_Y); srd(a, 24, 10, 2*6144*4, WS_MODP)
    srd(a, 28, 10, MB4, WS_X1); srd(a, 32, 10, MB4, WS_Y2)
    a(f"""
    s_lshl_b32 s55, s3, 11
    s_mov_b32 m0, s55
    buffer_load_dwordx4 v[16:19], v10, s[24:27], 0 offen
    buffer_load_dwordx4 v8, s[20:23], 0 offen lds
    s_add_u32 m0, s55, 1024
    buffer_load_dwordx4 v[20:23], v10, s[24:27], s52 offen
    buffer_load_dwordx4 v9, s[20:23], s49 offen lds
    buffer_load_dwordx4 v[24:27], v10, s[24:27], s50 offen
    buffer_load_dwordx4 v[28:31], v10, s[24:27], s53 offen
    buffer_load_dwordx4 v[32:35], v10, s[24:27], s51 offen
    buffer_load_dwordx4 v[36:39], v10, s[24:27], s54 offen
    buffer_load_dwordx4 v[40:43], v3, s[16:19], 0 offen {cfg.nt_in}
    buffer_load_dwordx4 v[44:47], v3, s[16:19], 0 offen offset:1024 {cfg.nt_in}
    v_lshrrev_b32 v11, 7, v0         ; (vec&1)*2 + h
    v_lshlrev_b32 v11, 11, v11
    v_and_b32 v12, 1, v0
    v_lshl_add_u32 v11, v12, 10, v11
    v_bfe_u32 v12, v0, 1, 6
    v_lshl_add_u32 v11, v12, 4, v11
    v_cmp_le_u32 vcc, 256, v0
    v_mov_b32 v126, {f32(1.0/1024)}
    s_nop 0
    v_cndmask_b32_e64 v13, 0, 1.0, vcc
    v_sub_f32 v14, 1.0, v13
    v_lshrrev_b32 v4, 3, v2
    v_lshlrev_b32 v4, 10, v4
    v_and_b32 v5, 7, v2
    v_lshl_add_u32 v4, v5, 6, v4
    v_bfe_u32 v5, v2, 2, 2
    s_lshr_b32 s56, s3, 1
    v_xor_b32 v5, s56, v5
    v_lshl_add_u32 v4, v5, 4, v4
    s_and_b32 s56, s3, 1
    s_lshl_b32 s56, s56, 3
    v_add_u32 v4, s56, v4
    v_lshlrev_b32 v5, 4, v2
    s_waitcnt vmcnt(2)
    """)
    stamp(a, 0)
    for i in range(3):
        for e in range(4):
            a(f"v_add_f32 v{16+8*i+e}, v{16+8*i+e}, v{20+8*i+e}")
        if i != 1:
            for e in range(4):
                a(f"v_add_f32 v{16+8*i+e}, v{16+8*i+e}, v{13 if i == 0 else 14}")
        a(f"ds_write_b128 v11, {vr(16+8*i,4)} offset:{MODL+8192*i}")
    a("s_waitcnt vmcnt(0)")
    Q, Y, T = 48, 64, 80
    for j in range(8):
        a(f"v_lshlrev_b32 v{Q+2*j}, 16, v{40+j}")
        a(f"v_and_b32 v{Q+2*j+1}, 0xffff0000, v{40+j}")
    a("s_waitcnt lgkmcnt(0)")
    a("s_barrier")
    stamp(a, 1)
    for h in range(2):
        for e in range(2):
            a(f"ds_read_b64 {vr(40+4*h+2*e,2)}, v4 offset:{8192*h+512*e}")
    def modread(vec, dst):
        for h in range(2):
            for half in range(2):
                a(f"ds_read_b128 {vr(dst+8*h+4*half,4)}, v5 offset:{MODL+4096*vec+2048*h+1024*half}")
    M0, M1, M2 = 16, 96, 112
    M2 = 128
    modread(1, M0); modread(0, M1); modread(2, M2)
    def stats(X):
        a(f"v_add_f32 v6, v{X}, v{X+1}")
        a(f"v_mul_f32 v7, v{X}, v{X}")
        a(f"v_fmac_f32 v7, v{X+1}, v{X+1}")
        for j in range(2, 16):
            a(f"v_add_f32 v6, v6, v{X+j}")
            a(f"v_fmac_f32 v7, v{X+j}, v{X+j}")
        wave_stats(a, 6, 7, 8, 9, 10)
    stats(Q)
    a("s_waitcnt lgkmcnt(0)")
    for j in range(8):
        a(f"v_lshlrev_b32 v{Y+2*j}, 16, v{40+j}")
        a(f"v_and_b32 v{Y+2*j+1}, 0xffff0000, v{40+j}")
    for j in range(16): a(f"v_fma_f32 v{T+j}, v{Q+j}, v10, v9")
    for j in range(16): a(f"v_fma_f32 v{T+j}, v{T+j}, v{M0+j}, v{M1+j}")
    modread(4, M0); modread(3, M1)
    for j in range(16): a(f"v_mul_f32 v{T+j}, v{T+j}, v{Y+j}")
    for j in range(16): a(f"v_fmac_f32 v{Q+j}, v{T+j}, v{M2+j}")
    for j in range(8): a(f"v_cvt_pk_bf16_f32 v{40+j}, v{Q+2*j}, v{Q+2*j+1}")
    a(f"buffer_store_dwordx4 v[40:43], v3, s[28:31], 0 offen {cfg.st_pol}")
    a(f"buffer_store_dwordx4 v[44:47], v3, s[28:31], 0 offen offset:1024 {cfg.st_pol}")
    stats(Q)
    a("s_waitcnt lgkmcnt(0)")
    for j in range(16): a(f"v_fma_f32 v{T+j}, v{Q+j}, v10, v9")
    for j in range(16): a(f"v_fma_f32 v{T+j}, v{T+j}, v{M0+j}, v{M1+j}")
    stats(T)
    for j in range(16): a(f"v_fma_f32 v{T+j}, v{T+j}, v10, v9")
    for j in range(8): a(f"v_cvt_pk_bf16_f32 v{Y+j}, v{T+2*j}, v{T+2*j+1}")
    stamp(a, 2)
    a(f"buffer_store_dwordx4 {vr(Y,4)}, v3, s[32:35], 0 offen {cfg.st_pol}")
    a(f"buffer_store_dwordx4 {vr(Y+4,4)}, v3, s[32:35], 0 offen offset:1024 {cfg.st_pol}")
    fin(a, 2, "KB_end")
    return dict(name="kb_kernel", body=a.text(), vgpr=144, sgpr=64, grid=256, block=512, lds=MODL+24576)

def gen_nop():
    a = Asm()
    a("s_endpgm")
    return dict(name="nop_kernel", body=a.text(), vgpr=8, sgpr=16, grid=256, block=64, lds=0)

def gen_pf():
    a = Asm()
    head(a, 256, "PF_end")
    a(f"""
    s_load_dwordx2 s[4:5], s[0:1], {KW1}
    s_load_dwordx2 s[6:7], s[0:1], {KW2}
    s_mul_i32 s44, s2, 28672
    v_lshl_add_u32 v1, v0, 4, s44
    s_waitcnt lgkmcnt(0)
    """)
    srd(a, 16, 4, 7340032); srd(a, 20, 6, 7340032)
    a("s_mov_b32 s45, 0")
    for i in range(7):
        a(f"buffer_load_dwordx4 {vr(4+8*i,4)}, v1, s[16:19], s45 offen {cfg.pf_pol}")
        a(f"buffer_load_dwordx4 {vr(8+8*i,4)}, v1, s[20:23], s45 offen {cfg.pf_pol}")
        a("s_add_u32 s45, s45, 4096")
    a("s_waitcnt vmcnt(0)")
    fin(a, 6, "PF_end")
    return dict(name="pf_kernel", body=a.text(), vgpr=64, sgpr=64, grid=256, block=256, lds=0)

def emit(kernels):
    ref = open(f"cdna_kernels/{NAME}.s.ref").read().splitlines()
    hdr = [l for l in ref if l.startswith(";") and "@launch" not in l and "Override" not in l and "grid=ceil" not in l]
    out = list(hdr)
    for k in kernels:
        out.append(f"; @launch kernel={k['name']} grid=({k['grid']},1,1) block=({k['block']},1,1) lds={k['lds']}")
    out.append('.amdgcn_target "amdgcn-amd-amdhsa--gfx950"')
    out.append(".text")
    seen = []
    for k in kernels:
        if k['name'] in seen: continue
        seen.append(k['name'])
        out.append(kernel_text(k['name'], k['body']))
    out.append('.section .rodata,"a"')
    seen = []
    for k in kernels:
        if k['name'] in seen: continue
        seen.append(k['name'])
        out.append(".p2align 6")
        out.append(kernel_desc(k['name'], k['vgpr'], 102 if cfg.stamps else k['sgpr'], k.get('accum')))
    return "\n".join(out) + "\n"

def main():
    import gemm
    for arg in sys.argv[2:]:
        k, v = arg.split("=")
        cur = getattr(cfg, k)
        setattr(cfg, k, (v == "1") if isinstance(cur, bool) else type(cur)(v.replace("+", " ")))
    ks = [gen_k0(), gen_k1(), gen_kb(), gemm.gen_kc(), gemm.gen_kd(), gemm.gen_ke()]
    if "pf" in cfg.extra: ks = [gen_pf()] + ks
    if "nop" in cfg.extra: ks = ks + [gen_nop()]
    if "nop4" in cfg.extra: ks = ks + [gen_nop()]*3
    dst = sys.argv[1] if len(sys.argv) > 1 else f"cdna_kernels/{NAME}.s"
    open(dst, "w").write(emit(ks))
    print("wrote", dst)

if __name__ == "__main__":
    import gen
    gen.main()
```

```python
import sys, math
from asmlib import *

NAME = "adaLN_cond__ssm_conv_h3__mixer_channel_mlp__prompt"
S, D, F = 2048, 1024, 3584
KQ, KK, KV, KSH, KSSM, KSD, KBX, KW1, KB1, KW2, KB2, KC_, KWM, KOUT, KDBG, KWS = [8*i for i in range(16)]
WS_U    = 0x0000000
WS_MODP = 0x0400000
WS_Y    = 0x0800000
WS_X1   = 0x0C00000
WS_Y2   = 0x1000000
WS_H    = 0x1400000
WS_EX   = 0x2400000
MB4 = 0x400000
LOG2E = 1.4426950408889634

import struct
def f32(x):
    return "0x%08x" % struct.unpack("<I", struct.pack("<f", x))[0]

WS_ST   = 0x3800000
class Cfg:
    stamps = False
    extra = ""
    rt = False
    diag = ""
    pf_pol = ""
    nt_in = "nt"
    w_pol = ""
    st_pol = ""
cfg = Cfg()

def head(a, nwg, endlbl):
    a(f"s_cmp_ge_u32 s2, {nwg}")
    a(f"s_cbranch_scc1 {endlbl}_x" if cfg.stamps else f"s_cbranch_scc1 {endlbl}")
    if cfg.stamps:
        a("s_memrealtime s[76:77]")
        a("s_memtime s[78:79]")
        a(f"s_load_dwordx2 s[98:99], s[0:1], {KWS}")
        for i in range(80, 92, 2): a(f"s_mov_b64 s[{i}:{i+1}], 0")
        a("v_readfirstlane_b32 s97, v0")

def stamp(a, i):
    if cfg.stamps:
        a(f"{'s_memrealtime' if cfg.rt else 's_memtime'} s[{80+2*i}:{81+2*i}]")

def fin(a, kidx, lbl=None):
    if lbl: a(f"{lbl}:")
    if cfg.stamps:
        a(f"""
        s_waitcnt vmcnt(0)
        s_memrealtime s[92:93]
        s_memtime s[94:95]
        s_waitcnt lgkmcnt(0)
        s_mov_b64 exec, 1
        s_lshr_b32 s97, s97, 6
        s_add_u32 s96, s2, {kidx*256}
        s_lshl_b32 s96, s96, 4
        s_add_u32 s96, s96, s97
        s_lshl_b32 s96, s96, 6
        s_add_u32 s96, s96, {WS_ST}
        v_mov_b32 v0, s96
        v_mov_b32 v4, s76
        v_mov_b32 v5, s92
        v_mov_b32 v6, s78
        v_mov_b32 v7, s94
        global_store_dwordx4 v0, v[4:7], s[98:99]
        s_nop 1
        v_mov_b32 v4, s80
        v_mov_b32 v5, s82
        v_mov_b32 v6, s84
        v_mov_b32 v7, s86
        global_store_dwordx4 v0, v[4:7], s[98:99] offset:16
        s_nop 1
        v_mov_b32 v4, s88
        v_mov_b32 v5, s90
        global_store_dwordx2 v0, v[4:5], s[98:99] offset:32
        """)
        if lbl: a(f"{lbl}_x:")
    a("s_endpgm")

def gen_k0():
    a = Asm()
    head(a, 256, "K0_end")
    a(f"""
    s_load_dwordx4 s[4:7], s[0:1], {KK}
    s_load_dwordx2 s[8:9], s[0:1], {KSH}
    s_load_dwordx4 s[12:15], s[0:1], {KC_}
    s_load_dwordx2 s[10:11], s[0:1], {KWS}
    v_lshrrev_b32 v1, 6, v0
    v_and_b32 v2, 63, v0
    v_readfirstlane_b32 s3, v1
    s_and_b32 s44, s2, 7
    s_lshr_b32 s45, s2, 3
    s_lshr_b32 s46, s45, 4
    s_lshl_b32 s44, s44, 1
    s_add_u32 s44, s44, s46          ; cg
    s_and_b32 s45, s45, 15           ; rb
    s_lshl_b32 s46, s45, 7
    s_lshl_b32 s47, s3, 4
    s_add_u32 s46, s46, s47
    s_lshl_b32 s47, s46, 11
    s_lshl_b32 s48, s44, 7
    s_add_u32 s47, s47, s48
    v_lshrrev_b32 v7, 3, v2          ; l>>3
    v_and_b32 v15, 7, v2             ; l&7
    v_lshlrev_b32 v3, 11, v7
    v_lshl_add_u32 v3, v15, 4, v3
    v_add_u32 v3, s47, v3            ; vk
    v_add_u32 v4, 0xffffc000, v3
    s_mul_i32 s49, s3, 5120
    s_mov_b32 s50, 16384
    s_waitcnt lgkmcnt(0)
    """)
    srd(a, 16, 4, MB4); srd(a, 20, 6, MB4); srd(a, 24, 8, 8192)
    srd(a, 28, 10, MB4, WS_U); srd(a, 32, 12, 2048); srd(a, 36, 14, 1024*6144*2); srd(a, 40, 10, 2*6144*4, WS_MODP)
    nt = cfg.nt_in
    a(f"""
    s_add_u32 m0, s49, 1024
    s_nop 0
    buffer_load_dwordx4 v3, s[16:19], 0 offen {nt} lds
    s_add_u32 m0, s49, 2048
    s_nop 0
    buffer_load_dwordx4 v3, s[16:19], s50 offen {nt} lds
    s_add_u32 m0, s49, 3072
    s_nop 0
    buffer_load_dwordx4 v3, s[20:23], 0 offen {nt} lds
    s_add_u32 m0, s49, 4096
    s_nop 0
    buffer_load_dwordx4 v3, s[20:23], s50 offen {nt} lds
    s_mov_b32 m0, s49
    s_mov_b32 exec_lo, 0
    buffer_load_dwordx4 v4, s[16:19], 0 offen {nt} lds
    s_mov_b32 exec_lo, -1
    s_lshl_b32 s51, s44, 9
    v_lshl_add_u32 v5, v2, 3, s51
    buffer_load_dwordx2 v[8:9], v5, s[24:27], 0 offen
    s_cmp_ge_u32 s2, 192
    s_cbranch_scc1 K0_nogemv_ld
    s_lshr_b32 s52, s2, 1
    s_and_b32 s53, s2, 1             ; k half
    s_lshl_b32 s54, s53, 9
    s_lshl_b32 s55, s3, 6
    s_add_u32 s54, s54, s55
    v_lshl_add_u32 v60, v7, 3, s54
    v_lshlrev_b32 v61, 1, v60
    s_mov_b32 s55, 12288
    v_mul_lo_u32 v108, v60, s55
    s_lshl_b32 s55, s52, 7
    v_lshl_add_u32 v109, v15, 4, s55
    v_add_u32 v108, v108, v109
    buffer_load_dwordx4 v[60:63], v61, s[32:35], 0 offen
    s_mov_b32 s55, 0
    """)
    for i in range(8):
        a(f"buffer_load_dwordx4 {vr(64+4*i,4)}, v108, s[36:39], s55 offen {nt}")
        if i < 7: a("s_add_u32 s55, s55, 12288")
    a("""
    s_waitcnt vmcnt(9)
    s_branch K0_phaseA
    K0_nogemv_ld:
    s_waitcnt vmcnt(0)
    K0_phaseA:
    """)
    stamp(a, 0)
    a("""
    v_lshrrev_b32 v5, 4, v2          ; g
    v_and_b32 v6, 15, v2             ; i
    v_lshrrev_b32 v10, 2, v6
    v_and_b32 v11, 3, v6
    v_lshlrev_b32 v10, 7, v10
    v_lshl_add_u32 v10, v5, 5, v10
    v_lshl_add_u32 v10, v11, 3, v10
    v_add_u32 v5, s49, v10
    """)
    for p in range(5):
        a(f"ds_read_b64_tr_b16 {vr(16+2*p,2)}, v5 offset:{512+512*p}")
    for p in range(4):
        a(f"ds_read_b64_tr_b16 {vr(26+2*p,2)}, v5 offset:{3072+512*p}")
    a("""
    v_alignbit_b32 v10, v8, v8, 16   ; A=(w1,w0)
    v_alignbit_b32 v11, v9, v9, 16   ; B=(w3,w2)
    v_and_b32 v12, 0xffff, v8        ; C=(w0,0)
    s_mov_b32 s56, 0xffff
    v_bfi_b32 v13, s56, v9, v8       ; D=(w2,w1)
    v_and_b32 v14, 0xffff0000, v9    ; E=(0,w3)
    v_lshrrev_b32 v6, 2, v2
    v_lshlrev_b32 v6, 14, v6
    v_and_b32 v50, 3, v2
    v_lshl_add_u32 v6, v50, 4, v6
    s_lshl_b32 s56, s44, 18
    s_lshl_b32 s57, s46, 3           ; (row0/8)*64
    s_add_u32 s56, s56, s57
    v_add_u32 v6, s56, v6
    s_waitcnt lgkmcnt(0)
    """)
    P = lambda q: 16 + q + 2
    ks = lambda t: 34 + t
    for q in range(8):
        a(f"v_dot2_f32_bf16 v{ks(2*q)}, v{P(q)}, v12, 0")
        a(f"v_dot2_f32_bf16 v{ks(2*q+1)}, v{P(q)}, v10, 0")
    for q in range(8):
        a(f"v_dot2_f32_bf16 v{ks(2*q)}, v{P(q-1)}, v13, v{ks(2*q)}")
        a(f"v_dot2_f32_bf16 v{ks(2*q+1)}, v{P(q-1)}, v11, v{ks(2*q+1)}")
    for q in range(8):
        a(f"v_dot2_f32_bf16 v{ks(2*q)}, v{P(q-2)}, v14, v{ks(2*q)}")
    for q in range(8):
        a(f"v_lshlrev_b32 v{110+2*q}, 16, v{26+q}")
        a(f"v_and_b32 v{111+2*q}, 0xffff0000, v{26+q}")
    for t in range(16):
        a(f"v_mul_f32 v{ks(t)}, v{ks(t)}, v{110+t}")
    for h in range(2):
        for j in range(4):
            a(f"v_cvt_pk_bf16_f32 v{52+4*h+j}, v{ks(8*h+7-2*j)}, v{ks(8*h+6-2*j)}")
    a(f"buffer_store_dwordx4 v[52:55], v6, s[28:31], 0 offen {cfg.st_pol}")
    a(f"buffer_store_dwordx4 v[56:59], v6, s[28:31], 0 offen offset:64 {cfg.st_pol}")
    stamp(a, 1)
    a("""
    s_cmp_ge_u32 s2, 192
    s_cbranch_scc1 K0_end
    s_waitcnt vmcnt(10)
    """)
    for q in range(4):
        a(f"v_lshlrev_b32 v{110+2*q}, 16, v{60+q}")
        a(f"v_and_b32 v{111+2*q}, 0xffff0000, v{60+q}")
    for i in range(8): a(f"v_mul_f32 v{118+i}, {f32(-LOG2E)}, v{110+i}")
    for i in range(8): a(f"v_exp_f32 v{118+i}, v{118+i}")
    a("s_nop 0")
    for i in range(8): a(f"v_add_f32 v{118+i}, 1.0, v{118+i}")
    for i in range(8): a(f"v_rcp_f32 v{118+i}, v{118+i}")
    a("s_nop 0")
    for i in range(8): a(f"v_mul_f32 v{110+i}, v{110+i}, v{118+i}")
    for q in range(4): a(f"v_cvt_pk_bf16_f32 v{96+q}, v{110+2*q}, v{111+2*q}")
    a("s_mov_b32 s56, 0x05040100")
    a("s_mov_b32 s57, 0x07060302")
    for q in range(4):
        a(f"s_waitcnt vmcnt({2 + 6 - 2*q})")
        for j in range(4):
            w0 = 64 + 8*q + j; w1 = w0 + 4
            a(f"v_perm_b32 v{110+2*j}, v{w1}, v{w0}, s56")
            a(f"v_perm_b32 v{111+2*j}, v{w1}, v{w0}, s57")
        for j in range(8):
            src2 = "0" if q == 0 else f"v{100+j}"
            a(f"v_dot2_f32_bf16 v{100+j}, v{110+j}, v{96+q}, {src2}")
    stamp(a, 2)
    a("s_nop 3")
    for j in range(4): a(f"v_permlane32_swap_b32 v{100+j}, v{104+j}")
    a("s_nop 1")
    for j in range(4): a(f"v_add_f32 v{100+j}, v{100+j}, v{104+j}")
    a("s_nop 1")
    for j in range(2): a(f"v_permlane16_swap_b32 v{100+j}, v{102+j}")
    a("s_nop 1")
    for j in range(2): a(f"v_add_f32 v{100+j}, v{100+j}, v{102+j}")
    a("s_nop 1")
    for j in range(2): a(f"v_add_f32_dpp v{100+j}, v{100+j}, v{100+j} row_ror:8 row_mask:0xf bank_mask:0xf")
    a("""
    v_lshrrev_b32 v110, 4, v2
    v_lshlrev_b32 v110, 3, v110
    v_lshl_add_u32 v110, v15, 5, v110
    s_lshl_b32 s56, s3, 8
    s_add_u32 s56, s56, 40960
    v_add_u32 v110, s56, v110
    ds_write_b64 v110, v[100:101]
    s_waitcnt lgkmcnt(0)
    s_barrier
    s_cmp_lg_u32 s3, 0
    s_cbranch_scc1 K0_end
    v_lshlrev_b32 v110, 2, v2
    """)
    for w in range(8): a(f"ds_read_b32 v{100+w}, v110 offset:{40960+256*w}")
    a("""
    s_mul_i32 s56, s53, 24576
    s_lshl_b32 s57, s52, 8
    s_add_u32 s56, s56, s57
    s_waitcnt lgkmcnt(0)
    v_add_f32 v100, v100, v101
    v_add_f32 v102, v102, v103
    v_add_f32 v104, v104, v105
    v_add_f32 v106, v106, v107
    v_add_f32 v100, v100, v102
    v_add_f32 v104, v104, v106
    v_add_f32 v100, v100, v104
    buffer_store_dword v100, v110, s[40:43], s56 offen
    """)
    fin(a, 0, "K0_end")
    return dict(name="k0_kernel", body=a.text(), vgpr=128, sgpr=64, grid=256, block=512, lds=43008)

CP_STR, CH_STR = 4160, 16640
UR_BASE, UR_STR = 4*16640, 4640
def gen_k1():
    a = Asm()
    head(a, 256, "K1_end")
    a(f"""
    s_load_dwordx4 s[4:7], s[0:1], {KSSM}
    s_load_dwordx2 s[10:11], s[0:1], {KWS}
    v_lshrrev_b32 v1, 6, v0
    v_and_b32 v2, 63, v0
    v_readfirstlane_b32 s3, v1
    s_and_b32 s44, s2, 7
    s_lshr_b32 s45, s2, 3
    s_lshl_b32 s44, s44, 5
    s_add_u32 s44, s44, s45          ; cq
    s_lshl_b32 s45, s44, 2
    s_add_u32 s45, s45, s3           ; channel d
    s_lshl_b32 s46, s45, 12
    v_lshl_add_u32 v3, v2, 4, s46
    s_lshl_b32 s47, s44, 14          ; cq*16384
    s_lshl_b32 s48, s3, 12
    s_add_u32 s48, s48, s47
    v_lshl_add_u32 v4, v2, 4, s48    ; U offset
    s_mul_i32 s49, s3, {CH_STR}      ; chbase
    s_waitcnt lgkmcnt(0)
    """)
    srd(a, 16, 4, MB4); srd(a, 20, 6, 2048); srd(a, 24, 10, MB4, WS_U); srd(a, 28, 10, MB4, WS_Y)
    nt = cfg.nt_in
    for j in range(4):
        a(f"buffer_load_dwordx4 {vr(176+4*j,4)}, v4, s[24:27], 0 offen offset:{1024*j}")
    for j in range(4):
        for sft in range(3):
            a(f"buffer_load_dwordx4 {vr(32+12*j+4*sft,4)}, v3, s[16:19], 0 offen offset:{1024*j+4*sft} {nt}")
    a(f"""
    s_lshl_b32 s50, s45, 1
    v_mov_b32 v5, s50
    buffer_load_ushort v6, v5, s[20:23], 0 offen
    v_and_b32 v7, 3, v2
    v_mul_u32_u24 v7, {UR_STR}, v7
    v_lshrrev_b32 v8, 2, v2
    v_lshlrev_b32 v8, 4, v8
    v_sub_u32 v7, v7, v8
    s_lshl_b32 s50, s3, 10
    s_sub_u32 s50, {UR_BASE + 255*16 - 3*256}, s50
    v_add_u32 v7, s50, v7
    v_mov_b32 v12, 0
    v_mov_b32 v13, 0
    v_mov_b32 v14, 0
    v_mov_b32 v15, 0
    s_mul_i32 s51, s3, {UR_STR}
    s_add_u32 s51, s51, {UR_BASE}    ; URc
    v_lshl_add_u32 v8, v2, 4, s51
    s_mov_b64 exec, 0x3fffffff
    ds_write_b128 v8, v[12:15] offset:4096
    s_mov_b64 exec, -1
    v_lshl_add_u32 v9, v2, 4, s49
    v_and_b32 v10, 15, v2            ; i' / a'
    v_lshrrev_b32 v11, 4, v2         ; g
    v_add_u32 v16, 1, v10            ; o+16
    v_and_b32 v17, 3, v16            ; c'
    v_sub_u32 v16, v16, v17          ; o-c'+16
    v_lshlrev_b32 v16, 1, v16        ; 2(o-c')+32
    v_mul_u32_u24 v17, {CP_STR}, v17
    v_add_u32 v16, v16, v17
    v_lshl_add_u32 v16, v11, 4, v16
    v_add_u32 v16, s49, v16          ; vA
    v_lshlrev_b32 v17, 5, v10
    v_sub_u32 v17, 480, v17
    v_lshl_add_u32 v17, v11, 4, v17
    v_add_u32 v17, s51, v17          ; vB
    ; e = 15 - i' - 8g
    v_lshlrev_b32 v18, 3, v11
    v_add_u32 v18, v18, v10
    v_sub_u32 v18, 15, v18
    s_waitcnt vmcnt(13)
    """)
    stamp(a, 0)
    for j in range(4):
        a(f"ds_write_b128 v7, {vr(176+4*j,4)} offset:{256*(3-j)}")
    for j in range(4):
        A, B, C = 32+12*j, 36+12*j, 40+12*j
        a(f"s_waitcnt vmcnt({1+3*(3-j)})")
        o1, o3 = 80+8*j, 84+8*j
        for i in range(4): a(f"v_alignbit_b32 v{o1+i}, v{B+i}, v{A+i}, 16")
        for i in range(4): a(f"v_alignbit_b32 v{o3+i}, v{C+i}, v{B+i}, 16")
        a(f"ds_write_b128 v9, {vr(A,4)} offset:{32+1024*j}")
        a(f"ds_write_b128 v9, {vr(B,4)} offset:{2*CP_STR+32+1024*j}")
        a(f"ds_write_b128 v9, {vr(o1,4)} offset:{CP_STR+32+1024*j}")
        a(f"ds_write_b128 v9, {vr(o3,4)} offset:{3*CP_STR+32+1024*j}")
    a(f"""
    v_readfirstlane_b32 s52, v32
    v_readfirstlane_b32 s53, v33
    s_nop 1
    s_lshl_b32 s54, s52, 16
    s_lshr_b32 s55, s52, 16
    s_lshl_b32 s56, s53, 16
    s_or_b32 s55, s55, s56
    v_writelane_b32 v15, s54, 3
    v_writelane_b32 v15, s52, 5
    v_writelane_b32 v14, s54, 7
    v_writelane_b32 v15, s55, 7
    v_lshrrev_b32 v19, 1, v2
    v_mul_u32_u24 v19, {CP_STR}, v19
    v_and_b32 v20, 1, v2
    v_lshl_add_u32 v19, v20, 4, v19
    v_add_u32 v19, s49, v19
    s_mov_b64 exec, 0xff
    ds_write_b128 v19, v[12:15]
    s_mov_b64 exec, -1
    s_waitcnt vmcnt(0)
    v_lshlrev_b32 v21, 16, v6
    """)
    for j in range(4):
        a(f"v_cmp_eq_u32 vcc, {2*j}, v18")
        a("s_nop 1")
        a(f"v_cndmask_b32 v{24+j}, 0, v6, vcc")
        a(f"v_cmp_eq_u32 vcc, {2*j+1}, v18")
        a("s_nop 1")
        a(f"v_cndmask_b32 v{24+j}, v{24+j}, v21, vcc")
    a("s_waitcnt lgkmcnt(0)")
    a("s_barrier")
    stamp(a, 1)
    ACC = 192
    FA = lambda s, w: 32 + 64*s + 4*w
    FB = lambda s, v: 64 + 64*s + 4*v
    def reads(z0):
        s = z0 & 1
        R = []
        for i in range(8):
            R.append(f"ds_read_b128 {vr(FB(s,i),4)}, v17 offset:{512*(7-i)+64*z0}")
            R.append(f"ds_read_b64 {vr(FA(s,i),2)}, v16 offset:{512*i+64*z0}")
            R.append(f"ds_read_b64 {vr(FA(s,i)+2,2)}, v16 offset:{512*i+64*z0+8}")
        return R
    for r in reads(0): a(r)
    a("s_waitcnt lgkmcnt(0)")
    for n in range(8):
        a(f"v_mfma_f32_16x16x32_bf16 {vr(ACC+4*n,4)}, v[24:27], {vr(FB(0,n),4)}, 0")
    for z0 in range(8):
        s = z0 & 1
        R = reads(z0+1) if z0 < 7 else []
        M = [(w, v) for w in range(8) for v in range(8-w)]
        for i, (w, v) in enumerate(M):
            a(f"v_mfma_f32_16x16x32_bf16 {vr(ACC+4*(w+v),4)}, {vr(FA(s,w),4)}, {vr(FB(s,v),4)}, {vr(ACC+4*(w+v),4)}")
            if i < len(R): a(R[i])
        if z0 < 7: a("s_waitcnt lgkmcnt(0)")
    stamp(a, 2)
    a(f"""
    v_lshlrev_b32 v20, 5, v10
    v_lshl_add_u32 v20, v11, 3, v20
    v_add_u32 v20, s49, v20
    s_lshl_b32 s50, s3, 10
    v_lshl_add_u32 v21, v2, 2, s50
    s_mov_b32 s56, 0x05040100
    s_mov_b32 s57, 0x07060302
    s_nop 4
    """)
    for n in range(8):
        a(f"v_cvt_pk_bf16_f32 v{32+2*n}, v{ACC+4*n}, v{ACC+4*n+1}")
        a(f"v_cvt_pk_bf16_f32 v{33+2*n}, v{ACC+4*n+2}, v{ACC+4*n+3}")
        a(f"ds_write_b64 v20, {vr(32+2*n,2)} offset:{512*n}")
    a("s_waitcnt lgkmcnt(0)")
    a("s_barrier")
    for j in range(4):
        a(f"ds_read2st64_b32 {vr(64+4*j,2)}, v21 offset0:{j} offset1:{65+j}")
        a(f"ds_read2st64_b32 {vr(66+4*j,2)}, v21 offset0:{130+j} offset1:{195+j}")
    for j in range(4):
        a(f"s_waitcnt lgkmcnt({6-2*j})")
        b = 64+4*j; o = 96+4*j
        a(f"v_perm_b32 v{o}, v{b+1}, v{b}, s56")
        a(f"v_perm_b32 v{o+1}, v{b+3}, v{b+2}, s56")
        a(f"v_perm_b32 v{o+2}, v{b+1}, v{b}, s57")
        a(f"v_perm_b32 v{o+3}, v{b+3}, v{b+2}, s57")
        a(f"buffer_store_dwordx4 {vr(o,4)}, v4, s[28:31], 0 offen offset:{1024*j} {cfg.st_pol}")
    fin(a, 1, "K1_end")
    return dict(name="k1_kernel", body=a.text(), vgpr=224, sgpr=64, grid=256, block=256, lds=UR_BASE+4*UR_STR)

def wave_stats(a, s1, s2, t, mean_rs, rstd):
    steps = ["quad_perm:[1,0,3,2] row_mask:0xf", "quad_perm:[2,3,0,1] row_mask:0xf", "row_half_mirror row_mask:0xf",
             "row_mirror row_mask:0xf", "row_bcast:15 row_mask:0xa", "row_bcast:31 row_mask:0xc"]
    a("s_nop 1")
    for st in steps:
        a(f"v_add_f32_dpp v{s1}, v{s1}, v{s1} {st} bank_mask:0xf")
        a(f"v_add_f32_dpp v{s2}, v{s2}, v{s2} {st} bank_mask:0xf")
        a("s_nop 0")
    a(f"""
    v_readlane_b32 s60, v{s1}, 63
    v_readlane_b32 s61, v{s2}, 63
    s_nop 1
    v_mul_f32 v{t}, s60, v250             ; mean
    v_mul_f32 v{rstd}, s61, v250          ; E[x^2]
    v_fma_f32 v{rstd}, -v{t}, v{t}, v{rstd}
    v_max_f32 v{rstd}, 0, v{rstd}
    v_add_f32 v{rstd}, {f32(1e-5)}, v{rstd}
    v_rsq_f32 v{rstd}, v{rstd}
    s_nop 0
    v_mul_f32 v{mean_rs}, v{t}, v{rstd}
    v_sub_f32 v{mean_rs}, 0, v{mean_rs}
    """.replace("v250", "v126"))

def gen_kb():
    a = Asm()
    head(a, 256, "KB_end")
    MODL = 16384
    a(f"""
    s_load_dwordx2 s[4:5], s[0:1], {KQ}
    s_load_dwordx2 s[10:11], s[0:1], {KWS}
    v_lshrrev_b32 v1, 6, v0
    v_and_b32 v2, 63, v0
    v_readfirstlane_b32 s3, v1
    s_and_b32 s44, s2, 7
    s_lshr_b32 s45, s2, 3
    s_lshl_b32 s44, s44, 5
    s_add_u32 s44, s44, s45
    s_lshl_b32 s45, s44, 3
    s_add_u32 s45, s45, s3           ; row
    s_lshl_b32 s46, s45, 11
    v_lshl_add_u32 v3, v2, 4, s46
    v_lshrrev_b32 v4, 2, v2
    v_and_b32 v5, 7, v4
    v_lshlrev_b32 v5, 1, v5
    v_lshrrev_b32 v4, 3, v4
    v_add_u32 v5, v5, v4             ; G (0..15)
    v_lshrrev_b32 v6, 3, v5
    v_and_b32 v7, 3, v2
    v_xor_b32 v6, v6, v7
    v_lshlrev_b32 v5, 14, v5
    s_lshl_b32 s47, s3, 19           ; (2w*16)*16384
    s_lshl_b32 s48, s44, 6
    s_add_u32 s47, s47, s48
    v_add_u32 v5, s47, v5
    v_lshl_add_u32 v8, v6, 4, v5
    v_xor_b32 v6, 2, v6
    v_lshl_add_u32 v9, v6, 4, v5
    v_lshlrev_b32 v10, 4, v0
    s_mov_b32 s49, 0x40000
    s_mov_b32 s50, 8192
    s_mov_b32 s51, 16384
    s_mov_b32 s52, 24576
    s_mov_b32 s53, 32768
    s_mov_b32 s54, 40960
    s_waitcnt lgkmcnt(0)
    """)
    srd(a, 16, 4, MB4); srd(a, 20, 10, MB4, WS_Y); srd(a, 24, 10, 2*6144*4, WS_MODP)
    srd(a, 28, 10, MB4, WS_X1); srd(a, 32, 10, MB4, WS_Y2)
    a(f"""
    s_lshl_b32 s55, s3, 11
    s_mov_b32 m0, s55
    buffer_load_dwordx4 v[16:19], v10, s[24:27], 0 offen
    buffer_load_dwordx4 v8, s[20:23], 0 offen lds
    s_add_u32 m0, s55, 1024
    buffer_load_dwordx4 v[20:23], v10, s[24:27], s52 offen
    buffer_load_dwordx4 v9, s[20:23], s49 offen lds
    buffer_load_dwordx4 v[24:27], v10, s[24:27], s50 offen
    buffer_load_dwordx4 v[28:31], v10, s[24:27], s53 offen
    buffer_load_dwordx4 v[32:35], v10, s[24:27], s51 offen
    buffer_load_dwordx4 v[36:39], v10, s[24:27], s54 offen
    buffer_load_dwordx4 v[40:43], v3, s[16:19], 0 offen {cfg.nt_in}
    buffer_load_dwordx4 v[44:47], v3, s[16:19], 0 offen offset:1024 {cfg.nt_in}
    v_lshrrev_b32 v11, 7, v0         ; (vec&1)*2 + h
    v_lshlrev_b32 v11, 11, v11
    v_and_b32 v12, 1, v0
    v_lshl_add_u32 v11, v12, 10, v11
    v_bfe_u32 v12, v0, 1, 6
    v_lshl_add_u32 v11, v12, 4, v11
    v_cmp_le_u32 vcc, 256, v0
    v_mov_b32 v126, {f32(1.0/1024)}
    s_nop 0
    v_cndmask_b32_e64 v13, 0, 1.0, vcc
    v_sub_f32 v14, 1.0, v13
    v_lshrrev_b32 v4, 3, v2
    v_lshlrev_b32 v4, 10, v4
    v_and_b32 v5, 7, v2
    v_lshl_add_u32 v4, v5, 6, v4
    v_bfe_u32 v5, v2, 2, 2
    s_lshr_b32 s56, s3, 1
    v_xor_b32 v5, s56, v5
    v_lshl_add_u32 v4, v5, 4, v4
    s_and_b32 s56, s3, 1
    s_lshl_b32 s56, s56, 3
    v_add_u32 v4, s56, v4
    v_lshlrev_b32 v5, 4, v2
    s_waitcnt vmcnt(2)
    """)
    stamp(a, 0)
    for i in range(3):
        for e in range(4):
            a(f"v_add_f32 v{16+8*i+e}, v{16+8*i+e}, v{20+8*i+e}")
        if i != 1:
            for e in range(4):
                a(f"v_add_f32 v{16+8*i+e}, v{16+8*i+e}, v{13 if i == 0 else 14}")
        a(f"ds_write_b128 v11, {vr(16+8*i,4)} offset:{MODL+8192*i}")
    a("s_waitcnt vmcnt(0)")
    Q, Y, T = 48, 64, 80
    for j in range(8):
        a(f"v_lshlrev_b32 v{Q+2*j}, 16, v{40+j}")
        a(f"v_and_b32 v{Q+2*j+1}, 0xffff0000, v{40+j}")
    a("s_waitcnt lgkmcnt(0)")
    a("s_barrier")
    stamp(a, 1)
    for h in range(2):
        for e in range(2):
            a(f"ds_read_b64 {vr(40+4*h+2*e,2)}, v4 offset:{8192*h+512*e}")
    def modread(vec, dst):
        for h in range(2):
            for half in range(2):
                a(f"ds_read_b128 {vr(dst+8*h+4*half,4)}, v5 offset:{MODL+4096*vec+2048*h+1024*half}")
    M0, M1, M2 = 16, 96, 112
    M2 = 128
    modread(1, M0); modread(0, M1); modread(2, M2)
    def stats(X):
        a(f"v_add_f32 v6, v{X}, v{X+1}")
        a(f"v_mul_f32 v7, v{X}, v{X}")
        a(f"v_fmac_f32 v7, v{X+1}, v{X+1}")
        for j in range(2, 16):
            a(f"v_add_f32 v6, v6, v{X+j}")
            a(f"v_fmac_f32 v7, v{X+j}, v{X+j}")
        wave_stats(a, 6, 7, 8, 9, 10)
    stats(Q)
    a("s_waitcnt lgkmcnt(0)")
    for j in range(8):
        a(f"v_lshlrev_b32 v{Y+2*j}, 16, v{40+j}")
        a(f"v_and_b32 v{Y+2*j+1}, 0xffff0000, v{40+j}")
    for j in range(16): a(f"v_fma_f32 v{T+j}, v{Q+j}, v10, v9")
    for j in range(16): a(f"v_fma_f32 v{T+j}, v{T+j}, v{M0+j}, v{M1+j}")
    modread(4, M0); modread(3, M1)
    for j in range(16): a(f"v_mul_f32 v{T+j}, v{T+j}, v{Y+j}")
    for j in range(16): a(f"v_fmac_f32 v{Q+j}, v{T+j}, v{M2+j}")
    for j in range(8): a(f"v_cvt_pk_bf16_f32 v{40+j}, v{Q+2*j}, v{Q+2*j+1}")
    a(f"buffer_store_dwordx4 v[40:43], v3, s[28:31], 0 offen {cfg.st_pol}")
    a(f"buffer_store_dwordx4 v[44:47], v3, s[28:31], 0 offen offset:1024 {cfg.st_pol}")
    stats(Q)
    a("s_waitcnt lgkmcnt(0)")
    for j in range(16): a(f"v_fma_f32 v{T+j}, v{Q+j}, v10, v9")
    for j in range(16): a(f"v_fma_f32 v{T+j}, v{T+j}, v{M0+j}, v{M1+j}")
    stats(T)
    for j in range(16): a(f"v_fma_f32 v{T+j}, v{T+j}, v10, v9")
    for j in range(8): a(f"v_cvt_pk_bf16_f32 v{Y+j}, v{T+2*j}, v{T+2*j+1}")
    stamp(a, 2)
    a(f"buffer_store_dwordx4 {vr(Y,4)}, v3, s[32:35], 0 offen {cfg.st_pol}")
    a(f"buffer_store_dwordx4 {vr(Y+4,4)}, v3, s[32:35], 0 offen offset:1024 {cfg.st_pol}")
    fin(a, 2, "KB_end")
    return dict(name="kb_kernel", body=a.text(), vgpr=144, sgpr=64, grid=256, block=512, lds=MODL+24576)

def gen_diag():
    ka, wa, fa, kb, wb, fb = [int(x) for x in cfg.diag.split(",")]
    off = lambda k, w, f: WS_ST + ((k*256)*16 + w)*64 + 4*f
    first = 6 if "pf" in cfg.extra else 0
    a = Asm()
    a(f"""
    s_cmp_lg_u32 s2, 0
    s_cbranch_scc1 DG_end
    s_load_dwordx2 s[4:5], s[0:1], {KWS}
    s_waitcnt lgkmcnt(0)
    s_add_u32 s6, s4, {off(first,0,0)}
    s_addc_u32 s7, s5, 0
    s_add_u32 s8, s4, {off(ka,wa,fa)}
    s_addc_u32 s9, s5, 0
    s_add_u32 s10, s4, {off(kb,wb,fb)}
    s_addc_u32 s11, s5, 0
    s_load_dword s12, s[6:7], 0
    s_load_dword s13, s[8:9], 0
    s_load_dword s14, s[10:11], 0
    s_waitcnt lgkmcnt(0)
    s_sub_u32 s14, s14, s13
    s_min_u32 s14, s14, 60000
    {"s_lshl_b32 s14, s14, 2" if (fa < 2 or cfg.rt) else "s_lshr_b32 s14, s14, 2"}
    s_add_u32 s14, s14, 20000
    s_mov_b32 s15, 0
    DG_loop:
    s_memrealtime s[16:17]
    s_waitcnt lgkmcnt(0)
    s_sub_u32 s16, s16, s12
    s_add_u32 s15, s15, 1
    s_cmp_gt_u32 s15, 200000
    s_cbranch_scc1 DG_end
    s_cmp_lt_u32 s16, s14
    s_cbranch_scc1 DG_loop
    DG_end:
    s_endpgm
    """)
    return dict(name="dg_kernel", body=a.text(), vgpr=8, sgpr=32, grid=8, block=64, lds=0)

def gen_nop():
    a = Asm()
    a("s_endpgm")
    return dict(name="nop_kernel", body=a.text(), vgpr=8, sgpr=16, grid=256, block=64, lds=0)

def gen_pf():
    a = Asm()
    head(a, 256, "PF_end")
    a(f"""
    s_load_dwordx2 s[4:5], s[0:1], {KW1}
    s_load_dwordx2 s[6:7], s[0:1], {KW2}
    s_mul_i32 s44, s2, 28672
    v_lshl_add_u32 v1, v0, 4, s44
    s_waitcnt lgkmcnt(0)
    """)
    srd(a, 16, 4, 7340032); srd(a, 20, 6, 7340032)
    a("s_mov_b32 s45, 0")
    for i in range(7):
        a(f"buffer_load_dwordx4 {vr(4+8*i,4)}, v1, s[16:19], s45 offen {cfg.pf_pol}")
        a(f"buffer_load_dwordx4 {vr(8+8*i,4)}, v1, s[20:23], s45 offen {cfg.pf_pol}")
        a("s_add_u32 s45, s45, 4096")
    a("s_waitcnt vmcnt(0)")
    fin(a, 6, "PF_end")
    return dict(name="pf_kernel", body=a.text(), vgpr=64, sgpr=64, grid=256, block=256, lds=0)

def emit(kernels):
    ref = open(f"cdna_kernels/{NAME}.s.ref").read().splitlines()
    hdr = [l for l in ref if l.startswith(";") and "@launch" not in l and "Override" not in l and "grid=ceil" not in l]
    out = list(hdr)
    for k in kernels:
        out.append(f"; @launch kernel={k['name']} grid=({k['grid']},1,1) block=({k['block']},1,1) lds={k['lds']}")
    out.append('.amdgcn_target "amdgcn-amd-amdhsa--gfx950"')
    out.append(".text")
    seen = []
    for k in kernels:
        if k['name'] in seen: continue
        seen.append(k['name'])
        out.append(kernel_text(k['name'], k['body']))
    out.append('.section .rodata,"a"')
    seen = []
    for k in kernels:
        if k['name'] in seen: continue
        seen.append(k['name'])
        out.append(".p2align 6")
        out.append(kernel_desc(k['name'], k['vgpr'], 102 if cfg.stamps else k['sgpr'], k.get('accum')))
    return "\n".join(out) + "\n"

def main():
    import gemm
    for arg in sys.argv[2:]:
        k, v = arg.split("=")
        cur = getattr(cfg, k)
        setattr(cfg, k, (v == "1") if isinstance(cur, bool) else type(cur)(v.replace("+", " ")))
    ks = [gen_k0(), gen_k1(), gen_kb(), gemm.gen_kc(), gemm.gen_kd(), gemm.gen_ke()]
    if "pf" in cfg.extra: ks = [gen_pf()] + ks
    if "nop" in cfg.extra: ks = ks + [gen_nop()]
    if "nop4" in cfg.extra: ks = ks + [gen_nop()]*3
    if cfg.diag: ks = ks + [gen_diag()]
    dst = sys.argv[1] if len(sys.argv) > 1 else f"cdna_kernels/{NAME}.s"
    open(dst, "w").write(emit(ks))
    print("wrote", dst)

if __name__ == "__main__":
    import gen
    gen.main()
```

```python
from asmlib import *
from gen import *

WS_FA = 0x3100000
SPIN_MAX = 1 << 16
STG = UR_BASE + 4*UR_STR
RED = STG + 8*5120

def gen_ka(kidx=0):
    a = Asm()
    head(a, 256, "KA_end")
    nt = cfg.nt_in
    a(f"""
    s_load_dwordx4 s[4:7], s[0:1], {KK}
    s_load_dwordx2 s[10:11], s[0:1], {KWS}
    s_load_dwordx4 s[12:15], s[0:1], {KSH}
    v_lshrrev_b32 v1, 6, v0
    v_and_b32 v2, 63, v0
    v_readfirstlane_b32 s3, v1
    s_and_b32 s44, s2, 7
    s_lshr_b32 s45, s2, 3
    s_lshl_b32 s43, s44, 5
    s_add_u32 s43, s43, s45          ; cq
    s_lshr_b32 s44, s43, 4           ; cg
    s_and_b32 s45, s45, 15
    s_lshl_b32 s46, s45, 7
    s_lshl_b32 s47, s3, 4
    s_add_u32 s46, s46, s47
    s_lshl_b32 s47, s46, 11
    s_lshl_b32 s48, s44, 7
    s_add_u32 s47, s47, s48
    v_lshrrev_b32 v7, 3, v2          ; l>>3
    v_and_b32 v15, 7, v2             ; l&7
    v_lshlrev_b32 v3, 11, v7
    v_lshl_add_u32 v3, v15, 4, v3
    v_add_u32 v3, s47, v3            ; vk
    v_add_u32 v4, 0xffffc000, v3
    s_mul_i32 s49, s3, 5120
    s_add_u32 s49, s49, {STG}
    s_mov_b32 s50, 16384
    s_mov_b32 s18, {MB4}
    s_mov_b32 s19, 0x20000
    s_mov_b32 s22, {MB4}
    s_mov_b32 s23, 0x20000
    s_mov_b32 s26, 8192
    s_mov_b32 s27, 0x20000
    s_lshl_b32 s51, s44, 9
    v_lshl_add_u32 v5, v2, 3, s51
    s_add_u32 m0, s49, 1024
    s_waitcnt lgkmcnt(0)
    s_mov_b32 s16, s4
    s_mov_b32 s17, s5
    s_mov_b32 s20, s6
    s_mov_b32 s21, s7
    buffer_load_dwordx4 v3, s[16:19], 0 offen {nt} lds
    s_add_u32 m0, s49, 3072
    s_mov_b32 s24, s12
    buffer_load_dwordx4 v3, s[20:23], 0 offen {nt} lds
    s_add_u32 m0, s49, 2048
    s_mov_b32 s25, s13
    buffer_load_dwordx4 v3, s[16:19], s50 offen {nt} lds
    s_add_u32 m0, s49, 4096
    buffer_load_dwordx2 v[8:9], v5, s[24:27], 0 offen
    buffer_load_dwordx4 v3, s[20:23], s50 offen {nt} lds
    s_mov_b32 m0, s49
    s_mov_b32 exec_lo, 0
    buffer_load_dwordx4 v4, s[16:19], 0 offen {nt} lds
    s_mov_b32 exec_lo, -1
    s_lshl_b32 s51, s44, 9
    s_add_u32 s52, s10, s51
    s_addc_u32 s53, s11, 0
    s_add_u32 s52, s52, {WS_FA}
    s_addc_u32 s53, s53, 0
    s_load_dword s42, s[52:53], 256
    s_load_dwordx2 s[4:5], s[0:1], {KSD}
    s_load_dwordx4 s[56:59], s[0:1], {KC_}
    s_load_dwordx2 s[6:7], s[0:1], {KQ}
    s_load_dwordx2 s[8:9], s[0:1], {KW1}
    """)
    srd(a, 28, 10, MB4, WS_U)
    a(f"""
    v_lshrrev_b32 v6, 2, v2
    v_lshlrev_b32 v6, 14, v6
    v_and_b32 v50, 3, v2
    v_lshl_add_u32 v6, v50, 4, v6
    s_lshl_b32 s55, s44, 18
    s_lshl_b32 s63, s46, 3
    s_add_u32 s55, s55, s63
    v_add_u32 v6, s55, v6
    v_lshlrev_b32 v51, 14, v7
    v_lshl_add_u32 v51, v15, 4, v51
    v_add_u32 v51, s55, v51
    s_mov_b32 s40, 0x20000
    s_getreg_b32 s41, hwreg(HW_REG_XCC_ID, 0, 4)
    s_barrier
    """)
    NT = 2 if cfg.ul2 else 0
    if cfg.ul2:
        a("buffer_load_dwordx4 v[164:167], v51, s[28:31], 0 offen sc1")
        a("buffer_load_dwordx4 v[168:171], v51, s[28:31], s40 offen sc1")
    a(f"""
    s_cmp_ge_u32 s3, 4
    s_cbranch_scc1 KA_hpre
    """)
    srd(a, 32, 14, MB4)
    a(f"""
    s_lshl_b32 s54, s43, 2
    s_add_u32 s54, s54, s3           ; channel d
    s_lshl_b32 s55, s54, 12
    v_lshl_add_u32 v5, v2, 4, s55
    """)
    KR = 128
    a("s_waitcnt lgkmcnt(0)")
    a("s_add_u32 s42, s42, 0x9e3779b9")
    srd(a, 36, 4, 2048); srd(a, 24, 52, 512)
    a(f"""
    s_lshl_b32 s55, s54, 1
    v_mov_b32 v50, s55
    v_mov_b32 v108, 0
    v_mov_b32 v72, 0
    s_mov_b32 s64, s52
    s_mov_b32 s65, s53
    s_mov_b32 s66, 512
    s_mov_b32 s67, 0x20000
    v_and_b32 v22, 15, v2
    v_lshlrev_b32 v22, 2, v22
    v_and_b32 v23, 16, v2
    v_lshl_add_u32 v127, v23, 3, v22
    s_waitcnt vmcnt({NT})
    """)
    for j in range(4):
        a(f"buffer_load_dwordx4 {vr(KR+6*j,4)}, v5, s[32:35], 0 offen offset:{1024*j} {nt}")
        a(f"buffer_load_dwordx2 {vr(KR+6*j+4,2)}, v5, s[32:35], 0 offen offset:{1024*j+16} {nt}")
    a(f"""
    buffer_load_ushort v126, v50, s[36:39], 0 offen
    buffer_load_dword v160, v127, s[24:27], 0 offen sc1
    s_branch KA_phaseA
    KA_hpre:
    s_waitcnt lgkmcnt(0)
    """)
    srd(a, 32, 56, 2048); srd(a, 36, 58, 1024*6144*2); srd(a, 64, 52, 512)
    a(f"""
    s_add_u32 s42, s42, 0x9e3779b9
    s_lshl_b32 s58, s45, 2
    v_mov_b32 v72, s58
    s_add_u32 s58, s42, s41
    v_mov_b32 v73, s58
    v_mov_b32 v74, s42
    v_and_b32 v75, 15, v2
    v_lshlrev_b32 v75, 2, v75
    """)
    a(f"""
    v_mov_b32 v127, 0
    s_sub_u32 s60, s3, 4             ; hw
    s_lshr_b32 s61, s2, 1
    s_and_b32 s62, s2, 1             ; k half
    s_lshl_b32 s54, s62, 9
    s_lshl_b32 s55, s60, 7
    s_add_u32 s54, s54, s55
    v_lshl_add_u32 v60, v7, 4, s54
    v_lshlrev_b32 v61, 1, v60
    s_mov_b32 s55, 12288
    v_mul_lo_u32 v108, v60, s55
    s_lshl_b32 s55, s61, 7
    v_lshl_add_u32 v109, v15, 4, s55
    v_add_u32 v108, v108, v109
    buffer_load_dwordx4 v[64:67], v61, s[32:35], 0 offen
    buffer_load_dwordx4 v[68:71], v61, s[32:35], 0 offen offset:16
    s_waitcnt vmcnt({2+NT})
    KA_phaseA:
    """)
    stamp(a, 0)
    a("""
    v_lshrrev_b32 v5, 4, v2          ; g
    v_bfe_u32 v10, v2, 2, 2
    v_and_b32 v11, 3, v2
    v_lshlrev_b32 v10, 7, v10
    v_lshl_add_u32 v10, v5, 5, v10
    v_lshl_add_u32 v10, v11, 3, v10
    v_add_u32 v5, s49, v10
    """)
    for p in range(5):
        a(f"ds_read_b64_tr_b16 {vr(16+2*p,2)}, v5 offset:{512+512*p}")
    for p in range(4):
        a(f"ds_read_b64_tr_b16 {vr(26+2*p,2)}, v5 offset:{3072+512*p}")
    a("""
    v_alignbit_b32 v10, v8, v8, 16   ; A=(w1,w0)
    v_alignbit_b32 v11, v9, v9, 16   ; B=(w3,w2)
    v_and_b32 v12, 0xffff, v8        ; C=(w0,0)
    s_mov_b32 s55, 0xffff
    v_bfi_b32 v13, s55, v9, v8       ; D=(w2,w1)
    v_and_b32 v14, 0xffff0000, v9    ; E=(0,w3)
    s_waitcnt lgkmcnt(4)
    """)
    P = lambda q: 16 + q + 2
    ks = lambda t: 34 + t
    for q in range(8):
        a(f"v_dot2_f32_bf16 v{ks(2*q)}, v{P(q)}, v12, 0")
        a(f"v_dot2_f32_bf16 v{ks(2*q+1)}, v{P(q)}, v10, 0")
    for q in range(8):
        a(f"v_dot2_f32_bf16 v{ks(2*q)}, v{P(q-1)}, v13, v{ks(2*q)}")
        a(f"v_dot2_f32_bf16 v{ks(2*q+1)}, v{P(q-1)}, v11, v{ks(2*q+1)}")
    for q in range(8):
        a(f"v_dot2_f32_bf16 v{ks(2*q)}, v{P(q-2)}, v14, v{ks(2*q)}")
    a("s_waitcnt lgkmcnt(0)")
    for h in range(2):
        for q in range(4*h, 4*h+4):
            a(f"v_lshlrev_b32 v{110+2*q}, 16, v{26+q}")
            a(f"v_and_b32 v{111+2*q}, 0xffff0000, v{26+q}")
        for t in range(8*h, 8*h+8):
            a(f"v_mul_f32 v{ks(t)}, v{ks(t)}, v{110+t}")
        for j in range(4):
            a(f"v_cvt_pk_bf16_f32 v{52+4*h+j}, v{ks(8*h+7-2*j)}, v{ks(8*h+6-2*j)}")
        a(f"buffer_store_dwordx4 {vr(52+4*h,4)}, v6, s[28:31], 0 offen offset:{64*h} {'' if cfg.ul2 else 'sc1'}")
    stamp(a, 1)
    a("""
    s_cmp_ge_u32 s3, 4
    s_cbranch_scc1 KA_helper
    """)
    srd(a, 20, 10, MB4, WS_Y)
    a(f"""
    s_mul_i32 s49, s3, {CH_STR}      ; chbase
    s_lshl_b32 s47, s43, 14
    s_lshl_b32 s48, s3, 12
    s_add_u32 s48, s48, s47
    v_lshl_add_u32 v4, v2, 4, s48    ; U / Y offset
    v_and_b32 v7, 3, v2
    v_mul_u32_u24 v7, {UR_STR}, v7
    v_lshrrev_b32 v8, 2, v2
    v_lshlrev_b32 v8, 4, v8
    v_sub_u32 v7, v7, v8
    s_lshl_b32 s50, s3, 10
    s_sub_u32 s50, {UR_BASE + 255*16 - 3*256}, s50
    v_add_u32 v7, s50, v7
    v_mov_b32 v12, 0
    v_mov_b32 v13, 0
    v_mov_b32 v14, 0
    v_mov_b32 v15, 0
    s_mul_i32 s51, s3, {UR_STR}
    s_add_u32 s51, s51, {UR_BASE}    ; URc
    v_lshl_add_u32 v8, v2, 4, s51
    s_mov_b64 exec, 0x3fffffff
    ds_write_b128 v8, v[12:15] offset:4096
    s_mov_b64 exec, -1
    v_lshl_add_u32 v9, v2, 4, s49
    v_and_b32 v10, 15, v2            ; i' / a'
    v_lshrrev_b32 v11, 4, v2         ; g
    v_add_u32 v16, 1, v10
    v_and_b32 v17, 3, v16
    v_sub_u32 v16, v16, v17
    v_lshlrev_b32 v16, 1, v16
    v_mul_u32_u24 v17, {CP_STR}, v17
    v_add_u32 v16, v16, v17
    v_lshl_add_u32 v16, v11, 4, v16
    v_add_u32 v16, s49, v16          ; vA
    v_lshlrev_b32 v17, 5, v10
    v_sub_u32 v17, 480, v17
    v_lshl_add_u32 v17, v11, 4, v17
    v_add_u32 v17, s51, v17          ; vB
    v_lshlrev_b32 v18, 3, v11
    v_add_u32 v18, v18, v10
    v_sub_u32 v18, 15, v18
    v_mov_b32 v22, v127
    s_lshl_b32 s50, s45, 2
    v_mov_b32 v23, s50
    v_mov_b32 v28, s42
    s_add_u32 s50, s42, s41
    v_mov_b32 v30, s50
    v_cmp_le_u32 vcc, 128, v22
    s_nop 1
    v_cndmask_b32 v30, v30, v28, vcc
    """)
    for j in range(4):
        E = KR+6*j
        a(f"s_waitcnt vmcnt({4+2*(3-j)})")
        o1, o2, o3 = 64+12*j, 68+12*j, 72+12*j
        a(f"ds_write_b128 v9, {vr(E,4)} offset:{32+1024*j}")
        for i in range(4): a(f"v_alignbit_b32 v{o1+i}, v{E+i+1}, v{E+i}, 16")
        a(f"ds_write_b128 v9, {vr(o1,4)} offset:{CP_STR+32+1024*j}")
        for i in range(4): a(f"v_mov_b32 v{o2+i}, v{E+i+1}")
        a(f"ds_write_b128 v9, {vr(o2,4)} offset:{2*CP_STR+32+1024*j}")
        for i in range(4): a(f"v_alignbit_b32 v{o3+i}, v{E+i+2}, v{E+i+1}, 16")
        a(f"ds_write_b128 v9, {vr(o3,4)} offset:{3*CP_STR+32+1024*j}")
    a(f"""
    s_waitcnt vmcnt(0)
    s_barrier
    """)
    stamp(a, 2)
    a(f"""
    v_readfirstlane_b32 s54, v{KR}
    v_readfirstlane_b32 s55, v{KR+1}
    s_nop 1
    s_lshl_b32 s56, s54, 16
    s_lshr_b32 s57, s54, 16
    s_lshl_b32 s58, s55, 16
    s_or_b32 s57, s57, s58
    v_writelane_b32 v15, s56, 3
    v_writelane_b32 v15, s54, 5
    v_writelane_b32 v14, s56, 7
    v_writelane_b32 v15, s57, 7
    v_lshrrev_b32 v19, 1, v2
    v_mul_u32_u24 v19, {CP_STR}, v19
    v_and_b32 v20, 1, v2
    v_lshl_add_u32 v19, v20, 4, v19
    v_add_u32 v19, s49, v19
    s_mov_b64 exec, 0xff
    ds_write_b128 v19, v[12:15]
    s_mov_b64 exec, -1
    v_lshlrev_b32 v21, 16, v126
    """)
    for j in range(4):
        a(f"v_cmp_eq_u32 vcc, {2*j}, v18")
        a("s_nop 1")
        a(f"v_cndmask_b32 v{24+j}, 0, v126, vcc")
        a(f"v_cmp_eq_u32 vcc, {2*j+1}, v18")
        a("s_nop 1")
        a(f"v_cndmask_b32 v{24+j}, v{24+j}, v21, vcc")
    ACC = 192
    FA = lambda s, w: 32 + 64*s + 4*w
    FB = lambda s, v: 64 + 64*s + 4*v
    def readsA(z0):
        s = z0 & 1
        R = []
        for i in range(8):
            R.append(f"ds_read_b64 {vr(FA(s,i),2)}, v16 offset:{512*i+64*z0}")
            R.append(f"ds_read_b64 {vr(FA(s,i)+2,2)}, v16 offset:{512*i+64*z0+8}")
        return R
    def readsB(z0):
        s = z0 & 1
        return [f"ds_read_b128 {vr(FB(s,i),4)}, v17 offset:{512*(7-i)+64*z0}" for i in range(8)]
    a("s_waitcnt lgkmcnt(0)")
    for r in readsA(0): a(r)
    a(f"""
    s_mov_b32 s59, 0
    s_cmp_eq_u32 s3, 0
    s_cselect_b32 s58, {cfg.relpoll if cfg.ul2 else -1}, -1
    KA_poll:
    s_cmp_lg_u32 s59, s58
    s_cbranch_scc1 KA_norel
    buffer_wbl2 sc1
    s_waitcnt vmcnt(0)
    s_mov_b64 exec, 1
    buffer_store_dword v28, v23, s[24:27], 0 offen offset:128 sc1
    s_mov_b64 exec, -1
    KA_norel:
    buffer_load_dword v29, v22, s[24:27], 0 offen sc1
    s_add_u32 s59, s59, 1
    s_waitcnt vmcnt(0)
    v_cmp_eq_u32 vcc, v30, v29
    s_cmp_gt_u32 s59, {SPIN_MAX}
    s_cbranch_scc1 KA_poll_x
    s_lshr_b32 s57, vcc_lo, 16
    s_or_b32 s57, s57, vcc_lo
    s_and_b32 s57, s57, 0xffff
    s_cmp_lg_u32 s57, 0xffff
    s_cbranch_scc1 KA_poll
    KA_poll_x:
    s_and_b32 s57, vcc_lo, 0xffff
    s_cmp_eq_u32 s57, 0xffff
    s_cbranch_scc1 KA_near
    s_cmp_gt_u32 s59, s58
    s_cbranch_scc1 KA_acq
    s_cmp_lg_u32 s3, 0
    s_cbranch_scc1 KA_acq
    buffer_wbl2 sc1
    s_waitcnt vmcnt(0)
    s_mov_b64 exec, 1
    buffer_store_dword v28, v23, s[24:27], 0 offen offset:128 sc1
    s_mov_b64 exec, -1
    KA_acq:
    buffer_inv sc1
    s_waitcnt vmcnt(0)
    KA_near:
    """)
    for j in range(4):
        a(f"buffer_load_dwordx4 {vr(176+4*j,4)}, v4, s[28:31], 0 offen offset:{1024*j} sc1")
    a("s_barrier")
    stamp(a, 3)
    for j in range(4):
        a(f"s_waitcnt vmcnt({3-j})" if j < 3 else "s_waitcnt vmcnt(0)")
        a(f"ds_write_b128 v7, {vr(176+4*j,4)} offset:{256*(3-j)}")
    a("s_waitcnt lgkmcnt(0)")
    a("s_barrier")
    stamp(a, 4)
    for r in readsB(0): a(r)
    for n in range(8):
        a(f"s_waitcnt lgkmcnt({7-n})")
        a(f"v_mfma_f32_16x16x32_bf16 {vr(ACC+4*n,4)}, v[24:27], {vr(FB(0,n),4)}, 0")
    a("s_mov_b32 s59, 0")
    a("KA_loop:")
    for z0 in range(2):
        s = z0 & 1
        ra, rb = readsA(z0+1), readsB(z0+1)
        R = ra[:2] + rb + ra[2:]
        if z0 == 1: R += ["v_add_u32 v16, 128, v16", "v_add_u32 v17, 128, v17", "s_add_u32 s59, s59, 1", "s_cmp_lt_u32 s59, 4"]
        M = [(w, v) for w in range(8) for v in range(8-w)]
        for i, (w, v) in enumerate(M):
            if i == 35: a("s_waitcnt lgkmcnt(0)")
            a(f"v_mfma_f32_16x16x32_bf16 {vr(ACC+4*(w+v),4)}, {vr(FA(s,w),4)}, {vr(FB(s,v),4)}, {vr(ACC+4*(w+v),4)}")
            if i < len(R): a(R[i])
    a("s_cbranch_scc1 KA_loop")
    stamp(a, 5)
    a(f"""
    v_lshlrev_b32 v20, 5, v10
    v_lshl_add_u32 v20, v11, 3, v20
    v_add_u32 v20, s49, v20
    s_lshl_b32 s50, s3, 10
    v_lshl_add_u32 v21, v2, 2, s50
    s_mov_b32 s56, 0x05040100
    s_mov_b32 s57, 0x07060302
    """)
    for n in range(8):
        a(f"v_cvt_pk_bf16_f32 v{32+2*n}, v{ACC+4*n}, v{ACC+4*n+1}")
        a(f"v_cvt_pk_bf16_f32 v{33+2*n}, v{ACC+4*n+2}, v{ACC+4*n+3}")
        a(f"ds_write_b64 v20, {vr(32+2*n,2)} offset:{512*n}")
    a("s_waitcnt lgkmcnt(0)")
    a("s_barrier")
    for j in range(4):
        a(f"ds_read2st64_b32 {vr(64+4*j,2)}, v21 offset0:{j} offset1:{65+j}")
        a(f"ds_read2st64_b32 {vr(66+4*j,2)}, v21 offset0:{130+j} offset1:{195+j}")
    for j in range(4):
        a(f"s_waitcnt lgkmcnt({6-2*j})")
        b = 64+4*j; o = 96+4*j
        a(f"v_perm_b32 v{o}, v{b+1}, v{b}, s56")
        a(f"v_perm_b32 v{o+1}, v{b+3}, v{b+2}, s56")
        a(f"v_perm_b32 v{o+2}, v{b+1}, v{b}, s57")
        a(f"v_perm_b32 v{o+3}, v{b+3}, v{b+2}, s57")
        a(f"buffer_store_dwordx4 {vr(o,4)}, v4, s[20:23], 0 offen offset:{1024*j} {cfg.st_pol}")
    a(f"""
    s_or_b32 s59, s3, s45
    s_cmp_lg_u32 s59, 0
    s_cbranch_scc1 KA_noep
    s_mov_b64 exec, 1
    buffer_store_dword v28, v23, s[24:27], 0 offen offset:256 sc1
    KA_noep:
    """)
    fin(a, kidx)
    NB1 = cfg.nb1
    WR = 128
    a("KA_helper:")
    srd(a, 20, 6, MB4); srd(a, 24, 8, 1024*3584*2); srd(a, 16, 10, 2*6144*4, WS_MODP)
    a(f"""
    s_mov_b32 s63, 12288
    s_cmp_lt_u32 s2, 192
    s_cbranch_scc1 KA_isgemv
    s_mov_b32 s36, s20
    s_mov_b32 s37, s21
    s_mov_b32 s38, s22
    s_and_b32 s54, s2, 7
    s_lshl_b32 s54, s54, 3
    s_lshr_b32 s55, s2, 3
    s_sub_u32 s55, s55, 24
    s_add_u32 s54, s54, s55
    s_lshl_b32 s54, s54, 16
    s_lshl_b32 s55, s60, 14
    s_add_u32 s54, s54, s55
    v_lshl_add_u32 v108, v2, 4, s54
    s_mov_b32 s63, 1024
    KA_isgemv:
    s_mov_b32 s55, 0
    """)
    def wload(i):
        a(f"buffer_load_dwordx4 {vr(WR+4*i,4)}, v108, s[36:39], s55 offen {nt}")
        a("s_add_u32 s55, s55, s63")
    for i in range(NB1): wload(i)
    a(f"s_waitcnt vmcnt({2+NB1})")
    for q in range(8):
        a(f"v_lshlrev_b32 v{16+2*q}, 16, v{64+q}")
        a(f"v_and_b32 v{17+2*q}, 0xffff0000, v{64+q}")
    for i in range(16): a(f"v_mul_f32 v{32+i}, {f32(-LOG2E)}, v{16+i}")
    for i in range(16): a(f"v_exp_f32 v{32+i}, v{32+i}")
    a(f"""
    s_waitcnt vmcnt({NB1})
    s_barrier
    s_cmp_lg_u32 s60, 0
    s_cbranch_scc1 KA_nopost
    s_mov_b64 exec, 1
    buffer_store_dword v73, v72, s[64:67], 0 offen
    """)
    if not cfg.ul2: a("buffer_store_dword v74, v72, s[64:67], 0 offen offset:128 sc1")
    a("s_mov_b64 exec, -1")
    a("KA_nopost:")
    for i in range(16): a(f"v_add_f32 v{32+i}, 1.0, v{32+i}")
    for i in range(16): a(f"v_rcp_f32 v{32+i}, v{32+i}")
    for i in range(16): a(f"v_mul_f32 v{16+i}, v{16+i}, v{32+i}")
    for q in range(8): a(f"v_cvt_pk_bf16_f32 v{96+q}, v{16+2*q}, v{17+2*q}")
    for q in range(8):
        a(f"v_lshlrev_b32 v{16+2*q}, 16, v{96+q}")
        a(f"v_and_b32 v{17+2*q}, 0xffff0000, v{96+q}")
    a(f"""
    s_mul_i32 s54, s2, 28672
    s_mul_i32 s56, s60, 7168
    s_add_u32 s54, s54, s56
    v_lshl_add_u32 v109, v2, 4, s54
    s_mov_b32 s54, 4096
    s_barrier
    """)
    stamp(a, 2)
    NB2 = min(16, NB1 + cfg.nb2)
    for i in range(NB1, NB2): wload(i)
    a("s_barrier")
    npf = cfg.npf1
    def pfload(i):
        a(f"buffer_load_dwordx4 {vr(192+4*i,4)}, v109, s[24:27], {'0' if i < 4 else 's54'} offen offset:{1024*(i%4)}")
    DEP = cfg.dep
    issued = NB2
    def more():
        nonlocal issued
        if issued < 16: wload(issued)
        elif issued < 16 + npf: pfload(issued - 16)
        else: return
        issued += 1
    while issued < DEP: more()
    for i in range(16):
        a(f"s_waitcnt vmcnt({issued - 1 - i})")
        more()
        t = 48 + 8*(i & 1)
        for j in range(4):
            a(f"v_lshlrev_b32 v{t+2*j}, 16, v{WR+4*i+j}")
            a(f"v_and_b32 v{t+2*j+1}, 0xffff0000, v{WR+4*i+j}")
        for j in range(8):
            if i == 0: a(f"v_mul_f32 v{32+j}, v{t+j}, v16")
            else: a(f"v_fmac_f32 v{32+j}, v{t+j}, v{16+i}")
    while issued < 16 + npf: more()
    a("""
    s_cmp_lt_u32 s2, 192
    s_cbranch_scc0 KA_end
    """)
    stamp(a, 3)
    a("s_nop 3")
    for j in range(4): a(f"v_permlane32_swap_b32 v{32+j}, v{36+j}")
    a("s_nop 1")
    for j in range(4): a(f"v_add_f32 v{32+j}, v{32+j}, v{36+j}")
    a("s_nop 1")
    for j in range(2): a(f"v_permlane16_swap_b32 v{32+j}, v{34+j}")
    a("s_nop 1")
    for j in range(2): a(f"v_add_f32 v{32+j}, v{32+j}, v{34+j}")
    a("s_nop 1")
    for j in range(2): a(f"v_add_f32_dpp v{32+j}, v{32+j}, v{32+j} row_ror:8 row_mask:0xf bank_mask:0xf")
    a(f"""
    v_lshrrev_b32 v40, 4, v2
    v_lshlrev_b32 v40, 3, v40
    v_lshl_add_u32 v40, v15, 5, v40
    s_lshl_b32 s56, s60, 8
    s_add_u32 s56, s56, {RED}
    v_add_u32 v40, s56, v40
    ds_write_b64 v40, v[32:33]
    v_lshlrev_b32 v41, 2, v2
    v_add_u32 v42, {RED}, v41
    s_mul_i32 s56, s62, 24576
    s_lshl_b32 s57, s61, 8
    s_add_u32 s56, s56, s57
    s_waitcnt lgkmcnt(0)
    s_barrier
    s_cmp_lg_u32 s60, 0
    s_cbranch_scc1 KA_end
    """)
    for w in range(4): a(f"ds_read_b32 v{32+w}, v42 offset:{256*w}")
    a(f"""
    s_waitcnt lgkmcnt(0)
    v_add_f32 v32, v32, v33
    v_add_f32 v34, v34, v35
    v_add_f32 v32, v32, v34
    buffer_store_dword v32, v41, s[16:19], s56 offen {cfg.st_pol}
    """)
    fin(a, kidx, "KA_end")
    return dict(name="ka_kernel", body=a.text(), vgpr=224, sgpr=72, grid=256, block=512, lds=RED+1024)
```

```python
from asmlib import *
from gen import *
from gemm import interleave

WS_FL = 0x3000000
FL_BYTES = 4096 + 65536
SPIN_MAX = 1 << 16

class TAsm(Asm):
    on = False
    def __call__(self, s):
        if not (cfg.stamps and cfg.trace and self.on):
            return Asm.__call__(self, s)
        for line in s.split("\n"):
            if line.strip() == "s_barrier":
                Asm.__call__(self, """
                s_memtime s[100:101]
                s_waitcnt lgkmcnt(0)
                s_sub_u32 s100, s100, s78
                v_writelane_b32 v60, s100, m0
                s_barrier
                s_memtime s[100:101]
                s_waitcnt lgkmcnt(0)
                s_sub_u32 s100, s100, s78
                v_writelane_b32 v61, s100, m0
                s_add_u32 s96, s96, 1
                s_mov_b32 m0, s95
                s_nop 0
                """.replace("v_writelane_b32 v60, s100, m0", "s_mov_b32 s95, m0\ns_mov_b32 m0, s96\nv_writelane_b32 v60, s100, m0"))
            else:
                Asm.__call__(self, line)

def gen_kg(kidx=3):
    a = TAsm()
    SLOT, NS, NST = 45056, 3, 16
    BF, BH = 16384, 16384 + 24576
    S2, NS2, NST2, BB = 32768, 5, 28, 16384
    head(a, 256, "KG_end")
    a(f"""
    s_load_dwordx4 s[4:7], s[0:1], {KW1}
    s_load_dwordx4 s[12:15], s[0:1], {KW2}
    s_load_dwordx2 s[10:11], s[0:1], {KWS}
    s_load_dwordx2 s[8:9], s[0:1], {KOUT}
    v_lshrrev_b32 v1, 6, v0
    v_and_b32 v2, 63, v0
    v_readfirstlane_b32 s3, v1
    s_and_b32 s44, s2, 7
    s_lshr_b32 s45, s2, 3
    s_lshr_b32 s46, s44, 1
    s_lshl_b32 s46, s46, 2
    s_lshr_b32 s47, s45, 3
    s_add_u32 s46, s46, s47          ; mt
    s_and_b32 s44, s44, 1            ; fh
    s_and_b32 s45, s45, 7            ; nt
    s_lshl_b32 s47, s44, 3
    s_add_u32 s47, s47, s45          ; nc
    s_and_b32 s48, s47, 1            ; parity
    s_mul_i32 s49, s47, 448
    s_lshl_b32 s50, s48, 6
    s_add_u32 s50, s50, s49
    s_cmp_eq_u32 s48, 0
    s_cselect_b32 s51, 384, 0
    s_add_u32 s51, s51, s49
    s_cmp_ge_u32 s3, 4
    s_cbranch_scc0 KG_compute
    """)
    a.on = True
    if cfg.stamps and cfg.trace:
        a("s_mov_b32 s96, 0")
        a("v_mov_b32 v60, 0")
        a("v_mov_b32 v61, 0")
    a(f"""
    s_sub_u32 s3, s3, 4
    v_lshrrev_b32 v3, 3, v2
    v_and_b32 v4, 7, v2              ; position
    v_lshrrev_b32 v5, 4, v2
    v_xor_b32 v5, v5, v4
    s_lshl_b32 s52, s46, 7
    s_lshl_b32 s53, s3, 5
    s_add_u32 s52, s52, s53
    v_add_u32 v6, s52, v3
    v_lshlrev_b32 v6, 11, v6
    v_lshl_add_u32 v10, v5, 4, v6    ; vA0
    v_xor_b32 v5, 4, v5
    v_lshl_add_u32 v11, v5, 4, v6
    v_add_u32 v11, 16384, v11
    v_bfe_u32 v5, v2, 4, 1
    v_lshlrev_b32 v5, 1, v5
    v_xor_b32 v5, v5, v4
    s_lshl_b32 s53, s3, 4
    v_add_u32 v6, s53, v3
    v_mul_u32_u24 v6, 7168, v6
    v_add_u32 v6, s50, v6
    v_lshl_add_u32 v12, v5, 4, v6    ; vB0
    v_xor_b32 v5, 4, v5
    v_lshl_add_u32 v13, v5, 4, v6
    v_add_u32 v13, {8*7168}, v13     ; vB1
    v_lshrrev_b32 v6, 2, v2
    v_add_u32 v6, s53, v6
    v_mul_u32_u24 v6, 7168, v6
    v_add_u32 v6, s51, v6
    v_lshrrev_b32 v5, 5, v2
    v_lshlrev_b32 v5, 1, v5
    v_and_b32 v7, 3, v2
    v_xor_b32 v5, v5, v7
    v_lshl_add_u32 v14, v5, 4, v6    ; vBH
    s_lshl_b32 s54, s3, 12
    s_lshl_b32 s55, s3, 11
    s_add_u32 s55, s55, {BF}
    s_lshl_b32 s56, s3, 10
    s_add_u32 s56, s56, {BH}
    s_mov_b32 s57, 0
    s_mov_b32 s58, 0                 ; A soffset
    s_mov_b32 s59, 0                 ; B soffset
    s_waitcnt lgkmcnt(0)
    """)
    srd(a, 16, 10, MB4, WS_Y2); srd(a, 20, 4, 1024*3584*2)
    def prep():
        a("s_add_u32 s60, s55, s57")
        a("s_add_u32 s62, s59, 128")
        a("s_add_u32 s63, s59, 256")
        a("s_mov_b32 m0, s60")
    def fire():
        wp = cfg.w_pol
        fill = iter(["s_add_u32 s64, s54, s57", "s_add_u32 s52, s58, 32768", "s_nop 0", "s_nop 0", "s_nop 0", "s_nop 0"])
        for lc in range(3):
            for i2 in range(2):
                if lc or i2:
                    a(f"s_add_u32 m0, s60, {8192*lc+1024*i2}")
                    a(next(fill))
                a(f"buffer_load_dwordx4 v{12+i2}, s[20:23], {['s59','s62','s63'][lc]} offen {wp} lds")
        a("s_add_u32 m0, s56, s57")
        a(f"s_add_u32 s57, s57, {SLOT}")
        a(f"buffer_load_dwordx4 v14, s[20:23], s59 offen {wp} lds")
        fill = iter([f"s_add_u32 s59, s59, {64*7168}", f"s_cmp_eq_u32 s57, {NS*SLOT}", "s_nop 0", "s_nop 0"])
        for i in range(4):
            if i == 2: a("s_cselect_b32 s57, 0, s57")
            a(f"s_add_u32 m0, s64, {1024*i}")
            a(next(fill))
            a(f"buffer_load_dwordx4 v{10+(i&1)}, s[16:19], {'s58' if i < 2 else 's52'} offen lds")
        a("s_add_u32 s58, s58, 128")
    def issue():
        prep(); a("s_nop 0"); fire()
    a("s_mov_b32 s61, 0")
    a("KG_lpro:")
    issue()
    a(f"""
    s_add_u32 s61, s61, 1
    s_cmp_lt_u32 s61, {NS}
    s_cbranch_scc1 KG_lpro
    """)
    srd(a, 24, 10, 2048*3584*2, WS_H); srd(a, 28, 12, 3584*1024*2); srd(a, 32, 10, FL_BYTES, WS_FL)
    a(f"""
    s_lshl_b32 s52, s46, 3
    s_and_b32 s53, s3, 1
    s_lshl_b32 s64, s53, 2
    s_add_u32 s52, s52, s64
    s_mul_i32 s52, s52, 112
    s_mul_i32 s64, s44, 56
    s_add_u32 s52, s52, s64
    s_lshl_b32 s52, s52, 10
    v_lshl_add_u32 v16, v2, 4, s52
    v_add_u32 v17, {112*1024}, v16
    v_add_u32 v18, {2*112*1024}, v16
    v_add_u32 v19, {3*112*1024}, v16
    v_lshrrev_b32 v5, 4, v2
    v_lshlrev_b32 v5, 1, v5
    v_xor_b32 v5, v5, v4
    s_mul_i32 s52, s44, 1792
    s_lshl_b32 s64, s53, 4
    s_add_u32 s52, s52, s64
    v_add_u32 v6, s52, v3
    v_lshlrev_b32 v6, 11, v6
    s_lshl_b32 s64, s45, 8
    v_add_u32 v6, s64, v6
    v_lshl_add_u32 v20, v5, 4, v6
    v_add_u32 v21, 16384, v20
    v_add_u32 v22, 128, v20
    v_add_u32 v23, 16384+128, v20
    s_lshr_b32 s65, s3, 1
    s_lshl_b32 s66, s53, 13
    s_lshl_b32 s64, s65, 10
    s_add_u32 s66, s66, s64
    s_lshl_b32 s67, s3, 11
    s_add_u32 s67, s67, {BB}
    s_lshl_b32 s52, s46, 1
    s_add_u32 s52, s52, s44
    s_lshl_b32 s52, s52, 7
    v_lshl_add_u32 v24, v4, 2, s52
    s_lshl_b32 s64, s45, 2
    s_add_u32 s52, s52, s64
    v_mov_b32 v25, s52
    """)
    if cfg.l2path:
        a("""
        s_getreg_b32 s74, hwreg(HW_REG_XCC_ID, 0, 4)
        s_add_u32 s74, s74, 1
        s_cmp_lg_u32 s3, 0
        s_cbranch_scc1 KG_noid
        v_mov_b32 v28, s74
        s_mov_b64 exec, 1
        buffer_store_dword v28, v25, s[32:35], 0 offen offset:32 sc1
        s_mov_b64 exec, -1
        KG_noid:
        """)
    a(f"""
    s_mul_i32 s52, s45, 7
    """)
    if cfg.absord:
        chunksel = """v_cmp_le_u32 vcc, s45, v6
        s_nop 1
        v_addc_co_u32 v6, vcc, 0, v6, vcc
        v_and_b32 v6, 7, v6"""
    else:
        chunksel = """v_add_u32 v6, s45, v6
        v_add_u32 v6, 1, v6
        v_and_b32 v6, 7, v6"""
    if cfg.early:
        a(f"""
        v_subrev_u32 v5, 7, v2           ; p-7
        v_lshrrev_b32 v6, 2, v5
        {chunksel}
        v_and_b32 v7, 3, v5
        v_and_b32 v8, 1, v6
        v_add_u32 v7, v7, v8
        v_mad_u32_u24 v27, v6, 7, v7
        v_subrev_u32 v5, 35, v2          ; p-35
        v_mul_u32_u24 v6, 43, v5
        v_lshrrev_b32 v6, 7, v6          ; /3
        v_mul_u32_u24 v7, 3, v6
        v_sub_u32 v7, v5, v7             ; e
        {chunksel}
        v_and_b32 v8, 1, v6              ; parity
        v_add3_u32 v9, v7, 4, v8
        v_mul_u32_u24 v8, 6, v8
        v_sub_u32 v8, 6, v8
        v_cmp_eq_u32 vcc, 2, v7
        s_nop 1
        v_cndmask_b32 v9, v9, v8, vcc
        v_mad_u32_u24 v28, v6, 7, v9
        v_add_u32 v26, s52, v2           ; own
        v_cmp_le_u32 vcc, 7, v2
        s_nop 1
        v_cndmask_b32 v26, v26, v27, vcc
        v_cmp_le_u32 vcc, 35, v2
        s_nop 1
        v_cndmask_b32 v26, v26, v28, vcc
        """)
    else:
        a("""
        v_add_u32 v26, s52, v2
        v_subrev_u32 v27, 56, v26
        v_cmp_le_u32 vcc, 56, v26
        s_nop 1
        v_cndmask_b32 v26, v26, v27, vcc
        """)
    if cfg.pf_w2:
        a(f"""
        s_mul_i32 s52, s2, 28672
        s_mul_i32 s64, s3, 7168
        s_add_u32 s52, s52, s64
        v_lshl_add_u32 v5, v2, 4, s52
        s_mov_b32 s64, 4096
        """)
        for i in range(7):
            a(f"buffer_load_dwordx4 {vr(32+4*i,4)}, v5, s[28:31], {'0' if i < 4 else 's64'} offen offset:{1024*(i%4)}")
    npf = 7 if cfg.pf_w2 else 0
    prep()
    a(f"""
    s_waitcnt vmcnt({11*(NS-1)+npf})
    s_barrier
    s_waitcnt vmcnt({11*(NS-2)+npf})
    s_barrier
    """)
    fire(); prep()
    a(f"""
    s_waitcnt vmcnt({11*(NS-2)+npf})
    s_barrier
    """)
    fire()
    a("s_mov_b32 s61, 2")
    a("KG_lloop:")
    prep()
    a(f"""
    s_waitcnt vmcnt({11*(NS-2)})
    s_barrier
    """)
    fire()
    a(f"""
    s_add_u32 s61, s61, 1
    s_cmp_lt_u32 s61, {NST-NS}
    s_cbranch_scc1 KG_lloop
    """)
    for r in range(NS):
        left = max(NS-2-r, 0)
        a(f"s_waitcnt vmcnt({11*left})")
        a("s_barrier")
    def blk():
        a("v_readlane_b32 s69, v26, s68")
        a("s_add_u32 s68, s68, 2")
    def issueA():
        a("s_lshl_b32 s70, s69, 10")
        a("s_add_u32 s60, s66, s57")
        for i in range(4):
            a(f"s_add_u32 m0, s60, {2048*i}")
            a("s_nop 0")
            a(f"buffer_load_dwordx4 v{16+i}, s[24:27], s70 offen {cfg.a2_pol} lds")
    def issueB():
        a("s_lshl_b32 s71, s69, 16")
        a("s_add_u32 s60, s67, s57")
        for lc in range(2):
            for i2 in range(2):
                a(f"s_add_u32 m0, s60, {8192*lc+1024*i2}")
                a("s_nop 0")
                a(f"buffer_load_dwordx4 v{20+2*lc+i2}, s[28:31], s71 offen {cfg.w_pol} lds")
    def prep2():
        blk()
        a("s_add_u32 s60, s67, s57")
        a("s_add_u32 s62, s66, s57")
        a("s_lshl_b32 s71, s69, 16" if "fixB" not in cfg.exp else "s_mov_b32 s71, 0")
        a("s_lshl_b32 s70, s69, 10" if "fixA" not in cfg.exp else "s_mov_b32 s70, 0")
        a("s_mov_b32 m0, s60")
        nextslot()
    def fire2():
        for lc in range(2):
            for i2 in range(2):
                if lc or i2:
                    a(f"s_add_u32 m0, s60, {8192*lc+1024*i2}")
                    a("s_nop 0")
                a(f"buffer_load_dwordx4 v{20+2*lc+i2}, s[28:31], s71 offen {cfg.w_pol} lds")
        for i in range(4):
            a(f"s_add_u32 m0, s62, {2048*i}")
            a("s_nop 0")
            a(f"buffer_load_dwordx4 v{16+i}, s[24:27], s70 offen {cfg.a2_pol} lds")
    def nextslot():
        a(f"s_add_u32 s57, s57, {S2}")
        a(f"s_cmp_eq_u32 s57, {NS2*S2}")
        a("s_cselect_b32 s57, 0, s57")
    def poll(val, lbl):
        a(f"""
        s_mov_b32 s72, 0
        {lbl}:
        buffer_load_dword v27, v24, s[32:35], 0 offen sc1
        s_add_u32 s72, s72, 1
        s_waitcnt vmcnt(0)
        v_cmp_gt_u32 vcc, {val}, v27
        s_cmp_gt_u32 s72, {SPIN_MAX}
        s_cbranch_scc1 {lbl}_x
        s_cbranch_vccnz {lbl}
        {lbl}_x:
        """)
        if cfg.l2path:
            a(f"""
            s_cmp_eq_u32 s75, 0
            s_cbranch_scc1 {lbl}_y
            buffer_inv sc1
            s_waitcnt vmcnt(0)
            """)
        a(f"{lbl}_y:")
    def post(val, lbl):
        a(f"""
        s_cmp_lg_u32 s3, 0
        s_cbranch_scc1 {lbl}
        v_mov_b32 v28, {val}
        s_mov_b64 exec, 1
        """)
        if cfg.l2path:
            a(f"""
            s_cmp_eq_u32 s75, 0
            s_cbranch_scc1 {lbl}_f
            buffer_wbl2 sc1
            s_waitcnt vmcnt(0)
            buffer_store_dword v28, v25, s[32:35], 0 offen sc1
            s_branch {lbl}_g
            {lbl}_f:
            buffer_store_dword v28, v25, s[32:35], 0 offen
            {lbl}_g:
            """)
        else:
            a("buffer_store_dword v28, v25, s[32:35], 0 offen sc1")
        a(f"""
        s_mov_b64 exec, -1
        {lbl}:
        """)
    a("""
    s_mov_b32 s68, s65
    s_mov_b32 s57, 0
    s_mov_b32 s61, 0
    KG_l2pro:
    """)
    blk(); issueB(); nextslot()
    a(f"""
    s_add_u32 s61, s61, 1
    s_cmp_lt_u32 s61, {NS2}
    s_cbranch_scc1 KG_l2pro
    """)
    if cfg.l2path:
        a(f"""
        s_mov_b32 s72, 0
        KG_idpoll:
        buffer_load_dword v27, v24, s[32:35], 0 offen offset:32 sc1
        s_add_u32 s72, s72, 1
        s_waitcnt vmcnt(0)
        v_cmp_eq_u32 vcc, 0, v27
        s_cmp_gt_u32 s72, {SPIN_MAX}
        s_cbranch_scc1 KG_idpoll_x
        s_cbranch_vccnz KG_idpoll
        KG_idpoll_x:
        v_cmp_ne_u32 vcc, s74, v27
        s_cmp_lg_u64 vcc, 0
        s_cselect_b32 s75, 1, 0
        """)
    a("""
    s_waitcnt vmcnt(0)
    s_barrier
    """)
    stamp(a, 0)
    post(1, "KG_p1")
    a("s_barrier")
    a("buffer_load_dword v27, v24, s[32:35], 0 offen sc1")
    blk(); issueB()
    a("""
    s_waitcnt vmcnt(4)
    v_cmp_gt_u32 vcc, 1, v27
    s_cbranch_vccz KG_poll1_x
    """)
    poll(1, "KG_poll1")
    stamp(a, 1)
    a(f"""
    s_add_u32 s68, s65, 6
    s_mov_b32 s57, {3*S2}
    """)
    blk()
    a("s_cmp_eq_u32 s65, 0")
    a("s_cbranch_scc1 KG_skipA3")
    issueA()
    a("KG_skipA3:")
    nextslot(); blk(); issueA(); nextslot(); blk(); issueA(); nextslot()
    prep2()
    a("s_waitcnt vmcnt(8)")
    stamp(a, 2)
    a("s_barrier")
    fire2()
    if cfg.early: post(2, "KG_p2")
    prep2()
    a("s_waitcnt vmcnt(12)")
    a("s_barrier")
    fire2()
    a("s_mov_b32 s61, 4")
    a("KG_l2loop:")
    if cfg.early:
        a("""
        s_cmp_lg_u32 s61, 8
        s_cbranch_scc1 KG_np2a
        buffer_load_dword v27, v24, s[32:35], 0 offen sc1
        KG_np2a:
        s_cmp_lg_u32 s61, 12
        s_cbranch_scc1 KG_poll2_y
        v_cmp_gt_u32 vcc, 2, v27
        s_cbranch_vccz KG_poll2_x
        """)
        poll(2, "KG_poll2")
    prep2()
    a("s_waitcnt vmcnt(16)")
    if "nobar" not in cfg.exp: a("s_barrier")
    fire2()
    a(f"""
    s_add_u32 s61, s61, 1
    s_cmp_lt_u32 s61, {NST2-4}
    s_cbranch_scc1 KG_l2loop
    """)
    for left in (2, 1, 0):
        a(f"s_waitcnt vmcnt({8*left})")
        a("s_barrier")
    a.on = False
    if cfg.stamps and cfg.trace:
        a(f"""
        s_lshl_b32 s96, s2, 2
        s_add_u32 s96, s96, s3
        s_lshl_b32 s96, s96, 9
        s_add_u32 s96, s96, {WS_ST + 0x400000}
        v_lshl_add_u32 v62, v2, 2, s96
        global_store_dword v62, v60, s[98:99]
        global_store_dword v62, v61, s[98:99] offset:256
        """)
    fin(a, kidx)
    ACC = 32
    acc = lambda u, mi: ACC + (u*4+mi)*4 if u < 6 else ACC + 96 + ((u-6)*2+mi)*4
    FW = lambda s, u: 144 + 48*s + 4*u
    FX = lambda s, mi: 144 + 48*s + 32 + 4*mi
    AW = lambda j: 16 + j
    AX = lambda kk, h: 20 + 2*kk + h
    HG, HGH = 240, 241
    HL = lambda h: 242 + h
    HLH = 244
    AW2 = lambda u: 245 + u
    AX2 = lambda h: 249 + h
    VROW, VC2, VEXS, VEXR = 251, 252, 253, 254
    a("KG_compute:")
    a(f"""
    s_lshr_b32 s52, s3, 1            ; wm
    s_and_b32 s53, s3, 1             ; wn
    v_lshrrev_b32 v3, 4, v2          ; g
    v_and_b32 v4, 15, v2             ; i
    s_lshl_b32 s54, s53, 6
    s_add_u32 s54, s54, s50
    v_lshl_add_u32 v5, v3, 3, s54
    v_lshl_add_u32 v6, v3, 3, s51
    s_waitcnt lgkmcnt(0)
    """)
    srd(a, 24, 6, 3584*2)
    for u in range(6): a(f"buffer_load_dwordx2 {vr(144+2*u,2)}, v5, s[24:27], 0 offen offset:{128*(u>>1)+32*(u&1)}")
    for u in range(2): a(f"buffer_load_dwordx2 {vr(156+2*u,2)}, v6, s[24:27], 0 offen offset:{32*u}")
    srd(a, 28, 10, 2048*3584*2, WS_H); srd(a, 16, 14, 2048); srd(a, 20, 10, 2048, WS_GB)
    srd(a, 32, 10, MB4, WS_X1); srd(a, 36, 8, MB4); srd(a, 40, 10, 256*32768, WS_EX); srd(a, 64, 10, FL_BYTES, WS_FL)
    exw = 4096 if cfg.ex_bf16 else 8192
    a(f"""
    s_lshl_b32 s60, s52, 13          ; wm*8192
    s_lshl_b32 s61, s53, 12
    s_add_u32 s54, s60, s61
    s_xor_b32 s55, s54, 4096
    v_lshrrev_b32 v8, 1, v4
    v_xor_b32 v8, v8, v3
    v_lshlrev_b32 v8, 4, v8
    v_lshl_add_u32 v7, v4, 7, v8
    v_add_u32 v{AX(0,0)}, s54, v7
    v_add_u32 v{AX(0,1)}, s55, v7
    v_xor_b32 v7, 64, v7
    v_add_u32 v{AX(1,0)}, s54, v7
    v_add_u32 v{AX(1,1)}, s55, v7
    v_lshrrev_b32 v7, 2, v4
    v_lshl_add_u32 v7, v3, 3, v7     ; row
    v_and_b32 v8, 3, v4
    v_lshlrev_b32 v8, 3, v8          ; (i&3)*8
    v_lshl_add_u32 v9, v7, 7, v8
    v_add_u32 v9, {BF}, v9
    v_and_b32 v10, 1, v3
    v_lshrrev_b32 v11, 3, v4
    v_lshl_add_u32 v11, v10, 1, v11  ; phi
    s_lshl_b32 s56, s53, 1
    v_xor_b32 v12, s56, v11
    v_lshl_add_u32 v{AW(0)}, v12, 5, v9
    v_xor_b32 v{AW(1)}, 32, v{AW(0)}
    v_lshl_add_u32 v9, v7, 6, v8
    v_lshl_add_u32 v9, v10, 5, v9
    v_add_u32 v{AW(2)}, {BH}, v9
    v_xor_b32 v{AW(3)}, 32, v{AW(2)}
    s_lshl_b32 s56, s46, 3
    s_lshl_b32 s57, s52, 2
    s_add_u32 s56, s56, s57
    s_mul_i32 s56, s56, {112*1024}
    s_mul_i32 s57, s47, {7*1024}
    s_add_u32 s56, s56, s57
    s_add_u32 s57, s53, s48
    s_lshl_b32 s58, s57, 10
    s_add_u32 s58, s58, s56
    v_lshl_add_u32 v{HG}, v2, 4, s58
    s_lshr_b32 s58, s57, 1
    s_lshl_b32 s58, s58, 15
    s_and_b32 s57, s57, 1
    s_lshl_b32 s57, s57, 10
    s_add_u32 s58, s58, s57
    s_add_u32 s57, s58, s54
    v_lshl_add_u32 v{HL(0)}, v2, 4, s57
    s_add_u32 s57, s58, s55
    v_lshl_add_u32 v{HL(1)}, v2, 4, s57
    s_cmp_eq_u32 s48, 0
    s_cselect_b32 s58, {6*1024}, 0
    s_cselect_b32 s59, {3*S2}, 0
    s_add_u32 s58, s58, s56
    v_lshl_add_u32 v{HGH}, v2, 4, s58
    s_add_u32 s59, s59, s54
    v_lshl_add_u32 v{HLH}, v2, 4, s59
    s_mul_i32 s70, s53, {2*112*1024}
    s_add_u32 s71, s70, {112*1024}
    s_sub_u32 s72, {2*112*1024}, s70
    s_add_u32 s73, s72, {112*1024}
    s_lshl_b32 s61, s44, 12
    s_add_u32 s62, s60, s61
    v_lshl_add_u32 v{AX2(0)}, v2, 4, s62
    s_xor_b32 s62, s62, 4096
    v_lshl_add_u32 v{AX2(1)}, v2, 4, s62
    v_lshrrev_b32 v7, 2, v4
    v_lshl_add_u32 v7, v3, 2, v7     ; row = 4g + (i>>2)
    v_lshl_add_u32 v9, v7, 7, v8
    s_lshl_b32 s54, s53, 13
    s_add_u32 s54, s54, {BB}
    v_add_u32 v9, s54, v9
    v_bfe_u32 v11, v7, 1, 2
    v_lshl_add_u32 v{AW2(0)}, v11, 5, v9
    v_xor_b32 v{AW2(1)}, 32, v{AW2(0)}
    v_xor_b32 v{AW2(2)}, 64, v{AW2(0)}
    v_xor_b32 v{AW2(3)}, 0x60, v{AW2(0)}
    v_lshrrev_b32 v8, 1, v3
    v_lshlrev_b32 v7, 4, v10
    v_lshl_add_u32 v7, v8, 3, v7
    s_lshl_b32 s54, s45, 7
    s_lshl_b32 s55, s53, 6
    s_add_u32 s54, s54, s55
    v_add_u32 v7, s54, v7
    v_lshlrev_b32 v{VC2}, 1, v7
    s_lshl_b32 s54, s46, 7
    s_lshl_b32 s55, s52, 6
    s_add_u32 s54, s54, s55
    s_lshl_b32 s55, s44, 5
    s_add_u32 s54, s54, s55
    v_add_u32 v9, s54, v4
    v_lshl_add_u32 v{VROW}, v9, 11, v{VC2}
    s_lshl_b32 s54, s46, 3
    s_add_u32 s54, s54, s45
    s_lshl_b32 s54, s54, 1
    s_add_u32 s54, s54, s44
    s_lshl_b32 s54, s54, 2
    s_add_u32 s68, s54, s3
    s_xor_b32 s69, s68, 4
    s_mul_i32 s54, s68, {exw}
    v_lshl_add_u32 v{VEXR}, v2, 4, s54
    s_mul_i32 s54, s69, {exw}
    v_lshl_add_u32 v{VEXS}, v2, 4, s54
    s_lshl_b32 s68, s68, 6
    s_lshl_b32 s69, s69, 6
    s_add_u32 s68, s68, 4096
    s_add_u32 s69, s69, 4096
    v_mov_b32 v6, s68
    v_mov_b32 v7, s69
    v_mov_b32 v4, {f32(-2*0.7978845608028654*LOG2E*0.044715)}
    v_mov_b32 v5, {f32(-2*0.7978845608028654*LOG2E)}
    s_mov_b32 s74, 32768
    s_waitcnt vmcnt(0)
    """)
    for u in range(8):
        a(f"v_lshlrev_b32 v{acc(u,0)}, 16, v{144+2*u}")
        a(f"v_and_b32 v{acc(u,0)+1}, 0xffff0000, v{144+2*u}")
        a(f"v_lshlrev_b32 v{acc(u,0)+2}, 16, v{145+2*u}")
        a(f"v_and_b32 v{acc(u,0)+3}, 0xffff0000, v{145+2*u}")
        for mi in range(1, 4 if u < 6 else 2):
            a(f"v_mov_b64 {vr(acc(u,mi),2)}, {vr(acc(u,0),2)}")
            a(f"v_mov_b64 {vr(acc(u,mi)+2,2)}, {vr(acc(u,0)+2,2)}")
    def reads(kk):
        xs = [f"ds_read_b128 {vr(FX(kk,mi),4)}, v{AX(kk,mi>>1)} offset:{2048*(mi&1)}" for mi in range(4)]
        ws = []
        for u in range(8):
            for rd in range(2):
                if u < 6: ws.append(f"ds_read_b64_tr_b16 {vr(FW(kk,u)+2*rd,2)}, v{AW(u&1)} offset:{8192*(u>>1)+(32*kk+4*rd)*128}")
                else: ws.append(f"ds_read_b64_tr_b16 {vr(FW(kk,u)+2*rd,2)}, v{AW(u-4)} offset:{(32*kk+4*rd)*64}")
        return ws[:2] + xs + ws[2:]
    def mfmas(kk):
        return [f"v_mfma_f32_16x16x32_bf16 {vr(acc(u,mi),4)}, {vr(FW(kk,u),4)}, {vr(FX(kk,mi),4)}, {vr(acc(u,mi),4)}"
                for u in range(8) for mi in range(4 if u < 6 else 2)]
    a("s_barrier")
    stamp(a, 0)
    for r in reads(0): a(r)
    a(f"""
    s_mov_b32 s57, 1
    s_mov_b32 s59, {SLOT}
    s_mov_b32 s58, {SLOT}
    s_mov_b32 s61, 0
    s_waitcnt lgkmcnt(0)
    KG_cloop:
    """)
    upd = [f"v_add_u32 v{r}, s58, v{r}" for r in range(16, 24)]
    M = mfmas(0)
    interleave(a, M[:20], reads(1))
    interleave(a, M[20:24], upd, per=2)
    interleave(a, M[24:27], [])
    a("s_waitcnt lgkmcnt(0)")
    a("s_barrier")
    a(M[27])
    M = mfmas(1)
    interleave(a, M[:20], reads(0))
    ctl = ["s_add_u32 s57, s57, 1", f"s_cmp_eq_u32 s57, {NS}", f"s_cselect_b32 s58, {(-(NS-1)*SLOT) & 0xffffffff}, s59",
           "s_cselect_b32 s57, 0, s57", "s_add_u32 s61, s61, 1", f"s_cmp_lt_u32 s61, {NST}"]
    interleave(a, M[20:26], ctl)
    a(M[26])
    a("s_waitcnt lgkmcnt(0)")
    a(M[27])
    a("s_cbranch_scc1 KG_cloop")
    stamp(a, 1)
    def gelu(x, n, t, out):
        for j in range(0, n, 2): a(f"v_pk_mul_f32 {vr(t+j,2)}, {vr(x[j],2)}, {vr(x[j],2)}")
        for j in range(0, n, 2): a(f"v_pk_fma_f32 {vr(t+j,2)}, {vr(t+j,2)}, v[4:5], v[4:5] op_sel:[0,0,1] op_sel_hi:[1,0,1]")
        for j in range(0, n, 2): a(f"v_pk_mul_f32 {vr(t+j,2)}, {vr(t+j,2)}, {vr(x[j],2)}")
        for j in range(n): a(f"v_exp_f32 v{t+j}, v{t+j}")
        for j in range(0, n, 2): a(f"v_pk_add_f32 {vr(t+j,2)}, {vr(t+j,2)}, 1.0 op_sel_hi:[1,0]")
        for j in range(n): a(f"v_rcp_f32 v{t+j}, v{t+j}")
        for j in range(0, n, 2): a(f"v_pk_mul_f32 {vr(t+j,2)}, {vr(t+j,2)}, {vr(x[j],2)}")
        for j in range(0, n, 2): a(f"v_cvt_pk_bf16_f32 v{out+j//2}, v{t+j}, v{t+j+1}")
    so = ["s70", "s71", "s72", "s73"]
    hp = cfg.h_pol if cfg.l2path else "sc1"
    k = 0
    for b in range(4):
        for mi in range(4 if b < 3 else 2):
            x = [acc(2*b, mi)+r for r in range(4)] + [acc(2*b+1, mi)+r for r in range(4)]
            out = 168 + 4*(k % 6); k += 1
            gelu(x, 8, 160, out)
            if b < 3:
                if b == 2 and mi == 0:
                    a(f"v_add_u32 v{HG}, 4096, v{HG}")
                    a(f"v_add_u32 v{HL(0)}, {2*S2}, v{HL(0)}")
                    a(f"v_add_u32 v{HL(1)}, {2*S2}, v{HL(1)}")
                if "noH" not in cfg.exp: a(f"buffer_store_dwordx4 {vr(out,4)}, v{HG}, s[28:31], {so[mi]} offen offset:{2048*(b&1)} {hp}")
                a(f"ds_write_b128 v{HL(mi>>1)}, {vr(out,4)} offset:{S2*(b&1)+2048*(mi&1)}")
            else:
                if "noH" not in cfg.exp: a(f"buffer_store_dwordx4 {vr(out,4)}, v{HGH}, s[28:31], {so[mi]} offen {hp}")
                a(f"ds_write_b128 v{HLH}, {vr(out,4)} offset:{2048*mi}")
    acc2 = lambda u, mi: 32 + (mi*4+u)*4
    FW2 = lambda s, u: 96 + 32*s + 4*u
    FX2 = lambda s, mi: 96 + 32*s + 16 + 4*mi
    EB2, EG, EX1 = 192, 200, 208
    a(f"s_waitcnt vmcnt({6 if cfg.early else 0}) lgkmcnt(0)")
    stamp(a, 2)
    a("s_barrier")
    def reads2(kk):
        xs = [f"ds_read_b128 {vr(FX2(kk,mi),4)}, v{AX2(mi>>1)} offset:{2048*(mi&1)+1024*kk}" for mi in range(4)]
        ws = []
        for u in range(4):
            for rd in range(2):
                ws.append(f"ds_read_b64_tr_b16 {vr(FW2(kk,u)+2*rd,2)}, v{AW2(u)} offset:{(32*kk+16*rd)*128}")
        return ws[:2] + xs + ws[2:]
    def mfmas2(kk, first=False):
        return [f"v_mfma_f32_16x16x32_bf16 {vr(acc2(u,mi),4)}, {vr(FW2(kk,u),4)}, {vr(FX2(kk,mi),4)}, {'0' if first else vr(acc2(u,mi),4)}"
                for u in range(4) for mi in range(4)]
    upd2 = [f"v_add_u32 v{r}, s58, v{r}" for r in range(245, 251)]
    ctl2 = ["s_add_u32 s57, s57, 1", f"s_cmp_eq_u32 s57, {NS2}", f"s_cselect_b32 s58, {(-(NS2-1)*S2) & 0xffffffff}, s59",
            "s_cselect_b32 s57, 0, s57"]
    def step(M, R, tail):
        a("s_waitcnt lgkmcnt(6)")
        interleave(a, M[:4], R[:4])
        a(f"s_waitcnt lgkmcnt({4 if R else 0})")
        interleave(a, M[4:12], R[4:])
        interleave(a, M[12:15], tail, per=2)
    def stage(bar, first=False, extra=[], last=False, ctl=ctl2):
        M = mfmas2(0, first)
        step(M, reads2(1), upd2)
        a(bar)
        a(M[15])
        M = mfmas2(1)
        step(M, [] if last else reads2(0), ctl + extra)
        return M[15]
    for r in reads2(0): a(r)
    a(f"""
    s_mov_b32 s57, 1
    s_mov_b32 s59, {S2}
    s_mov_b32 s58, {S2}
    s_mov_b32 s61, 3
    """)
    a(stage("s_waitcnt lgkmcnt(0)\ns_barrier", first=True))
    a(stage(""))
    a(stage("s_waitcnt vmcnt(0)\ns_barrier"))
    a("KG_c2loop:")
    if "nomfma" in cfg.exp:
        if "nobar" in cfg.exp: a("s_cmp_eq_u32 s61, 4\ns_cselect_b32 s61, 24, s61")
        a(f"s_barrier\ns_add_u32 s61, s61, 1\ns_cmp_lt_u32 s61, {NST2-1}")
    elif "nords" in cfg.exp:
        for m in mfmas2(0)[:15]: a(m)
        a("s_barrier")
        for m in mfmas2(1): a(m)
        a(f"s_add_u32 s61, s61, 1\ns_cmp_lt_u32 s61, {NST2-1}")
        a(mfmas2(0)[15])
    else:
        a(stage("s_barrier", extra=["s_add_u32 s61, s61, 1", f"s_cmp_lt_u32 s61, {NST2-1}"]))
    a("s_cbranch_scc1 KG_c2loop")
    ld = []
    for k in range(2):
        for p in range(2):
            ld.append(f"buffer_load_dwordx4 {vr(EX1+8*k+4*p,4)}, v{VROW}, s[32:35], {['0','s74'][k]} offen offset:{64*p}")
    for p in range(2):
        ld.append(f"buffer_load_dwordx4 {vr(EB2+4*p,4)}, v{VC2}, s[16:19], 0 offen offset:{64*p}")
        ld.append(f"buffer_load_dwordx4 {vr(EG+4*p,4)}, v{VC2}, s[20:23], 0 offen offset:{64*p}")
    M = mfmas2(0)
    step(M, reads2(1), [])
    a(M[15])
    M = mfmas2(1)
    a("s_waitcnt lgkmcnt(6)")
    for i in range(16):
        if i == 4: a("s_waitcnt lgkmcnt(0)")
        a(M[i])
        if i % 2 == 0: a(ld[i//2])
    stamp(a, 3)
    a(f"""
    v_mov_b32 v8, 1
    s_mov_b32 s54, 4096
    s_nop 4
    """)
    if cfg.ex_bf16:
        for j in range(4):
            for e in range(4):
                a(f"v_cvt_pk_bf16_f32 v{96+4*j+e}, v{64+8*j+2*e}, v{64+8*j+2*e+1}")
            a(f"buffer_store_dwordx4 {vr(96+4*j,4)}, v{VEXS}, s[40:43], 0 offen offset:{1024*j} sc1")
    else:
        for j in range(8):
            a(f"buffer_store_dwordx4 {vr(64+4*j,4)}, v{VEXS}, s[40:43], {'0' if j < 4 else 's54'} offen offset:{1024*(j%4)} sc1")
    a(f"s_waitcnt vmcnt({4 if cfg.ex_bf16 else 8})")
    for j in range(8):
        a(f"v_lshlrev_b32 v{128+2*j}, 16, v{EB2+j}")
        a(f"v_and_b32 v{129+2*j}, 0xffff0000, v{EB2+j}")
        a(f"v_lshlrev_b32 v{144+2*j}, 16, v{EG+j}")
        a(f"v_and_b32 v{145+2*j}, 0xffff0000, v{EG+j}")
    for j in range(16):
        a(f"v_lshlrev_b32 v{160+2*j}, 16, v{EX1+j}")
        a(f"v_and_b32 v{161+2*j}, 0xffff0000, v{EX1+j}")
    for k in range(2):
        for e in range(16): a(f"v_fmac_f32 v{160+16*k+e}, v{128+e}, v{144+e}")
    a(f"""
    s_waitcnt vmcnt(0)
    s_mov_b64 exec, 1
    buffer_store_dword v8, v7, s[64:67], 0 offen sc1
    s_mov_b32 s72, 0
    KG_xpoll:
    buffer_load_dword v9, v6, s[64:67], 0 offen sc1
    s_add_u32 s72, s72, 1
    s_waitcnt vmcnt(0)
    v_cmp_ne_u32 vcc, 1, v9
    s_cmp_gt_u32 s72, {SPIN_MAX}
    s_cbranch_scc1 KG_xpoll_x
    s_cbranch_vccnz KG_xpoll
    KG_xpoll_x:
    s_mov_b64 exec, -1
    """)
    stamp(a, 4)
    nld = 4 if cfg.ex_bf16 else 8
    if cfg.ex_bf16:
        for j in range(4):
            a(f"buffer_load_dwordx4 {vr(96+4*j,4)}, v{VEXR}, s[40:43], 0 offen offset:{1024*j} sc1")
    else:
        for j in range(8):
            a(f"buffer_load_dwordx4 {vr(64+4*j,4)}, v{VEXR}, s[40:43], {'0' if j < 4 else 's54'} offen offset:{1024*(j%4)} sc1")
    for j in range(4):
        k, p = j >> 1, j & 1
        t0 = 32+8*j
        if cfg.ex_bf16:
            a(f"s_waitcnt vmcnt(3)")
            for e in range(4):
                a(f"v_lshlrev_b32 v{64+2*e}, 16, v{96+4*j+e}")
                a(f"v_and_b32 v{65+2*e}, 0xffff0000, v{96+4*j+e}")
            for e in range(8): a(f"v_add_f32 v{t0+e}, v{t0+e}, v{64+e}")
        else:
            a(f"s_waitcnt vmcnt({6-j})")
            for e in range(8): a(f"v_add_f32 v{t0+e}, v{t0+e}, v{64+8*j+e}")
        a("s_nop 1")
        for r in range(4): a(f"v_permlane16_swap_b32 v{t0+r}, v{t0+4+r}")
        a("s_nop 1")
        for e in range(8): a(f"v_fma_f32 v{t0+e}, v{t0+e}, v{144+8*p+e}, v{160+8*j+e}")
        for e in range(4): a(f"v_cvt_pk_bf16_f32 v{112+4*j+e}, v{t0+2*e}, v{t0+2*e+1}")
        a(f"buffer_store_dwordx4 {vr(112+4*j,4)}, v{VROW}, s[36:39], {['0','s74'][k]} offen offset:{64*p} {cfg.out_pol}")
    stamp(a, 5)
    fin(a, kidx, "KG_end")
    return dict(name="kg_kernel", body=a.text(), vgpr=256, sgpr=76, grid=256, block=512, lds=NS2*S2)
```

```python
import sys, math
from asmlib import *

NAME = "adaLN_cond__ssm_conv_h3__mixer_channel_mlp__prompt"
S, D, F = 2048, 1024, 3584
KQ, KK, KV, KSH, KSSM, KSD, KBX, KW1, KB1, KW2, KB2, KC_, KWM, KOUT, KDBG, KWS = [8*i for i in range(16)]
WS_U    = 0x0000000
WS_MODP = 0x0400000
WS_GB   = 0x0480000
WS_Y    = 0x0800000
WS_X1   = 0x0C00000
WS_Y2   = 0x1000000
WS_H    = 0x1400000
WS_EX   = 0x2400000
MB4 = 0x400000
LOG2E = 1.4426950408889634

import struct
def f32(x):
    return "0x%08x" % struct.unpack("<I", struct.pack("<f", x))[0]

WS_ST   = 0x3800000
class Cfg:
    stamps = False
    extra = ""
    fused = True
    fuseA = True
    ul2 = True
    relpoll = 32
    dep = 7
    npf1 = 7
    nb1 = 0
    nb2 = 4
    pf_w1 = True
    exp = ""
    trace = False
    absord = True
    a2_pol = "sc1"
    l2path = True
    wb_mid = False
    h_pol = ""
    early = True
    ex_bf16 = True
    pf_w2 = True
    out_pol = ""
    rt = False
    diag = ""
    pf_pol = ""
    nt_in = ""
    w_pol = ""
    st_pol = "sc1"
cfg = Cfg()

def head(a, nwg, endlbl):
    a(f"s_cmp_ge_u32 s2, {nwg}")
    a(f"s_cbranch_scc1 {endlbl}_x" if cfg.stamps else f"s_cbranch_scc1 {endlbl}")
    if cfg.stamps:
        a("s_memrealtime s[76:77]")
        a("s_memtime s[78:79]")
        a(f"s_load_dwordx2 s[98:99], s[0:1], {KWS}")
        for i in range(80, 92, 2): a(f"s_mov_b64 s[{i}:{i+1}], 0")
        a("v_readfirstlane_b32 s97, v0")

def stamp(a, i):
    if cfg.stamps:
        a(f"{'s_memrealtime' if cfg.rt else 's_memtime'} s[{80+2*i}:{81+2*i}]")

def fin(a, kidx, lbl=None):
    if lbl: a(f"{lbl}:")
    if cfg.stamps:
        a(f"""
        s_waitcnt vmcnt(0)
        s_memrealtime s[92:93]
        s_memtime s[94:95]
        s_waitcnt lgkmcnt(0)
        s_mov_b64 exec, 1
        s_lshr_b32 s97, s97, 6
        s_add_u32 s96, s2, {kidx*256}
        s_lshl_b32 s96, s96, 4
        s_add_u32 s96, s96, s97
        s_lshl_b32 s96, s96, 6
        s_add_u32 s96, s96, {WS_ST}
        v_mov_b32 v0, s96
        v_mov_b32 v4, s76
        v_mov_b32 v5, s92
        v_mov_b32 v6, s78
        v_mov_b32 v7, s94
        global_store_dwordx4 v0, v[4:7], s[98:99]
        s_nop 1
        v_mov_b32 v4, s80
        v_mov_b32 v5, s82
        v_mov_b32 v6, s84
        v_mov_b32 v7, s86
        global_store_dwordx4 v0, v[4:7], s[98:99] offset:16
        s_nop 1
        v_mov_b32 v4, s88
        v_mov_b32 v5, s90
        global_store_dwordx2 v0, v[4:5], s[98:99] offset:32
        """)
        if lbl: a(f"{lbl}_x:")
    a("s_endpgm")

def gen_k0():
    a = Asm()
    head(a, 256, "K0_end")
    a(f"""
    s_load_dwordx4 s[4:7], s[0:1], {KK}
    s_load_dwordx2 s[8:9], s[0:1], {KSH}
    s_load_dwordx4 s[12:15], s[0:1], {KC_}
    s_load_dwordx2 s[10:11], s[0:1], {KWS}
    v_lshrrev_b32 v1, 6, v0
    v_and_b32 v2, 63, v0
    v_readfirstlane_b32 s3, v1
    s_and_b32 s44, s2, 7
    s_lshr_b32 s45, s2, 3
    s_lshr_b32 s46, s45, 4
    s_lshl_b32 s44, s44, 1
    s_add_u32 s44, s44, s46          ; cg
    s_and_b32 s45, s45, 15           ; rb
    s_lshl_b32 s46, s45, 7
    s_lshl_b32 s47, s3, 4
    s_add_u32 s46, s46, s47
    s_lshl_b32 s47, s46, 11
    s_lshl_b32 s48, s44, 7
    s_add_u32 s47, s47, s48
    v_lshrrev_b32 v7, 3, v2          ; l>>3
    v_and_b32 v15, 7, v2             ; l&7
    v_lshlrev_b32 v3, 11, v7
    v_lshl_add_u32 v3, v15, 4, v3
    v_add_u32 v3, s47, v3            ; vk
    v_add_u32 v4, 0xffffc000, v3
    s_mul_i32 s49, s3, 5120
    s_mov_b32 s50, 16384
    s_waitcnt lgkmcnt(0)
    """)
    srd(a, 16, 4, MB4); srd(a, 20, 6, MB4); srd(a, 24, 8, 8192)
    srd(a, 28, 10, MB4, WS_U); srd(a, 32, 12, 2048); srd(a, 36, 14, 1024*6144*2); srd(a, 40, 10, 2*6144*4, WS_MODP)
    nt = cfg.nt_in
    a(f"""
    s_add_u32 m0, s49, 1024
    s_nop 0
    buffer_load_dwordx4 v3, s[16:19], 0 offen {nt} lds
    s_add_u32 m0, s49, 2048
    s_nop 0
    buffer_load_dwordx4 v3, s[16:19], s50 offen {nt} lds
    s_add_u32 m0, s49, 3072
    s_nop 0
    buffer_load_dwordx4 v3, s[20:23], 0 offen {nt} lds
    s_add_u32 m0, s49, 4096
    s_nop 0
    buffer_load_dwordx4 v3, s[20:23], s50 offen {nt} lds
    s_mov_b32 m0, s49
    s_mov_b32 exec_lo, 0
    buffer_load_dwordx4 v4, s[16:19], 0 offen {nt} lds
    s_mov_b32 exec_lo, -1
    s_lshl_b32 s51, s44, 9
    v_lshl_add_u32 v5, v2, 3, s51
    buffer_load_dwordx2 v[8:9], v5, s[24:27], 0 offen
    s_cmp_ge_u32 s2, 192
    s_cbranch_scc1 K0_nogemv_ld
    s_lshr_b32 s52, s2, 1
    s_and_b32 s53, s2, 1             ; k half
    s_lshl_b32 s54, s53, 9
    s_lshl_b32 s55, s3, 6
    s_add_u32 s54, s54, s55
    v_lshl_add_u32 v60, v7, 3, s54
    v_lshlrev_b32 v61, 1, v60
    s_mov_b32 s55, 12288
    v_mul_lo_u32 v108, v60, s55
    s_lshl_b32 s55, s52, 7
    v_lshl_add_u32 v109, v15, 4, s55
    v_add_u32 v108, v108, v109
    buffer_load_dwordx4 v[60:63], v61, s[32:35], 0 offen
    s_mov_b32 s55, 0
    """)
    for i in range(8):
        a(f"buffer_load_dwordx4 {vr(64+4*i,4)}, v108, s[36:39], s55 offen {nt}")
        if i < 7: a("s_add_u32 s55, s55, 12288")
    a("""
    s_waitcnt vmcnt(9)
    s_branch K0_phaseA
    K0_nogemv_ld:
    s_waitcnt vmcnt(0)
    K0_phaseA:
    """)
    stamp(a, 0)
    a("""
    v_lshrrev_b32 v5, 4, v2          ; g
    v_and_b32 v6, 15, v2             ; i
    v_lshrrev_b32 v10, 2, v6
    v_and_b32 v11, 3, v6
    v_lshlrev_b32 v10, 7, v10
    v_lshl_add_u32 v10, v5, 5, v10
    v_lshl_add_u32 v10, v11, 3, v10
    v_add_u32 v5, s49, v10
    """)
    for p in range(5):
        a(f"ds_read_b64_tr_b16 {vr(16+2*p,2)}, v5 offset:{512+512*p}")
    for p in range(4):
        a(f"ds_read_b64_tr_b16 {vr(26+2*p,2)}, v5 offset:{3072+512*p}")
    a("""
    v_alignbit_b32 v10, v8, v8, 16   ; A=(w1,w0)
    v_alignbit_b32 v11, v9, v9, 16   ; B=(w3,w2)
    v_and_b32 v12, 0xffff, v8        ; C=(w0,0)
    s_mov_b32 s56, 0xffff
    v_bfi_b32 v13, s56, v9, v8       ; D=(w2,w1)
    v_and_b32 v14, 0xffff0000, v9    ; E=(0,w3)
    v_lshrrev_b32 v6, 2, v2
    v_lshlrev_b32 v6, 14, v6
    v_and_b32 v50, 3, v2
    v_lshl_add_u32 v6, v50, 4, v6
    s_lshl_b32 s56, s44, 18
    s_lshl_b32 s57, s46, 3           ; (row0/8)*64
    s_add_u32 s56, s56, s57
    v_add_u32 v6, s56, v6
    s_waitcnt lgkmcnt(0)
    """)
    P = lambda q: 16 + q + 2
    ks = lambda t: 34 + t
    for q in range(8):
        a(f"v_dot2_f32_bf16 v{ks(2*q)}, v{P(q)}, v12, 0")
        a(f"v_dot2_f32_bf16 v{ks(2*q+1)}, v{P(q)}, v10, 0")
    for q in range(8):
        a(f"v_dot2_f32_bf16 v{ks(2*q)}, v{P(q-1)}, v13, v{ks(2*q)}")
        a(f"v_dot2_f32_bf16 v{ks(2*q+1)}, v{P(q-1)}, v11, v{ks(2*q+1)}")
    for q in range(8):
        a(f"v_dot2_f32_bf16 v{ks(2*q)}, v{P(q-2)}, v14, v{ks(2*q)}")
    for q in range(8):
        a(f"v_lshlrev_b32 v{110+2*q}, 16, v{26+q}")
        a(f"v_and_b32 v{111+2*q}, 0xffff0000, v{26+q}")
    for t in range(16):
        a(f"v_mul_f32 v{ks(t)}, v{ks(t)}, v{110+t}")
    for h in range(2):
        for j in range(4):
            a(f"v_cvt_pk_bf16_f32 v{52+4*h+j}, v{ks(8*h+7-2*j)}, v{ks(8*h+6-2*j)}")
    a(f"buffer_store_dwordx4 v[52:55], v6, s[28:31], 0 offen {cfg.st_pol}")
    a(f"buffer_store_dwordx4 v[56:59], v6, s[28:31], 0 offen offset:64 {cfg.st_pol}")
    stamp(a, 1)
    a("""
    s_cmp_ge_u32 s2, 192
    s_cbranch_scc1 K0_end
    s_waitcnt vmcnt(10)
    """)
    for q in range(4):
        a(f"v_lshlrev_b32 v{110+2*q}, 16, v{60+q}")
        a(f"v_and_b32 v{111+2*q}, 0xffff0000, v{60+q}")
    for i in range(8): a(f"v_mul_f32 v{118+i}, {f32(-LOG2E)}, v{110+i}")
    for i in range(8): a(f"v_exp_f32 v{118+i}, v{118+i}")
    a("s_nop 0")
    for i in range(8): a(f"v_add_f32 v{118+i}, 1.0, v{118+i}")
    for i in range(8): a(f"v_rcp_f32 v{118+i}, v{118+i}")
    a("s_nop 0")
    for i in range(8): a(f"v_mul_f32 v{110+i}, v{110+i}, v{118+i}")
    for q in range(4): a(f"v_cvt_pk_bf16_f32 v{96+q}, v{110+2*q}, v{111+2*q}")
    a("s_mov_b32 s56, 0x05040100")
    a("s_mov_b32 s57, 0x07060302")
    for q in range(4):
        a(f"s_waitcnt vmcnt({2 + 6 - 2*q})")
        for j in range(4):
            w0 = 64 + 8*q + j; w1 = w0 + 4
            a(f"v_perm_b32 v{110+2*j}, v{w1}, v{w0}, s56")
            a(f"v_perm_b32 v{111+2*j}, v{w1}, v{w0}, s57")
        for j in range(8):
            src2 = "0" if q == 0 else f"v{100+j}"
            a(f"v_dot2_f32_bf16 v{100+j}, v{110+j}, v{96+q}, {src2}")
    stamp(a, 2)
    a("s_nop 3")
    for j in range(4): a(f"v_permlane32_swap_b32 v{100+j}, v{104+j}")
    a("s_nop 1")
    for j in range(4): a(f"v_add_f32 v{100+j}, v{100+j}, v{104+j}")
    a("s_nop 1")
    for j in range(2): a(f"v_permlane16_swap_b32 v{100+j}, v{102+j}")
    a("s_nop 1")
    for j in range(2): a(f"v_add_f32 v{100+j}, v{100+j}, v{102+j}")
    a("s_nop 1")
    for j in range(2): a(f"v_add_f32_dpp v{100+j}, v{100+j}, v{100+j} row_ror:8 row_mask:0xf bank_mask:0xf")
    a("""
    v_lshrrev_b32 v110, 4, v2
    v_lshlrev_b32 v110, 3, v110
    v_lshl_add_u32 v110, v15, 5, v110
    s_lshl_b32 s56, s3, 8
    s_add_u32 s56, s56, 40960
    v_add_u32 v110, s56, v110
    ds_write_b64 v110, v[100:101]
    s_waitcnt lgkmcnt(0)
    s_barrier
    s_cmp_lg_u32 s3, 0
    s_cbranch_scc1 K0_end
    v_lshlrev_b32 v110, 2, v2
    """)
    for w in range(8): a(f"ds_read_b32 v{100+w}, v110 offset:{40960+256*w}")
    a("""
    s_mul_i32 s56, s53, 24576
    s_lshl_b32 s57, s52, 8
    s_add_u32 s56, s56, s57
    s_waitcnt lgkmcnt(0)
    v_add_f32 v100, v100, v101
    v_add_f32 v102, v102, v103
    v_add_f32 v104, v104, v105
    v_add_f32 v106, v106, v107
    v_add_f32 v100, v100, v102
    v_add_f32 v104, v104, v106
    v_add_f32 v100, v100, v104
    buffer_store_dword v100, v110, s[40:43], s56 offen
    """)
    fin(a, 0, "K0_end")
    return dict(name="k0_kernel", body=a.text(), vgpr=128, sgpr=64, grid=256, block=512, lds=43008)

CP_STR, CH_STR = 4160, 16640
UR_BASE, UR_STR = 4*16640, 4640
def gen_k1():
    a = Asm()
    head(a, 256, "K1_end")
    a(f"""
    s_load_dwordx4 s[4:7], s[0:1], {KSSM}
    s_load_dwordx2 s[10:11], s[0:1], {KWS}
    v_lshrrev_b32 v1, 6, v0
    v_and_b32 v2, 63, v0
    v_readfirstlane_b32 s3, v1
    s_and_b32 s44, s2, 7
    s_lshr_b32 s45, s2, 3
    s_lshl_b32 s44, s44, 5
    s_add_u32 s44, s44, s45          ; cq
    s_lshl_b32 s45, s44, 2
    s_add_u32 s45, s45, s3           ; channel d
    s_lshl_b32 s46, s45, 12
    v_lshl_add_u32 v3, v2, 4, s46
    s_lshl_b32 s47, s44, 14          ; cq*16384
    s_lshl_b32 s48, s3, 12
    s_add_u32 s48, s48, s47
    v_lshl_add_u32 v4, v2, 4, s48    ; U offset
    s_mul_i32 s49, s3, {CH_STR}      ; chbase
    s_waitcnt lgkmcnt(0)
    """)
    srd(a, 16, 4, MB4); srd(a, 20, 6, 2048); srd(a, 24, 10, MB4, WS_U); srd(a, 28, 10, MB4, WS_Y)
    nt = cfg.nt_in
    for j in range(4):
        a(f"buffer_load_dwordx4 {vr(176+4*j,4)}, v4, s[24:27], 0 offen offset:{1024*j}")
    for j in range(4):
        for sft in range(3):
            a(f"buffer_load_dwordx4 {vr(32+12*j+4*sft,4)}, v3, s[16:19], 0 offen offset:{1024*j+4*sft} {nt}")
    a(f"""
    s_lshl_b32 s50, s45, 1
    v_mov_b32 v5, s50
    buffer_load_ushort v6, v5, s[20:23], 0 offen
    v_and_b32 v7, 3, v2
    v_mul_u32_u24 v7, {UR_STR}, v7
    v_lshrrev_b32 v8, 2, v2
    v_lshlrev_b32 v8, 4, v8
    v_sub_u32 v7, v7, v8
    s_lshl_b32 s50, s3, 10
    s_sub_u32 s50, {UR_BASE + 255*16 - 3*256}, s50
    v_add_u32 v7, s50, v7
    v_mov_b32 v12, 0
    v_mov_b32 v13, 0
    v_mov_b32 v14, 0
    v_mov_b32 v15, 0
    s_mul_i32 s51, s3, {UR_STR}
    s_add_u32 s51, s51, {UR_BASE}    ; URc
    v_lshl_add_u32 v8, v2, 4, s51
    s_mov_b64 exec, 0x3fffffff
    ds_write_b128 v8, v[12:15] offset:4096
    s_mov_b64 exec, -1
    v_lshl_add_u32 v9, v2, 4, s49
    v_and_b32 v10, 15, v2            ; i' / a'
    v_lshrrev_b32 v11, 4, v2         ; g
    v_add_u32 v16, 1, v10            ; o+16
    v_and_b32 v17, 3, v16            ; c'
    v_sub_u32 v16, v16, v17          ; o-c'+16
    v_lshlrev_b32 v16, 1, v16        ; 2(o-c')+32
    v_mul_u32_u24 v17, {CP_STR}, v17
    v_add_u32 v16, v16, v17
    v_lshl_add_u32 v16, v11, 4, v16
    v_add_u32 v16, s49, v16          ; vA
    v_lshlrev_b32 v17, 5, v10
    v_sub_u32 v17, 480, v17
    v_lshl_add_u32 v17, v11, 4, v17
    v_add_u32 v17, s51, v17          ; vB
    ; e = 15 - i' - 8g
    v_lshlrev_b32 v18, 3, v11
    v_add_u32 v18, v18, v10
    v_sub_u32 v18, 15, v18
    s_waitcnt vmcnt(13)
    """)
    stamp(a, 0)
    for j in range(4):
        a(f"ds_write_b128 v7, {vr(176+4*j,4)} offset:{256*(3-j)}")
    for j in range(4):
        A, B, C = 32+12*j, 36+12*j, 40+12*j
        a(f"s_waitcnt vmcnt({1+3*(3-j)})")
        o1, o3 = 80+8*j, 84+8*j
        for i in range(4): a(f"v_alignbit_b32 v{o1+i}, v{B+i}, v{A+i}, 16")
        for i in range(4): a(f"v_alignbit_b32 v{o3+i}, v{C+i}, v{B+i}, 16")
        a(f"ds_write_b128 v9, {vr(A,4)} offset:{32+1024*j}")
        a(f"ds_write_b128 v9, {vr(B,4)} offset:{2*CP_STR+32+1024*j}")
        a(f"ds_write_b128 v9, {vr(o1,4)} offset:{CP_STR+32+1024*j}")
        a(f"ds_write_b128 v9, {vr(o3,4)} offset:{3*CP_STR+32+1024*j}")
    a(f"""
    v_readfirstlane_b32 s52, v32
    v_readfirstlane_b32 s53, v33
    s_nop 1
    s_lshl_b32 s54, s52, 16
    s_lshr_b32 s55, s52, 16
    s_lshl_b32 s56, s53, 16
    s_or_b32 s55, s55, s56
    v_writelane_b32 v15, s54, 3
    v_writelane_b32 v15, s52, 5
    v_writelane_b32 v14, s54, 7
    v_writelane_b32 v15, s55, 7
    v_lshrrev_b32 v19, 1, v2
    v_mul_u32_u24 v19, {CP_STR}, v19
    v_and_b32 v20, 1, v2
    v_lshl_add_u32 v19, v20, 4, v19
    v_add_u32 v19, s49, v19
    s_mov_b64 exec, 0xff
    ds_write_b128 v19, v[12:15]
    s_mov_b64 exec, -1
    s_waitcnt vmcnt(0)
    v_lshlrev_b32 v21, 16, v6
    """)
    for j in range(4):
        a(f"v_cmp_eq_u32 vcc, {2*j}, v18")
        a("s_nop 1")
        a(f"v_cndmask_b32 v{24+j}, 0, v6, vcc")
        a(f"v_cmp_eq_u32 vcc, {2*j+1}, v18")
        a("s_nop 1")
        a(f"v_cndmask_b32 v{24+j}, v{24+j}, v21, vcc")
    a("s_waitcnt lgkmcnt(0)")
    a("s_barrier")
    stamp(a, 1)
    ACC = 192
    FA = lambda s, w: 32 + 64*s + 4*w
    FB = lambda s, v: 64 + 64*s + 4*v
    def reads(z0):
        s = z0 & 1
        R = []
        for i in range(8):
            R.append(f"ds_read_b128 {vr(FB(s,i),4)}, v17 offset:{512*(7-i)+64*z0}")
            R.append(f"ds_read_b64 {vr(FA(s,i),2)}, v16 offset:{512*i+64*z0}")
            R.append(f"ds_read_b64 {vr(FA(s,i)+2,2)}, v16 offset:{512*i+64*z0+8}")
        return R
    for r in reads(0): a(r)
    a("s_waitcnt lgkmcnt(0)")
    for n in range(8):
        a(f"v_mfma_f32_16x16x32_bf16 {vr(ACC+4*n,4)}, v[24:27], {vr(FB(0,n),4)}, 0")
    for z0 in range(8):
        s = z0 & 1
        R = reads(z0+1) if z0 < 7 else []
        M = [(w, v) for w in range(8) for v in range(8-w)]
        for i, (w, v) in enumerate(M):
            a(f"v_mfma_f32_16x16x32_bf16 {vr(ACC+4*(w+v),4)}, {vr(FA(s,w),4)}, {vr(FB(s,v),4)}, {vr(ACC+4*(w+v),4)}")
            if i < len(R): a(R[i])
        if z0 < 7: a("s_waitcnt lgkmcnt(0)")
    stamp(a, 2)
    a(f"""
    v_lshlrev_b32 v20, 5, v10
    v_lshl_add_u32 v20, v11, 3, v20
    v_add_u32 v20, s49, v20
    s_lshl_b32 s50, s3, 10
    v_lshl_add_u32 v21, v2, 2, s50
    s_mov_b32 s56, 0x05040100
    s_mov_b32 s57, 0x07060302
    s_nop 4
    """)
    for n in range(8):
        a(f"v_cvt_pk_bf16_f32 v{32+2*n}, v{ACC+4*n}, v{ACC+4*n+1}")
        a(f"v_cvt_pk_bf16_f32 v{33+2*n}, v{ACC+4*n+2}, v{ACC+4*n+3}")
        a(f"ds_write_b64 v20, {vr(32+2*n,2)} offset:{512*n}")
    a("s_waitcnt lgkmcnt(0)")
    a("s_barrier")
    for j in range(4):
        a(f"ds_read2st64_b32 {vr(64+4*j,2)}, v21 offset0:{j} offset1:{65+j}")
        a(f"ds_read2st64_b32 {vr(66+4*j,2)}, v21 offset0:{130+j} offset1:{195+j}")
    for j in range(4):
        a(f"s_waitcnt lgkmcnt({6-2*j})")
        b = 64+4*j; o = 96+4*j
        a(f"v_perm_b32 v{o}, v{b+1}, v{b}, s56")
        a(f"v_perm_b32 v{o+1}, v{b+3}, v{b+2}, s56")
        a(f"v_perm_b32 v{o+2}, v{b+1}, v{b}, s57")
        a(f"v_perm_b32 v{o+3}, v{b+3}, v{b+2}, s57")
        a(f"buffer_store_dwordx4 {vr(o,4)}, v4, s[28:31], 0 offen offset:{1024*j} {cfg.st_pol}")
    fin(a, 1, "K1_end")
    return dict(name="k1_kernel", body=a.text(), vgpr=224, sgpr=64, grid=256, block=256, lds=UR_BASE+4*UR_STR)

def wave_stats(a, s1, s2, t, mean_rs, rstd):
    steps = ["quad_perm:[1,0,3,2] row_mask:0xf", "quad_perm:[2,3,0,1] row_mask:0xf", "row_half_mirror row_mask:0xf",
             "row_mirror row_mask:0xf", "row_bcast:15 row_mask:0xa", "row_bcast:31 row_mask:0xc"]
    a("s_nop 1")
    for st in steps:
        a(f"v_add_f32_dpp v{s1}, v{s1}, v{s1} {st} bank_mask:0xf")
        a(f"v_add_f32_dpp v{s2}, v{s2}, v{s2} {st} bank_mask:0xf")
        a("s_nop 0")
    a(f"""
    v_readlane_b32 s60, v{s1}, 63
    v_readlane_b32 s61, v{s2}, 63
    s_nop 1
    v_mul_f32 v{t}, s60, v250             ; mean
    v_mul_f32 v{rstd}, s61, v250          ; E[x^2]
    v_fma_f32 v{rstd}, -v{t}, v{t}, v{rstd}
    v_max_f32 v{rstd}, 0, v{rstd}
    v_add_f32 v{rstd}, {f32(1e-5)}, v{rstd}
    v_rsq_f32 v{rstd}, v{rstd}
    s_nop 0
    v_mul_f32 v{mean_rs}, v{t}, v{rstd}
    v_sub_f32 v{mean_rs}, 0, v{mean_rs}
    """.replace("v250", "v126"))

def gen_kb():
    a = Asm()
    head(a, 256, "KB_end")
    MODL = 16384
    a(f"""
    s_load_dwordx2 s[4:5], s[0:1], {KQ}
    s_load_dwordx2 s[10:11], s[0:1], {KWS}
    v_lshrrev_b32 v1, 6, v0
    v_and_b32 v2, 63, v0
    v_readfirstlane_b32 s3, v1
    s_and_b32 s44, s2, 7
    s_lshr_b32 s45, s2, 3
    s_lshl_b32 s44, s44, 5
    s_add_u32 s44, s44, s45
    s_lshl_b32 s45, s44, 3
    s_add_u32 s45, s45, s3           ; row
    s_lshl_b32 s46, s45, 11
    v_lshl_add_u32 v3, v2, 4, s46
    v_lshrrev_b32 v4, 2, v2
    v_and_b32 v5, 7, v4
    v_lshlrev_b32 v5, 1, v5
    v_lshrrev_b32 v4, 3, v4
    v_add_u32 v5, v5, v4             ; G (0..15)
    v_lshrrev_b32 v6, 3, v5
    v_and_b32 v7, 3, v2
    v_xor_b32 v6, v6, v7
    v_lshlrev_b32 v5, 14, v5
    s_lshl_b32 s47, s3, 19           ; (2w*16)*16384
    s_lshl_b32 s48, s44, 6
    s_add_u32 s47, s47, s48
    v_add_u32 v5, s47, v5
    v_lshl_add_u32 v8, v6, 4, v5
    v_xor_b32 v6, 2, v6
    v_lshl_add_u32 v9, v6, 4, v5
    v_lshlrev_b32 v10, 4, v0
    s_mov_b32 s49, 0x40000
    s_mov_b32 s50, 8192
    s_mov_b32 s51, 16384
    s_mov_b32 s52, 24576
    s_mov_b32 s53, 32768
    s_mov_b32 s54, 40960
    s_waitcnt lgkmcnt(0)
    """)
    srd(a, 16, 4, MB4); srd(a, 20, 10, MB4, WS_Y); srd(a, 24, 10, 2*6144*4, WS_MODP)
    srd(a, 28, 10, MB4, WS_X1); srd(a, 32, 10, MB4, WS_Y2); srd(a, 36, 10, 4096+65536, 0x3000000)
    a("""
    s_mul_i32 s55, s2, 272
    v_lshl_add_u32 v11, v0, 2, s55
    v_mov_b32 v12, 0
    v_cmp_gt_u32 vcc, 68, v0
    s_and_saveexec_b64 s[56:57], vcc
    s_cbranch_execz KB_nz
    buffer_store_dword v12, v11, s[36:39], 0 offen
    KB_nz:
    s_mov_b64 exec, -1
    """)
    a(f"""
    s_lshl_b32 s55, s3, 11
    s_mov_b32 m0, s55
    buffer_load_dwordx4 v[16:19], v10, s[24:27], 0 offen
    buffer_load_dwordx4 v8, s[20:23], 0 offen lds
    s_add_u32 m0, s55, 1024
    buffer_load_dwordx4 v[20:23], v10, s[24:27], s52 offen
    buffer_load_dwordx4 v9, s[20:23], s49 offen lds
    buffer_load_dwordx4 v[24:27], v10, s[24:27], s50 offen
    buffer_load_dwordx4 v[28:31], v10, s[24:27], s53 offen
    buffer_load_dwordx4 v[32:35], v10, s[24:27], s51 offen
    buffer_load_dwordx4 v[36:39], v10, s[24:27], s54 offen
    buffer_load_dwordx4 v[40:43], v3, s[16:19], 0 offen {cfg.nt_in}
    buffer_load_dwordx4 v[44:47], v3, s[16:19], 0 offen offset:1024 {cfg.nt_in}
    v_lshrrev_b32 v11, 7, v0         ; (vec&1)*2 + h
    v_lshlrev_b32 v11, 11, v11
    v_and_b32 v12, 1, v0
    v_lshl_add_u32 v11, v12, 10, v11
    v_bfe_u32 v12, v0, 1, 6
    v_lshl_add_u32 v11, v12, 4, v11
    v_cmp_le_u32 vcc, 256, v0
    v_mov_b32 v126, {f32(1.0/1024)}
    s_nop 0
    v_cndmask_b32_e64 v13, 0, 1.0, vcc
    v_sub_f32 v14, 1.0, v13
    v_lshrrev_b32 v4, 3, v2
    v_lshlrev_b32 v4, 10, v4
    v_and_b32 v5, 7, v2
    v_lshl_add_u32 v4, v5, 6, v4
    v_bfe_u32 v5, v2, 2, 2
    s_lshr_b32 s56, s3, 1
    v_xor_b32 v5, s56, v5
    v_lshl_add_u32 v4, v5, 4, v4
    s_and_b32 s56, s3, 1
    s_lshl_b32 s56, s56, 3
    v_add_u32 v4, s56, v4
    v_lshlrev_b32 v5, 4, v2
    s_waitcnt vmcnt(2)
    """)
    stamp(a, 0)
    for i in range(3):
        for e in range(4):
            a(f"v_add_f32 v{16+8*i+e}, v{16+8*i+e}, v{20+8*i+e}")
        if i != 1:
            for e in range(4):
                a(f"v_add_f32 v{16+8*i+e}, v{16+8*i+e}, v{13 if i == 0 else 14}")
        a(f"ds_write_b128 v11, {vr(16+8*i,4)} offset:{MODL+8192*i}")
    srd(a, 40, 10, 2048, WS_GB)
    a("""
    s_cmp_lg_u32 s2, 0
    s_cbranch_scc1 KB_nogb
    s_cmp_lt_u32 s3, 4
    s_cbranch_scc1 KB_nogb
    v_cvt_pk_bf16_f32 v36, v32, v33
    v_cvt_pk_bf16_f32 v37, v34, v35
    v_lshlrev_b32 v38, 3, v0
    v_add_u32 v38, 0xfffff800, v38
    buffer_store_dwordx2 v[36:37], v38, s[40:43], 0 offen
    KB_nogb:
    """)
    a("s_waitcnt vmcnt(0)")
    Q, Y, T = 48, 64, 80
    for j in range(8):
        a(f"v_lshlrev_b32 v{Q+2*j}, 16, v{40+j}")
        a(f"v_and_b32 v{Q+2*j+1}, 0xffff0000, v{40+j}")
    a("s_waitcnt lgkmcnt(0)")
    a("s_barrier")
    stamp(a, 1)
    for h in range(2):
        for e in range(2):
            a(f"ds_read_b64 {vr(40+4*h+2*e,2)}, v4 offset:{8192*h+512*e}")
    def modread(vec, dst):
        for h in range(2):
            for half in range(2):
                a(f"ds_read_b128 {vr(dst+8*h+4*half,4)}, v5 offset:{MODL+4096*vec+2048*h+1024*half}")
    M0, M1, M2 = 16, 96, 112
    M2 = 128
    modread(1, M0); modread(0, M1); modread(2, M2)
    def stats(X):
        a(f"v_add_f32 v6, v{X}, v{X+1}")
        a(f"v_mul_f32 v7, v{X}, v{X}")
        a(f"v_fmac_f32 v7, v{X+1}, v{X+1}")
        for j in range(2, 16):
            a(f"v_add_f32 v6, v6, v{X+j}")
            a(f"v_fmac_f32 v7, v{X+j}, v{X+j}")
        wave_stats(a, 6, 7, 8, 9, 10)
    stats(Q)
    a("s_waitcnt lgkmcnt(0)")
    for j in range(8):
        a(f"v_lshlrev_b32 v{Y+2*j}, 16, v{40+j}")
        a(f"v_and_b32 v{Y+2*j+1}, 0xffff0000, v{40+j}")
    for j in range(16): a(f"v_fma_f32 v{T+j}, v{Q+j}, v10, v9")
    for j in range(16): a(f"v_fma_f32 v{T+j}, v{T+j}, v{M0+j}, v{M1+j}")
    modread(4, M0); modread(3, M1)
    for j in range(16): a(f"v_mul_f32 v{T+j}, v{T+j}, v{Y+j}")
    for j in range(16): a(f"v_fmac_f32 v{Q+j}, v{T+j}, v{M2+j}")
    for j in range(8): a(f"v_cvt_pk_bf16_f32 v{40+j}, v{Q+2*j}, v{Q+2*j+1}")
    a(f"buffer_store_dwordx4 v[40:43], v3, s[28:31], 0 offen {cfg.st_pol}")
    a(f"buffer_store_dwordx4 v[44:47], v3, s[28:31], 0 offen offset:1024 {cfg.st_pol}")
    stats(Q)
    a("s_waitcnt lgkmcnt(0)")
    for j in range(16): a(f"v_fma_f32 v{T+j}, v{Q+j}, v10, v9")
    for j in range(16): a(f"v_fma_f32 v{T+j}, v{T+j}, v{M0+j}, v{M1+j}")
    stats(T)
    for j in range(16): a(f"v_fma_f32 v{T+j}, v{T+j}, v10, v9")
    for j in range(8): a(f"v_cvt_pk_bf16_f32 v{Y+j}, v{T+2*j}, v{T+2*j+1}")
    stamp(a, 2)
    a(f"buffer_store_dwordx4 {vr(Y,4)}, v3, s[32:35], 0 offen {cfg.st_pol}")
    a(f"buffer_store_dwordx4 {vr(Y+4,4)}, v3, s[32:35], 0 offen offset:1024 {cfg.st_pol}")
    fin(a, 2, "KB_end")
    return dict(name="kb_kernel", body=a.text(), vgpr=144, sgpr=64, grid=256, block=512, lds=MODL+24576)

def gen_diag():
    ka, wa, fa, kb, wb, fb = [int(x) for x in cfg.diag.split(",")]
    off = lambda k, w, f: WS_ST + ((k*256)*16 + w)*64 + 4*f
    first = 6 if "pf" in cfg.extra else 0
    a = Asm()
    a(f"""
    s_cmp_lg_u32 s2, 0
    s_cbranch_scc1 DG_end
    s_load_dwordx2 s[4:5], s[0:1], {KWS}
    s_waitcnt lgkmcnt(0)
    s_add_u32 s6, s4, {off(first,0,0)}
    s_addc_u32 s7, s5, 0
    s_add_u32 s8, s4, {off(ka,wa,fa)}
    s_addc_u32 s9, s5, 0
    s_add_u32 s10, s4, {off(kb,wb,fb)}
    s_addc_u32 s11, s5, 0
    s_load_dword s12, s[6:7], 0
    s_load_dword s13, s[8:9], 0
    s_load_dword s14, s[10:11], 0
    s_waitcnt lgkmcnt(0)
    s_sub_u32 s14, s14, s13
    s_min_u32 s14, s14, 60000
    {"s_lshl_b32 s14, s14, 2" if (fa < 2 or cfg.rt) else "s_lshr_b32 s14, s14, 2"}
    s_add_u32 s14, s14, 20000
    s_mov_b32 s15, 0
    DG_loop:
    s_memrealtime s[16:17]
    s_waitcnt lgkmcnt(0)
    s_sub_u32 s16, s16, s12
    s_add_u32 s15, s15, 1
    s_cmp_gt_u32 s15, 200000
    s_cbranch_scc1 DG_end
    s_cmp_lt_u32 s16, s14
    s_cbranch_scc1 DG_loop
    DG_end:
    s_endpgm
    """)
    return dict(name="dg_kernel", body=a.text(), vgpr=8, sgpr=32, grid=8, block=64, lds=0)

def gen_nop():
    a = Asm()
    a("s_endpgm")
    return dict(name="nop_kernel", body=a.text(), vgpr=8, sgpr=16, grid=256, block=64, lds=0)

def gen_pf():
    a = Asm()
    head(a, 256, "PF_end")
    a(f"""
    s_load_dwordx2 s[4:5], s[0:1], {KW1}
    s_load_dwordx2 s[6:7], s[0:1], {KW2}
    s_mul_i32 s44, s2, 28672
    v_lshl_add_u32 v1, v0, 4, s44
    s_waitcnt lgkmcnt(0)
    """)
    srd(a, 16, 4, 7340032); srd(a, 20, 6, 7340032)
    a("s_mov_b32 s45, 0")
    for i in range(7):
        a(f"buffer_load_dwordx4 {vr(4+8*i,4)}, v1, s[16:19], s45 offen {cfg.pf_pol}")
        a(f"buffer_load_dwordx4 {vr(8+8*i,4)}, v1, s[20:23], s45 offen {cfg.pf_pol}")
        a("s_add_u32 s45, s45, 4096")
    a("s_waitcnt vmcnt(0)")
    fin(a, 6, "PF_end")
    return dict(name="pf_kernel", body=a.text(), vgpr=64, sgpr=64, grid=256, block=256, lds=0)

def emit(kernels):
    ref = open(f"cdna_kernels/{NAME}.s.ref").read().splitlines()
    hdr = [l for l in ref if l.startswith(";") and "@launch" not in l and "Override" not in l and "grid=ceil" not in l]
    out = list(hdr)
    for k in kernels:
        out.append(f"; @launch kernel={k['name']} grid=({k['grid']},1,1) block=({k['block']},1,1) lds={k['lds']}")
    out.append('.amdgcn_target "amdgcn-amd-amdhsa--gfx950"')
    out.append(".text")
    seen = []
    for k in kernels:
        if k['name'] in seen: continue
        seen.append(k['name'])
        out.append(kernel_text(k['name'], k['body']))
    out.append('.section .rodata,"a"')
    seen = []
    for k in kernels:
        if k['name'] in seen: continue
        seen.append(k['name'])
        out.append(".p2align 6")
        out.append(kernel_desc(k['name'], k['vgpr'], 102 if cfg.stamps else k['sgpr'], k.get('accum')))
    return "\n".join(out) + "\n"

def main():
    import gemm
    for arg in sys.argv[2:]:
        k, v = arg.split("=")
        cur = getattr(cfg, k)
        setattr(cfg, k, (v == "1") if isinstance(cur, bool) else type(cur)(v.replace("+", " ")))
    import kg
    if cfg.fused: ks = [gen_k0(), gen_k1(), gen_kb(), kg.gen_kg()]
    else: ks = [gen_k0(), gen_k1(), gen_kb(), gemm.gen_kc(), gemm.gen_kd(), gemm.gen_ke()]
    if cfg.fuseA:
        import ka
        ks = [ka.gen_ka()] + ks[2:]
    if "pf" in cfg.extra: ks = [gen_pf()] + ks
    if "nop" in cfg.extra: ks = ks + [gen_nop()]
    if "nop4" in cfg.extra: ks = ks + [gen_nop()]*3
    if cfg.diag: ks = ks + [gen_diag()]
    dst = sys.argv[1] if len(sys.argv) > 1 else f"cdna_kernels/{NAME}.s"
    open(dst, "w").write(emit(ks))
    print("wrote", dst)

if __name__ == "__main__":
    import gen
    gen.main()
```

```python
from asmlib import *
from gen import *

WS_FA = 0x3100000
SPIN_MAX = 1 << 16
STG = UR_BASE + 4*UR_STR
RED = STG + 8*5120

def gen_ka(kidx=0):
    a = Asm()
    head(a, 256, "KA_end")
    nt = cfg.nt_in
    a(f"""
    s_load_dwordx4 s[4:7], s[0:1], {KK}
    s_load_dwordx2 s[10:11], s[0:1], {KWS}
    s_load_dwordx4 s[12:15], s[0:1], {KSH}
    v_lshrrev_b32 v1, 6, v0
    v_and_b32 v2, 63, v0
    v_readfirstlane_b32 s3, v1
    s_and_b32 s44, s2, 7
    s_lshr_b32 s45, s2, 3
    s_lshl_b32 s43, s44, 5
    s_add_u32 s43, s43, s45          ; cq
    s_lshr_b32 s44, s43, 4           ; cg
    s_and_b32 s45, s45, 15
    s_lshl_b32 s46, s45, 7
    s_lshl_b32 s47, s3, 4
    s_add_u32 s46, s46, s47
    s_lshl_b32 s47, s46, 11
    s_lshl_b32 s48, s44, 7
    s_add_u32 s47, s47, s48
    v_lshrrev_b32 v7, 3, v2          ; l>>3
    v_and_b32 v15, 7, v2             ; l&7
    v_lshlrev_b32 v3, 11, v7
    v_lshl_add_u32 v3, v15, 4, v3
    v_add_u32 v3, s47, v3            ; vk
    v_add_u32 v4, 0xffffc000, v3
    s_mul_i32 s49, s3, 5120
    s_add_u32 s49, s49, {STG}
    s_mov_b32 s50, 16384
    s_mov_b32 s18, {MB4}
    s_mov_b32 s19, 0x20000
    s_mov_b32 s22, {MB4}
    s_mov_b32 s23, 0x20000
    s_mov_b32 s26, 8192
    s_mov_b32 s27, 0x20000
    s_lshl_b32 s51, s44, 9
    v_lshl_add_u32 v5, v2, 3, s51
    s_add_u32 m0, s49, 1024
    s_waitcnt lgkmcnt(0)
    s_mov_b32 s16, s4
    s_mov_b32 s17, s5
    s_mov_b32 s20, s6
    s_mov_b32 s21, s7
    buffer_load_dwordx4 v3, s[16:19], 0 offen {nt} lds
    s_add_u32 m0, s49, 3072
    s_mov_b32 s24, s12
    buffer_load_dwordx4 v3, s[20:23], 0 offen {nt} lds
    s_add_u32 m0, s49, 2048
    s_mov_b32 s25, s13
    buffer_load_dwordx4 v3, s[16:19], s50 offen {nt} lds
    s_add_u32 m0, s49, 4096
    buffer_load_dwordx2 v[8:9], v5, s[24:27], 0 offen
    buffer_load_dwordx4 v3, s[20:23], s50 offen {nt} lds
    s_mov_b32 m0, s49
    s_mov_b32 exec_lo, 0
    buffer_load_dwordx4 v4, s[16:19], 0 offen {nt} lds
    s_mov_b32 exec_lo, -1
    s_lshl_b32 s51, s44, 9
    s_add_u32 s52, s10, s51
    s_addc_u32 s53, s11, 0
    s_add_u32 s52, s52, {WS_FA}
    s_addc_u32 s53, s53, 0
    s_load_dword s42, s[52:53], 256
    s_load_dwordx2 s[4:5], s[0:1], {KSD}
    s_load_dwordx4 s[56:59], s[0:1], {KC_}
    s_load_dwordx2 s[6:7], s[0:1], {KQ}
    s_load_dwordx2 s[8:9], s[0:1], {KW1}
    """)
    srd(a, 28, 10, MB4, WS_U)
    a(f"""
    v_lshrrev_b32 v6, 2, v2
    v_lshlrev_b32 v6, 14, v6
    v_and_b32 v50, 3, v2
    v_lshl_add_u32 v6, v50, 4, v6
    s_lshl_b32 s55, s44, 18
    s_lshl_b32 s63, s46, 3
    s_add_u32 s55, s55, s63
    v_add_u32 v6, s55, v6
    v_lshlrev_b32 v51, 14, v7
    v_lshl_add_u32 v51, v15, 4, v51
    v_add_u32 v51, s55, v51
    s_mov_b32 s40, 0x20000
    s_getreg_b32 s41, hwreg(HW_REG_XCC_ID, 0, 4)
    s_barrier
    """)
    NT = 2 if (cfg.ul2 and "notouch" not in cfg.exp) else 0
    if NT:
        a("buffer_load_dwordx4 v[164:167], v51, s[28:31], 0 offen sc1")
        a("buffer_load_dwordx4 v[168:171], v51, s[28:31], s40 offen sc1")
    a(f"""
    s_cmp_ge_u32 s3, 4
    s_cbranch_scc1 KA_hpre
    """)
    srd(a, 32, 14, MB4)
    a(f"""
    s_lshl_b32 s54, s43, 2
    s_add_u32 s54, s54, s3           ; channel d
    s_lshl_b32 s55, s54, 12
    v_lshl_add_u32 v5, v2, 4, s55
    """)
    KR = 128
    a("s_waitcnt lgkmcnt(0)")
    a("s_add_u32 s42, s42, 0x9e3779b9")
    srd(a, 36, 4, 2048); srd(a, 24, 52, 512)
    a(f"""
    s_lshl_b32 s55, s54, 1
    v_mov_b32 v50, s55
    v_mov_b32 v108, 0
    v_mov_b32 v72, 0
    s_mov_b32 s64, s52
    s_mov_b32 s65, s53
    s_mov_b32 s66, 512
    s_mov_b32 s67, 0x20000
    v_and_b32 v22, 15, v2
    v_lshlrev_b32 v22, 2, v22
    v_and_b32 v23, 16, v2
    v_lshl_add_u32 v127, v23, 3, v22
    s_waitcnt vmcnt({NT})
    """)
    for j in range(4):
        a(f"buffer_load_dwordx4 {vr(KR+6*j,4)}, v5, s[32:35], 0 offen offset:{1024*j} {nt}")
        a(f"buffer_load_dwordx2 {vr(KR+6*j+4,2)}, v5, s[32:35], 0 offen offset:{1024*j+16} {nt}")
    a(f"""
    buffer_load_ushort v126, v50, s[36:39], 0 offen
    buffer_load_dword v160, v127, s[24:27], 0 offen sc1
    s_branch KA_phaseA
    KA_hpre:
    s_waitcnt lgkmcnt(0)
    """)
    srd(a, 32, 56, 2048); srd(a, 36, 58, 1024*6144*2); srd(a, 64, 52, 512)
    a(f"""
    s_add_u32 s42, s42, 0x9e3779b9
    s_lshl_b32 s58, s45, 2
    v_mov_b32 v72, s58
    s_add_u32 s58, s42, s41
    v_mov_b32 v73, s58
    v_mov_b32 v74, s42
    v_and_b32 v75, 15, v2
    v_lshlrev_b32 v75, 2, v75
    """)
    a(f"""
    v_mov_b32 v127, 0
    s_sub_u32 s60, s3, 4             ; hw
    s_lshr_b32 s61, s2, 1
    s_and_b32 s62, s2, 1             ; k half
    s_lshl_b32 s54, s62, 9
    s_lshl_b32 s55, s60, 7
    s_add_u32 s54, s54, s55
    v_lshl_add_u32 v60, v7, 4, s54
    v_lshlrev_b32 v61, 1, v60
    s_mov_b32 s55, 12288
    v_mul_lo_u32 v108, v60, s55
    s_lshl_b32 s55, s61, 7
    v_lshl_add_u32 v109, v15, 4, s55
    v_add_u32 v108, v108, v109
    buffer_load_dwordx4 v[64:67], v61, s[32:35], 0 offen
    buffer_load_dwordx4 v[68:71], v61, s[32:35], 0 offen offset:16
    s_waitcnt vmcnt({2+NT})
    KA_phaseA:
    """)
    stamp(a, 0)
    a("""
    v_lshrrev_b32 v5, 4, v2          ; g
    v_bfe_u32 v10, v2, 2, 2
    v_and_b32 v11, 3, v2
    v_lshlrev_b32 v10, 7, v10
    v_lshl_add_u32 v10, v5, 5, v10
    v_lshl_add_u32 v10, v11, 3, v10
    v_add_u32 v5, s49, v10
    """)
    for p in range(5):
        a(f"ds_read_b64_tr_b16 {vr(16+2*p,2)}, v5 offset:{512+512*p}")
    for p in range(4):
        a(f"ds_read_b64_tr_b16 {vr(26+2*p,2)}, v5 offset:{3072+512*p}")
    a("""
    v_alignbit_b32 v10, v8, v8, 16   ; A=(w1,w0)
    v_alignbit_b32 v11, v9, v9, 16   ; B=(w3,w2)
    v_and_b32 v12, 0xffff, v8        ; C=(w0,0)
    s_mov_b32 s55, 0xffff
    v_bfi_b32 v13, s55, v9, v8       ; D=(w2,w1)
    v_and_b32 v14, 0xffff0000, v9    ; E=(0,w3)
    s_waitcnt lgkmcnt(4)
    """)
    P = lambda q: 16 + q + 2
    ks = lambda t: 34 + t
    for q in range(8):
        a(f"v_dot2_f32_bf16 v{ks(2*q)}, v{P(q)}, v12, 0")
        a(f"v_dot2_f32_bf16 v{ks(2*q+1)}, v{P(q)}, v10, 0")
    for q in range(8):
        a(f"v_dot2_f32_bf16 v{ks(2*q)}, v{P(q-1)}, v13, v{ks(2*q)}")
        a(f"v_dot2_f32_bf16 v{ks(2*q+1)}, v{P(q-1)}, v11, v{ks(2*q+1)}")
    for q in range(8):
        a(f"v_dot2_f32_bf16 v{ks(2*q)}, v{P(q-2)}, v14, v{ks(2*q)}")
    a("s_waitcnt lgkmcnt(0)")
    for h in range(2):
        for q in range(4*h, 4*h+4):
            a(f"v_lshlrev_b32 v{110+2*q}, 16, v{26+q}")
            a(f"v_and_b32 v{111+2*q}, 0xffff0000, v{26+q}")
        for t in range(8*h, 8*h+8):
            a(f"v_mul_f32 v{ks(t)}, v{ks(t)}, v{110+t}")
        for j in range(4):
            a(f"v_cvt_pk_bf16_f32 v{52+4*h+j}, v{ks(8*h+7-2*j)}, v{ks(8*h+6-2*j)}")
        a(f"buffer_store_dwordx4 {vr(52+4*h,4)}, v6, s[28:31], 0 offen offset:{64*h} {'' if cfg.ul2 else 'sc1'}")
    stamp(a, 1)
    a("""
    s_cmp_ge_u32 s3, 4
    s_cbranch_scc1 KA_helper
    """)
    srd(a, 20, 10, MB4, WS_Y)
    a(f"""
    s_mul_i32 s49, s3, {CH_STR}      ; chbase
    s_lshl_b32 s47, s43, 14
    s_lshl_b32 s48, s3, 12
    s_add_u32 s48, s48, s47
    v_lshl_add_u32 v4, v2, 4, s48    ; U / Y offset
    v_and_b32 v7, 3, v2
    v_mul_u32_u24 v7, {UR_STR}, v7
    v_lshrrev_b32 v8, 2, v2
    v_lshlrev_b32 v8, 4, v8
    v_sub_u32 v7, v7, v8
    s_lshl_b32 s50, s3, 10
    s_sub_u32 s50, {UR_BASE + 255*16 - 3*256}, s50
    v_add_u32 v7, s50, v7
    v_mov_b32 v12, 0
    v_mov_b32 v13, 0
    v_mov_b32 v14, 0
    v_mov_b32 v15, 0
    s_mul_i32 s51, s3, {UR_STR}
    s_add_u32 s51, s51, {UR_BASE}    ; URc
    v_lshl_add_u32 v8, v2, 4, s51
    s_mov_b64 exec, 0x3fffffff
    ds_write_b128 v8, v[12:15] offset:4096
    s_mov_b64 exec, -1
    v_lshl_add_u32 v9, v2, 4, s49
    v_and_b32 v10, 15, v2            ; i' / a'
    v_lshrrev_b32 v11, 4, v2         ; g
    v_add_u32 v16, 1, v10
    v_and_b32 v17, 3, v16
    v_sub_u32 v16, v16, v17
    v_lshlrev_b32 v16, 1, v16
    v_mul_u32_u24 v17, {CP_STR}, v17
    v_add_u32 v16, v16, v17
    v_lshl_add_u32 v16, v11, 4, v16
    v_add_u32 v16, s49, v16          ; vA
    v_lshlrev_b32 v17, 5, v10
    v_sub_u32 v17, 480, v17
    v_lshl_add_u32 v17, v11, 4, v17
    v_add_u32 v17, s51, v17          ; vB
    v_lshlrev_b32 v18, 3, v11
    v_add_u32 v18, v18, v10
    v_sub_u32 v18, 15, v18
    v_mov_b32 v22, v127
    s_lshl_b32 s50, s45, 2
    v_mov_b32 v23, s50
    v_mov_b32 v28, s42
    s_add_u32 s50, s42, s41
    v_mov_b32 v30, s50
    v_cmp_le_u32 vcc, 128, v22
    s_nop 1
    v_cndmask_b32 v30, v30, v28, vcc
    """)
    for j in range(4):
        E = KR+6*j
        a(f"s_waitcnt vmcnt({4+2*(3-j)})")
        o1, o2, o3 = 64+12*j, 68+12*j, 72+12*j
        a(f"ds_write_b128 v9, {vr(E,4)} offset:{32+1024*j}")
        for i in range(4): a(f"v_alignbit_b32 v{o1+i}, v{E+i+1}, v{E+i}, 16")
        a(f"ds_write_b128 v9, {vr(o1,4)} offset:{CP_STR+32+1024*j}")
        for i in range(4): a(f"v_mov_b32 v{o2+i}, v{E+i+1}")
        a(f"ds_write_b128 v9, {vr(o2,4)} offset:{2*CP_STR+32+1024*j}")
        for i in range(4): a(f"v_alignbit_b32 v{o3+i}, v{E+i+2}, v{E+i+1}, 16")
        a(f"ds_write_b128 v9, {vr(o3,4)} offset:{3*CP_STR+32+1024*j}")
    a(f"""
    s_waitcnt vmcnt(0)
    s_barrier
    """)
    stamp(a, 2)
    a(f"""
    v_readfirstlane_b32 s54, v{KR}
    v_readfirstlane_b32 s55, v{KR+1}
    s_nop 1
    s_lshl_b32 s56, s54, 16
    s_lshr_b32 s57, s54, 16
    s_lshl_b32 s58, s55, 16
    s_or_b32 s57, s57, s58
    v_writelane_b32 v15, s56, 3
    v_writelane_b32 v15, s54, 5
    v_writelane_b32 v14, s56, 7
    v_writelane_b32 v15, s57, 7
    v_lshrrev_b32 v19, 1, v2
    v_mul_u32_u24 v19, {CP_STR}, v19
    v_and_b32 v20, 1, v2
    v_lshl_add_u32 v19, v20, 4, v19
    v_add_u32 v19, s49, v19
    s_mov_b64 exec, 0xff
    ds_write_b128 v19, v[12:15]
    s_mov_b64 exec, -1
    v_lshlrev_b32 v21, 16, v126
    """)
    for j in range(4):
        a(f"v_cmp_eq_u32 vcc, {2*j}, v18")
        a("s_nop 1")
        a(f"v_cndmask_b32 v{24+j}, 0, v126, vcc")
        a(f"v_cmp_eq_u32 vcc, {2*j+1}, v18")
        a("s_nop 1")
        a(f"v_cndmask_b32 v{24+j}, v{24+j}, v21, vcc")
    ACC = 192
    FA = lambda s, w: 32 + 64*s + 4*w
    FB = lambda s, v: 64 + 64*s + 4*v
    def readsA(z0):
        s = z0 & 1
        R = []
        for i in range(8):
            R.append(f"ds_read_b64 {vr(FA(s,i),2)}, v16 offset:{512*i+64*z0}")
            R.append(f"ds_read_b64 {vr(FA(s,i)+2,2)}, v16 offset:{512*i+64*z0+8}")
        return R
    def readsB(z0):
        s = z0 & 1
        return [f"ds_read_b128 {vr(FB(s,i),4)}, v17 offset:{512*(7-i)+64*z0}" for i in range(8)]
    a("s_waitcnt lgkmcnt(0)")
    for r in readsA(0): a(r)
    a(f"""
    s_mov_b32 s59, 0
    s_cmp_eq_u32 s3, 0
    s_cselect_b32 s58, {cfg.relpoll if cfg.ul2 else -1}, -1
    KA_poll:
    s_cmp_lg_u32 s59, s58
    s_cbranch_scc1 KA_norel
    buffer_wbl2 sc1
    s_waitcnt vmcnt(0)
    s_mov_b64 exec, 1
    buffer_store_dword v28, v23, s[24:27], 0 offen offset:128 sc1
    s_mov_b64 exec, -1
    KA_norel:
    buffer_load_dword v29, v22, s[24:27], 0 offen sc1
    s_add_u32 s59, s59, 1
    s_waitcnt vmcnt(0)
    v_cmp_eq_u32 vcc, v30, v29
    s_cmp_gt_u32 s59, {SPIN_MAX}
    s_cbranch_scc1 KA_poll_x
    s_lshr_b32 s57, vcc_lo, 16
    s_or_b32 s57, s57, vcc_lo
    s_and_b32 s57, s57, 0xffff
    s_cmp_lg_u32 s57, 0xffff
    s_cbranch_scc1 KA_poll
    KA_poll_x:
    s_and_b32 s57, vcc_lo, 0xffff
    s_cmp_eq_u32 s57, 0xffff
    s_cbranch_scc1 KA_near
    s_cmp_gt_u32 s59, s58
    s_cbranch_scc1 KA_acq
    s_cmp_lg_u32 s3, 0
    s_cbranch_scc1 KA_acq
    buffer_wbl2 sc1
    s_waitcnt vmcnt(0)
    s_mov_b64 exec, 1
    buffer_store_dword v28, v23, s[24:27], 0 offen offset:128 sc1
    s_mov_b64 exec, -1
    KA_acq:
    buffer_inv sc1
    s_waitcnt vmcnt(0)
    KA_near:
    """)
    for j in range(4):
        a(f"buffer_load_dwordx4 {vr(176+4*j,4)}, v4, s[28:31], 0 offen offset:{1024*j} sc1")
    a("s_barrier")
    stamp(a, 3)
    for j in range(4):
        a(f"s_waitcnt vmcnt({3-j})" if j < 3 else "s_waitcnt vmcnt(0)")
        a(f"ds_write_b128 v7, {vr(176+4*j,4)} offset:{256*(3-j)}")
    a("s_waitcnt lgkmcnt(0)")
    a("s_barrier")
    stamp(a, 4)
    for r in readsB(0): a(r)
    for n in range(8):
        a(f"s_waitcnt lgkmcnt({7-n})")
        a(f"v_mfma_f32_16x16x32_bf16 {vr(ACC+4*n,4)}, v[24:27], {vr(FB(0,n),4)}, 0")
    a("s_mov_b32 s59, 0")
    a("KA_loop:")
    for z0 in range(2):
        s = z0 & 1
        ra, rb = readsA(z0+1), readsB(z0+1)
        R = ra[:2] + rb + ra[2:]
        if z0 == 1: R += ["v_add_u32 v16, 128, v16", "v_add_u32 v17, 128, v17", "s_add_u32 s59, s59, 1", "s_cmp_lt_u32 s59, 4"]
        M = [(w, v) for w in range(8) for v in range(8-w)]
        for i, (w, v) in enumerate(M):
            if i == 35: a("s_waitcnt lgkmcnt(0)")
            if "nomfA" in cfg.exp: a("s_nop 3")
            else: a(f"v_mfma_f32_16x16x32_bf16 {vr(ACC+4*(w+v),4)}, {vr(FA(s,w),4)}, {vr(FB(s,v),4)}, {vr(ACC+4*(w+v),4)}")
            if i < len(R): a(R[i])
    a("s_cbranch_scc1 KA_loop")
    stamp(a, 5)
    a(f"""
    v_lshlrev_b32 v20, 5, v10
    v_lshl_add_u32 v20, v11, 3, v20
    v_add_u32 v20, s49, v20
    s_lshl_b32 s50, s3, 10
    v_lshl_add_u32 v21, v2, 2, s50
    s_mov_b32 s56, 0x05040100
    s_mov_b32 s57, 0x07060302
    """)
    for n in range(8):
        a(f"v_cvt_pk_bf16_f32 v{32+2*n}, v{ACC+4*n}, v{ACC+4*n+1}")
        a(f"v_cvt_pk_bf16_f32 v{33+2*n}, v{ACC+4*n+2}, v{ACC+4*n+3}")
        a(f"ds_write_b64 v20, {vr(32+2*n,2)} offset:{512*n}")
    a("s_waitcnt lgkmcnt(0)")
    a("s_barrier")
    for j in range(4):
        a(f"ds_read2st64_b32 {vr(64+4*j,2)}, v21 offset0:{j} offset1:{65+j}")
        a(f"ds_read2st64_b32 {vr(66+4*j,2)}, v21 offset0:{130+j} offset1:{195+j}")
    for j in range(4):
        a(f"s_waitcnt lgkmcnt({6-2*j})")
        b = 64+4*j; o = 96+4*j
        a(f"v_perm_b32 v{o}, v{b+1}, v{b}, s56")
        a(f"v_perm_b32 v{o+1}, v{b+3}, v{b+2}, s56")
        a(f"v_perm_b32 v{o+2}, v{b+1}, v{b}, s57")
        a(f"v_perm_b32 v{o+3}, v{b+3}, v{b+2}, s57")
        a(f"buffer_store_dwordx4 {vr(o,4)}, v4, s[20:23], 0 offen offset:{1024*j} {cfg.st_pol}")
    a(f"""
    s_or_b32 s59, s3, s45
    s_cmp_lg_u32 s59, 0
    s_cbranch_scc1 KA_noep
    s_mov_b64 exec, 1
    buffer_store_dword v28, v23, s[24:27], 0 offen offset:256 sc1
    KA_noep:
    """)
    fin(a, kidx)
    NB1 = cfg.nb1
    WR = 128
    a("KA_helper:")
    srd(a, 20, 6, MB4); srd(a, 24, 8, 1024*3584*2); srd(a, 16, 10, 2*6144*4, WS_MODP)
    a(f"""
    s_mov_b32 s63, 12288
    s_cmp_lt_u32 s2, 192
    s_cbranch_scc1 KA_isgemv
    s_mov_b32 s36, s20
    s_mov_b32 s37, s21
    s_mov_b32 s38, {"s22" if cfg.qwarm else "0"}
    s_and_b32 s54, s2, 7
    s_lshl_b32 s54, s54, 3
    s_lshr_b32 s55, s2, 3
    s_sub_u32 s55, s55, 24
    s_add_u32 s54, s54, s55
    s_lshl_b32 s54, s54, 16
    s_lshl_b32 s55, s60, 14
    s_add_u32 s54, s54, s55
    v_lshl_add_u32 v108, v2, 4, s54
    s_mov_b32 s63, 1024
    KA_isgemv:
    s_mov_b32 s55, 0
    """)
    def wload(i):
        a(f"buffer_load_dwordx4 {vr(WR+4*i,4)}, v108, s[36:39], s55 offen {nt}")
        a("s_add_u32 s55, s55, s63")
    for i in range(NB1): wload(i)
    a(f"s_waitcnt vmcnt({2+NB1})")
    for q in range(8):
        a(f"v_lshlrev_b32 v{16+2*q}, 16, v{64+q}")
        a(f"v_and_b32 v{17+2*q}, 0xffff0000, v{64+q}")
    for i in range(16): a(f"v_mul_f32 v{32+i}, {f32(-LOG2E)}, v{16+i}")
    for i in range(16): a(f"v_exp_f32 v{32+i}, v{32+i}")
    a(f"""
    s_waitcnt vmcnt({NB1})
    s_barrier
    s_cmp_lg_u32 s60, 0
    s_cbranch_scc1 KA_nopost
    s_mov_b64 exec, 1
    buffer_store_dword v73, v72, s[64:67], 0 offen
    """)
    if not cfg.ul2: a("buffer_store_dword v74, v72, s[64:67], 0 offen offset:128 sc1")
    a("s_mov_b64 exec, -1")
    a("KA_nopost:")
    for i in range(16): a(f"v_add_f32 v{32+i}, 1.0, v{32+i}")
    for i in range(16): a(f"v_rcp_f32 v{32+i}, v{32+i}")
    for i in range(16): a(f"v_mul_f32 v{16+i}, v{16+i}, v{32+i}")
    for q in range(8): a(f"v_cvt_pk_bf16_f32 v{96+q}, v{16+2*q}, v{17+2*q}")
    for q in range(8):
        a(f"v_lshlrev_b32 v{16+2*q}, 16, v{96+q}")
        a(f"v_and_b32 v{17+2*q}, 0xffff0000, v{96+q}")
    a(f"""
    s_mul_i32 s54, s2, 28672
    s_mul_i32 s56, s60, 7168
    s_add_u32 s54, s54, s56
    v_lshl_add_u32 v109, v2, 4, s54
    s_mov_b32 s54, 4096
    s_barrier
    """)
    stamp(a, 2)
    NB2 = min(16, NB1 + cfg.nb2)
    for i in range(NB1, NB2): wload(i)
    a("s_barrier")
    npf = cfg.npf1
    def pfload(i):
        a(f"buffer_load_dwordx4 {vr(192+4*i,4)}, v109, s[24:27], {'0' if i < 4 else 's54'} offen offset:{1024*(i%4)}")
    DEP = cfg.dep
    issued = NB2
    def more():
        nonlocal issued
        if issued < 16: wload(issued)
        elif issued < 16 + npf: pfload(issued - 16)
        else: return
        issued += 1
    while issued < DEP: more()
    for i in range(16):
        a(f"s_waitcnt vmcnt({min(issued - 1 - i, DEP - 1) if issued < 16 + npf else issued - 1 - i})")
        more()
        t = 48 + 8*(i & 1)
        for j in range(4):
            a(f"v_lshlrev_b32 v{t+2*j}, 16, v{WR+4*i+j}")
            a(f"v_and_b32 v{t+2*j+1}, 0xffff0000, v{WR+4*i+j}")
        for j in range(8):
            if i == 0: a(f"v_mul_f32 v{32+j}, v{t+j}, v16")
            else: a(f"v_fmac_f32 v{32+j}, v{t+j}, v{16+i}")
    while issued < 16 + npf: more()
    a("""
    s_cmp_lt_u32 s2, 192
    s_cbranch_scc0 KA_end
    """)
    stamp(a, 3)
    a("s_nop 3")
    for j in range(4): a(f"v_permlane32_swap_b32 v{32+j}, v{36+j}")
    a("s_nop 1")
    for j in range(4): a(f"v_add_f32 v{32+j}, v{32+j}, v{36+j}")
    a("s_nop 1")
    for j in range(2): a(f"v_permlane16_swap_b32 v{32+j}, v{34+j}")
    a("s_nop 1")
    for j in range(2): a(f"v_add_f32 v{32+j}, v{32+j}, v{34+j}")
    a("s_nop 1")
    for j in range(2): a(f"v_add_f32_dpp v{32+j}, v{32+j}, v{32+j} row_ror:8 row_mask:0xf bank_mask:0xf")
    a(f"""
    v_lshrrev_b32 v40, 4, v2
    v_lshlrev_b32 v40, 3, v40
    v_lshl_add_u32 v40, v15, 5, v40
    s_lshl_b32 s56, s60, 8
    s_add_u32 s56, s56, {RED}
    v_add_u32 v40, s56, v40
    ds_write_b64 v40, v[32:33]
    v_lshlrev_b32 v41, 2, v2
    v_add_u32 v42, {RED}, v41
    s_mul_i32 s56, s62, 24576
    s_lshl_b32 s57, s61, 8
    s_add_u32 s56, s56, s57
    s_waitcnt lgkmcnt(0)
    s_barrier
    s_cmp_lg_u32 s60, 0
    s_cbranch_scc1 KA_end
    """)
    for w in range(4): a(f"ds_read_b32 v{32+w}, v42 offset:{256*w}")
    a(f"""
    s_waitcnt lgkmcnt(0)
    v_add_f32 v32, v32, v33
    v_add_f32 v34, v34, v35
    v_add_f32 v32, v32, v34
    buffer_store_dword v32, v41, s[16:19], s56 offen {cfg.st_pol}
    """)
    fin(a, kidx, "KA_end")
    return dict(name="ka_kernel", body=a.text(), vgpr=224, sgpr=72, grid=256, block=512, lds=RED+1024)
```

```python
from asmlib import *
from gen import *
from gemm import interleave

WS_FL = 0x3000000
NEAR = 4096 + 65536
FL_BYTES = NEAR + 4096
SPIN_MAX = 1 << 16

class TAsm(Asm):
    on = False
    def __call__(self, s):
        if not (cfg.stamps and cfg.trace and self.on):
            return Asm.__call__(self, s)
        for line in s.split("\n"):
            if line.strip() == "s_barrier":
                Asm.__call__(self, """
                s_memtime s[100:101]
                s_waitcnt lgkmcnt(0)
                s_sub_u32 s100, s100, s78
                v_writelane_b32 v60, s100, m0
                s_barrier
                s_memtime s[100:101]
                s_waitcnt lgkmcnt(0)
                s_sub_u32 s100, s100, s78
                v_writelane_b32 v61, s100, m0
                s_add_u32 s96, s96, 1
                s_mov_b32 m0, s95
                s_nop 0
                """.replace("v_writelane_b32 v60, s100, m0", "s_mov_b32 s95, m0\ns_mov_b32 m0, s96\nv_writelane_b32 v60, s100, m0"))
            else:
                Asm.__call__(self, line)

def gen_kg(kidx=3):
    a = TAsm()
    SLOT, NS, NST = 45056, 3, 16
    BF, BH = 16384, 16384 + 24576
    S2, NS2, NST2, BB = 32768, 5, 28, 16384
    head(a, 256, "KG_end")
    a(f"""
    s_load_dwordx4 s[4:7], s[0:1], {KW1}
    s_load_dwordx4 s[12:15], s[0:1], {KW2}
    s_load_dwordx2 s[10:11], s[0:1], {KWS}
    s_load_dwordx2 s[8:9], s[0:1], {KOUT}
    v_lshrrev_b32 v1, 6, v0
    v_and_b32 v2, 63, v0
    v_readfirstlane_b32 s3, v1
    s_and_b32 s44, s2, 7
    s_lshr_b32 s45, s2, 3
    s_lshr_b32 s46, s44, 1
    s_lshl_b32 s46, s46, 2
    s_lshr_b32 s47, s45, 3
    s_add_u32 s46, s46, s47          ; mt
    s_and_b32 s44, s44, 1            ; fh
    s_and_b32 s45, s45, 7            ; nt
    s_lshl_b32 s47, s44, 3
    s_add_u32 s47, s47, s45          ; nc
    s_and_b32 s48, s47, 1            ; parity
    s_mul_i32 s49, s47, 448
    s_lshl_b32 s50, s48, 6
    s_add_u32 s50, s50, s49
    s_cmp_eq_u32 s48, 0
    s_cselect_b32 s51, 384, 0
    s_add_u32 s51, s51, s49
    s_cmp_ge_u32 s3, 4
    s_cbranch_scc0 KG_compute
    """)
    a.on = True
    if cfg.stamps and cfg.trace:
        a("s_mov_b32 s96, 0")
        a("v_mov_b32 v60, 0")
        a("v_mov_b32 v61, 0")
    a(f"""
    s_sub_u32 s3, s3, 4
    v_lshrrev_b32 v3, 3, v2
    v_and_b32 v4, 7, v2              ; position
    v_lshrrev_b32 v5, 4, v2
    v_xor_b32 v5, v5, v4
    s_lshl_b32 s52, s46, 7
    s_lshl_b32 s53, s3, 5
    s_add_u32 s52, s52, s53
    v_add_u32 v6, s52, v3
    v_lshlrev_b32 v6, 11, v6
    v_lshl_add_u32 v10, v5, 4, v6    ; vA0
    v_xor_b32 v5, 4, v5
    v_lshl_add_u32 v11, v5, 4, v6
    v_add_u32 v11, 16384, v11
    v_bfe_u32 v5, v2, 4, 1
    v_lshlrev_b32 v5, 1, v5
    v_xor_b32 v5, v5, v4
    s_lshl_b32 s53, s3, 4
    v_add_u32 v6, s53, v3
    v_mul_u32_u24 v6, 7168, v6
    v_add_u32 v6, s50, v6
    v_lshl_add_u32 v12, v5, 4, v6    ; vB0
    v_xor_b32 v5, 4, v5
    v_lshl_add_u32 v13, v5, 4, v6
    v_add_u32 v13, {8*7168}, v13     ; vB1
    v_lshrrev_b32 v6, 2, v2
    v_add_u32 v6, s53, v6
    v_mul_u32_u24 v6, 7168, v6
    v_add_u32 v6, s51, v6
    v_lshrrev_b32 v5, 5, v2
    v_lshlrev_b32 v5, 1, v5
    v_and_b32 v7, 3, v2
    v_xor_b32 v5, v5, v7
    v_lshl_add_u32 v14, v5, 4, v6    ; vBH
    s_lshl_b32 s54, s3, 12
    s_lshl_b32 s55, s3, 11
    s_add_u32 s55, s55, {BF}
    s_lshl_b32 s56, s3, 10
    s_add_u32 s56, s56, {BH}
    s_mov_b32 s57, 0
    s_mov_b32 s58, 0                 ; A soffset
    s_mov_b32 s59, 0                 ; B soffset
    s_waitcnt lgkmcnt(0)
    """)
    srd(a, 16, 10, MB4, WS_Y2); srd(a, 20, 4, 1024*3584*2)
    PREP = ["s_add_u32 s60, s55, s57", "s_add_u32 s62, s59, 128", "s_add_u32 s63, s59, 256", "s_mov_b32 m0, s60"]
    def prep():
        for x in PREP: a(x)
    def groups():
        wp = cfg.w_pol
        G = []
        fill = iter(["s_add_u32 s64, s54, s57", "s_add_u32 s52, s58, 32768", "s_nop 0", "s_nop 0", "s_nop 0", "s_nop 0"])
        for lc in range(3):
            for i2 in range(2):
                g = []
                if lc or i2: g += [f"s_add_u32 m0, s60, {8192*lc+1024*i2}", next(fill)]
                g.append(f"buffer_load_dwordx4 v{12+i2}, s[20:23], {['s59','s62','s63'][lc]} offen {wp} lds")
                G.append(g)
        G.append(["s_add_u32 m0, s56, s57", f"s_add_u32 s57, s57, {SLOT}", f"buffer_load_dwordx4 v14, s[20:23], s59 offen {wp} lds",
                  f"s_cmp_eq_u32 s57, {NS*SLOT}", "s_cselect_b32 s57, 0, s57"])
        fill = iter([f"s_add_u32 s59, s59, {64*7168}", "s_nop 0", "s_nop 0", "s_nop 0"])
        for i in range(4):
            G.append([f"s_add_u32 m0, s64, {1024*i}", next(fill), f"buffer_load_dwordx4 v{10+(i&1)}, s[16:19], {'s58' if i < 2 else 's52'} offen lds"])
        G[-1].append("s_add_u32 s58, s58, 128")
        return G
    def fire():
        for g in groups():
            for x in g: a(x)
    cuts = {17: 6, 30: 8, 43: 10}
    n = 0
    for st_ in range(5):
        prep(); a("s_nop 0")
        for g in groups():
            for x in g: a(x)
            n += 1
            if n in cuts:
                a(f"s_waitcnt vmcnt({cuts[n]})")
                a("s_barrier")
    srd(a, 28, 12, 3584*1024*2)
    a(f"""
    s_mul_i32 s52, s2, 28672
    s_mul_i32 s64, s3, 7168
    s_add_u32 s52, s52, s64
    v_lshl_add_u32 v15, v2, 4, s52
    s_mov_b32 s73, 0
    s_mov_b32 s61, 2
    KG_lloop:
    """)
    prep()
    if cfg.pf_w2:
        a(f"""
        s_cmp_eq_u32 s73, 0
        s_cbranch_scc1 KG_w11
        s_sub_u32 s73, s73, 1
        s_waitcnt vmcnt(15)
        s_branch KG_w15
        KG_w11:
        s_waitcnt vmcnt(11)
        KG_w15:
        """)
    else:
        a("s_waitcnt vmcnt(11)")
    a("s_barrier")
    fire()
    if cfg.pf_w2:
        a(f"""
        s_and_b32 s52, s61, {~4 & 0xffffffff}
        s_cmp_lg_u32 s52, {cfg.pfat}
        s_cbranch_scc1 KG_nopf
        s_mov_b32 s73, 2
        """)
        for i in range(4):
            a(f"buffer_load_dwordx4 {vr(32+4*i,4)}, v15, s[28:31], 0 offen offset:{1024*i}")
        a("v_add_u32 v15, 3072, v15")
        a("KG_nopf:")
    if cfg.pf_code:
        a(f"""
        s_cmp_lg_u32 s61, 10
        s_cbranch_scc1 KG_nocp
        s_getpc_b64 s[70:71]
        KG_pcref:
        s_lshr_b32 s52, s2, 3
        s_lshl_b32 s52, s52, 2
        s_add_u32 s52, s52, s3
        s_lshl_b32 s52, s52, 6
        s_add_u32 s70, s70, s52
        s_addc_u32 s71, s71, 0
        s_load_dword s72, s[70:71], 0
        s_mov_b32 s52, KG_gelu-KG_pcref
        s_load_dword s72, s[70:71], s52
        KG_nocp:
        """)
    a(f"""
    s_add_u32 s61, s61, 1
    s_cmp_lt_u32 s61, {NST-NS}
    s_cbranch_scc1 KG_lloop
    s_waitcnt vmcnt(11)
    s_barrier
    """)
    srd(a, 24, 10, 2048*3584*2, WS_H); srd(a, 32, 10, FL_BYTES, WS_FL)
    a(f"""
    s_lshl_b32 s52, s46, 3
    s_and_b32 s53, s3, 1
    s_lshl_b32 s64, s53, 2
    s_add_u32 s52, s52, s64
    s_mul_i32 s52, s52, 112
    s_mul_i32 s64, s44, 56
    s_add_u32 s52, s52, s64
    s_lshl_b32 s52, s52, 10
    v_lshl_add_u32 v16, v2, 4, s52
    v_add_u32 v17, {112*1024}, v16
    v_add_u32 v18, {2*112*1024}, v16
    v_add_u32 v19, {3*112*1024}, v16
    v_lshrrev_b32 v5, 4, v2
    v_lshlrev_b32 v5, 1, v5
    v_xor_b32 v5, v5, v4
    s_mul_i32 s52, s44, 1792
    s_lshl_b32 s64, s53, 4
    s_add_u32 s52, s52, s64
    v_add_u32 v6, s52, v3
    v_lshlrev_b32 v6, 11, v6
    s_lshl_b32 s64, s45, 8
    v_add_u32 v6, s64, v6
    v_lshl_add_u32 v20, v5, 4, v6
    v_add_u32 v21, 16384, v20
    v_add_u32 v22, 128, v20
    v_add_u32 v23, 16384+128, v20
    s_lshr_b32 s65, s3, 1
    s_lshl_b32 s66, s53, 13
    s_lshl_b32 s64, s65, 10
    s_add_u32 s66, s66, s64
    s_lshl_b32 s67, s3, 11
    s_add_u32 s67, s67, {BB}
    s_lshl_b32 s52, s46, 1
    s_add_u32 s52, s52, s44
    s_lshl_b32 s52, s52, 7
    v_lshl_add_u32 v24, v4, 2, s52
    """)
    if not cfg.l2path:
        a(f"""
        v_and_b32 v5, 8, v2
        v_mul_u32_u24 v5, {NEAR//8}, v5
        v_add_u32 v24, v24, v5
        """)
    a(f"""
    s_lshl_b32 s64, s45, 2
    s_add_u32 s52, s52, s64
    v_mov_b32 v25, s52
    """)
    if cfg.l2path:
        a("""
        s_getreg_b32 s74, hwreg(HW_REG_XCC_ID, 0, 4)
        s_add_u32 s74, s74, 1
        s_cmp_lg_u32 s3, 0
        s_cbranch_scc1 KG_noid
        v_mov_b32 v28, s74
        s_mov_b64 exec, 1
        buffer_store_dword v28, v25, s[32:35], 0 offen offset:32 sc1
        s_mov_b64 exec, -1
        KG_noid:
        """)
    a(f"""
    s_mul_i32 s52, s45, 7
    """)
    if cfg.absord:
        chunksel = """v_cmp_le_u32 vcc, s45, v6
        s_nop 1
        v_addc_co_u32 v6, vcc, 0, v6, vcc
        v_and_b32 v6, 7, v6"""
    else:
        chunksel = """v_add_u32 v6, s45, v6
        v_add_u32 v6, 1, v6
        v_and_b32 v6, 7, v6"""
    if cfg.early:
        a(f"""
        v_subrev_u32 v5, 7, v2           ; p-7
        v_lshrrev_b32 v6, 2, v5
        {chunksel}
        v_and_b32 v7, 3, v5
        v_and_b32 v8, 1, v6
        v_add_u32 v7, v7, v8
        v_mad_u32_u24 v27, v6, 7, v7
        v_subrev_u32 v5, 35, v2          ; p-35
        v_mul_u32_u24 v6, 43, v5
        v_lshrrev_b32 v6, 7, v6          ; /3
        v_mul_u32_u24 v7, 3, v6
        v_sub_u32 v7, v5, v7             ; e
        {chunksel}
        v_and_b32 v8, 1, v6              ; parity
        v_add3_u32 v9, v7, 4, v8
        v_mul_u32_u24 v8, 6, v8
        v_sub_u32 v8, 6, v8
        v_cmp_eq_u32 vcc, 2, v7
        s_nop 1
        v_cndmask_b32 v9, v9, v8, vcc
        v_mad_u32_u24 v28, v6, 7, v9
        v_add_u32 v26, s52, v2           ; own
        v_cmp_le_u32 vcc, 7, v2
        s_nop 1
        v_cndmask_b32 v26, v26, v27, vcc
        v_cmp_le_u32 vcc, 35, v2
        s_nop 1
        v_cndmask_b32 v26, v26, v28, vcc
        """)
    else:
        a("""
        v_add_u32 v26, s52, v2
        v_subrev_u32 v27, 56, v26
        v_cmp_le_u32 vcc, 56, v26
        s_nop 1
        v_cndmask_b32 v26, v26, v27, vcc
        """)
    a("""
    s_waitcnt vmcnt(0) lgkmcnt(0)
    s_barrier
    s_barrier
    """)
    def blk():
        a("v_readlane_b32 s69, v26, s68")
        a("s_add_u32 s68, s68, 2")
    def issueA():
        a("s_lshl_b32 s70, s69, 10")
        a("s_add_u32 s60, s66, s57")
        for i in range(4):
            a(f"s_add_u32 m0, s60, {2048*i}")
            a("s_nop 0")
            a(f"buffer_load_dwordx4 v{16+i}, s[24:27], s70 offen {cfg.a2_pol} lds")
    def issueB():
        a("s_lshl_b32 s71, s69, 16")
        a("s_add_u32 s60, s67, s57")
        for lc in range(2):
            for i2 in range(2):
                a(f"s_add_u32 m0, s60, {8192*lc+1024*i2}")
                a("s_nop 0")
                a(f"buffer_load_dwordx4 v{20+2*lc+i2}, s[28:31], s71 offen {cfg.w_pol} lds")
    def prep2():
        blk()
        a("s_add_u32 s60, s67, s57")
        a("s_add_u32 s62, s66, s57")
        a("s_lshl_b32 s71, s69, 16" if "fixB" not in cfg.exp else "s_mov_b32 s71, 0")
        a("s_lshl_b32 s70, s69, 10" if "fixA" not in cfg.exp else "s_mov_b32 s70, 0")
        a("s_mov_b32 m0, s60")
        nextslot()
    def fire2():
        for lc in range(2):
            for i2 in range(2):
                if lc or i2:
                    a(f"s_add_u32 m0, s60, {8192*lc+1024*i2}")
                    a("s_nop 0")
                a(f"buffer_load_dwordx4 v{20+2*lc+i2}, s[28:31], s71 offen {cfg.w_pol} lds")
        for i in range(4):
            a(f"s_add_u32 m0, s62, {2048*i}")
            a("s_nop 0")
            a(f"buffer_load_dwordx4 v{16+i}, s[24:27], s70 offen {cfg.a2_pol} lds")
    def nextslot():
        a(f"s_add_u32 s57, s57, {S2}")
        a(f"s_cmp_eq_u32 s57, {NS2*S2}")
        a("s_cselect_b32 s57, 0, s57")
    def test(val):
        a(f"""
        v_cmp_gt_u32 vcc, {val}, v27
        s_lshr_b32 s53, vcc_lo, 8
        s_and_b32 s53, s53, vcc_lo
        s_and_b32 s53, s53, 0xff
        """)
    def poll(val, lbl):
        a(f"""
        s_mov_b32 s72, 0
        {lbl}:
        buffer_load_dword v27, v24, s[32:35], 0 offen sc1
        s_add_u32 s72, s72, 1
        s_cmp_gt_u32 s72, {SPIN_MAX}
        s_cbranch_scc1 {lbl}_x
        s_waitcnt vmcnt(0)
        """)
        test(val)
        a(f"""
        s_cbranch_scc1 {lbl}
        {lbl}_x:
        """)
        if cfg.l2path:
            a(f"""
            s_cmp_eq_u32 s75, 0
            s_cbranch_scc1 {lbl}_y
            buffer_inv sc1
            s_waitcnt vmcnt(0)
            """)
        a(f"{lbl}_y:")
    def post(val, lbl):
        a(f"""
        s_cmp_lg_u32 s3, 0
        s_cbranch_scc1 {lbl}
        v_mov_b32 v28, {val}
        s_mov_b64 exec, 1
        """)
        if cfg.l2path:
            a(f"""
            s_cmp_eq_u32 s75, 0
            s_cbranch_scc1 {lbl}_f
            buffer_wbl2 sc1
            s_waitcnt vmcnt(0)
            buffer_store_dword v28, v25, s[32:35], 0 offen sc1
            s_branch {lbl}_g
            {lbl}_f:
            buffer_store_dword v28, v25, s[32:35], 0 offen
            {lbl}_g:
            """)
        else:
            a(f"s_mov_b32 s72, {NEAR}")
            a("buffer_store_dword v28, v25, s[32:35], s72 offen")
            a("buffer_store_dword v28, v25, s[32:35], 0 offen sc1")
        a(f"""
        s_mov_b64 exec, -1
        {lbl}:
        """)
    a("""
    s_mov_b32 s68, s65
    s_mov_b32 s57, 0
    s_mov_b32 s61, 0
    KG_l2pro:
    """)
    blk(); issueB(); nextslot()
    a(f"""
    s_add_u32 s61, s61, 1
    s_cmp_lt_u32 s61, {NS2}
    s_cbranch_scc1 KG_l2pro
    """)
    if cfg.l2path:
        a(f"""
        s_mov_b32 s72, 0
        KG_idpoll:
        buffer_load_dword v27, v24, s[32:35], 0 offen offset:32 sc1
        s_add_u32 s72, s72, 1
        s_waitcnt vmcnt(0)
        v_cmp_eq_u32 vcc, 0, v27
        s_cmp_gt_u32 s72, {SPIN_MAX}
        s_cbranch_scc1 KG_idpoll_x
        s_cbranch_vccnz KG_idpoll
        KG_idpoll_x:
        v_cmp_ne_u32 vcc, s74, v27
        s_cmp_lg_u64 vcc, 0
        s_cselect_b32 s75, 1, 0
        """)
    if not cfg.l2path: a("buffer_load_dword v27, v24, s[32:35], 0 offen sc1")
    a("""
    s_waitcnt vmcnt(0)
    s_barrier
    """)
    stamp(a, 0)
    post(1, "KG_p1")
    a("s_barrier")
    a("buffer_load_dword v27, v24, s[32:35], 0 offen sc1")
    blk(); issueB()
    a("s_waitcnt vmcnt(4)")
    test(1)
    a("s_cbranch_scc0 KG_poll1_x")
    poll(1, "KG_poll1")
    stamp(a, 1)
    a(f"""
    s_add_u32 s68, s65, 6
    s_mov_b32 s57, {3*S2}
    """)
    blk()
    a("s_cmp_eq_u32 s65, 0")
    a("s_cbranch_scc1 KG_skipA3")
    issueA()
    a("KG_skipA3:")
    nextslot(); blk(); issueA(); nextslot(); blk(); issueA(); nextslot()
    prep2()
    a("s_waitcnt vmcnt(8)")
    stamp(a, 2)
    a("s_barrier")
    fire2()
    if cfg.early: post(2, "KG_p2")
    prep2()
    a("s_waitcnt vmcnt(12)")
    a("s_barrier")
    fire2()
    a("s_mov_b32 s61, 4")
    a("KG_l2loop:")
    if cfg.early:
        a("""
        s_cmp_lg_u32 s61, 8
        s_cbranch_scc1 KG_np2a
        buffer_load_dword v27, v24, s[32:35], 0 offen sc1
        KG_np2a:
        s_cmp_lg_u32 s61, 12
        s_cbranch_scc1 KG_poll2_y
        """)
        test(2)
        a("s_cbranch_scc0 KG_poll2_x")
        poll(2, "KG_poll2")
    prep2()
    a("s_waitcnt vmcnt(16)")
    if "nobar" not in cfg.exp: a("s_barrier")
    fire2()
    a(f"""
    s_add_u32 s61, s61, 1
    s_cmp_lt_u32 s61, {NST2-4}
    s_cbranch_scc1 KG_l2loop
    """)
    for left in (2, 1, 0):
        a(f"s_waitcnt vmcnt({8*left})")
        a("s_barrier")
    a.on = False
    if cfg.stamps and cfg.trace:
        a(f"""
        s_lshl_b32 s96, s2, 2
        s_add_u32 s96, s96, s3
        s_lshl_b32 s96, s96, 9
        s_add_u32 s96, s96, {WS_ST + 0x400000}
        v_lshl_add_u32 v62, v2, 2, s96
        global_store_dword v62, v60, s[98:99]
        global_store_dword v62, v61, s[98:99] offset:256
        """)
    fin(a, kidx)
    ACC = 32
    acc = lambda u, mi: ACC + (u*4+mi)*4 if u < 6 else ACC + 96 + ((u-6)*2+mi)*4
    FW = lambda s, u: 144 + 48*s + 4*u
    FX = lambda s, mi: 144 + 48*s + 32 + 4*mi
    AW = lambda j: 16 + j
    AX = lambda kk, h: 20 + 2*kk + h
    HG, HGH = 240, 241
    HL = lambda h: 242 + h
    HLH = 244
    AW2 = lambda u: 245 + u
    AX2 = lambda h: 249 + h
    VROW, VC2, VEXS, VEXR = 251, 252, 253, 254
    a("KG_compute:")
    a(f"""
    s_lshr_b32 s52, s3, 1            ; wm
    s_and_b32 s53, s3, 1             ; wn
    v_lshrrev_b32 v3, 4, v2          ; g
    v_and_b32 v4, 15, v2             ; i
    s_lshl_b32 s54, s53, 6
    s_add_u32 s54, s54, s50
    v_lshl_add_u32 v5, v3, 3, s54
    v_lshl_add_u32 v6, v3, 3, s51
    s_waitcnt lgkmcnt(0)
    """)
    srd(a, 24, 6, 3584*2)
    for u in range(6): a(f"buffer_load_dwordx2 {vr(144+2*u,2)}, v5, s[24:27], 0 offen offset:{128*(u>>1)+32*(u&1)}")
    for u in range(2): a(f"buffer_load_dwordx2 {vr(156+2*u,2)}, v6, s[24:27], 0 offen offset:{32*u}")
    srd(a, 28, 10, 2048*3584*2, WS_H); srd(a, 16, 14, 2048); srd(a, 20, 10, 2048, WS_GB)
    srd(a, 32, 10, MB4, WS_X1); srd(a, 36, 8, MB4); srd(a, 40, 10, 256*32768, WS_EX); srd(a, 64, 10, FL_BYTES, WS_FL)
    exw = 4096 if cfg.ex_bf16 else 8192
    a(f"""
    s_lshl_b32 s60, s52, 13          ; wm*8192
    s_lshl_b32 s61, s53, 12
    s_add_u32 s54, s60, s61
    s_xor_b32 s55, s54, 4096
    v_lshrrev_b32 v8, 1, v4
    v_xor_b32 v8, v8, v3
    v_lshlrev_b32 v8, 4, v8
    v_lshl_add_u32 v7, v4, 7, v8
    v_add_u32 v{AX(0,0)}, s54, v7
    v_add_u32 v{AX(0,1)}, s55, v7
    v_xor_b32 v7, 64, v7
    v_add_u32 v{AX(1,0)}, s54, v7
    v_add_u32 v{AX(1,1)}, s55, v7
    v_lshrrev_b32 v7, 2, v4
    v_lshl_add_u32 v7, v3, 3, v7     ; row
    v_and_b32 v8, 3, v4
    v_lshlrev_b32 v8, 3, v8          ; (i&3)*8
    v_lshl_add_u32 v9, v7, 7, v8
    v_add_u32 v9, {BF}, v9
    v_and_b32 v10, 1, v3
    v_lshrrev_b32 v11, 3, v4
    v_lshl_add_u32 v11, v10, 1, v11  ; phi
    s_lshl_b32 s56, s53, 1
    v_xor_b32 v12, s56, v11
    v_lshl_add_u32 v{AW(0)}, v12, 5, v9
    v_xor_b32 v{AW(1)}, 32, v{AW(0)}
    v_lshl_add_u32 v9, v7, 6, v8
    v_lshl_add_u32 v9, v10, 5, v9
    v_add_u32 v{AW(2)}, {BH}, v9
    v_xor_b32 v{AW(3)}, 32, v{AW(2)}
    s_lshl_b32 s56, s46, 3
    s_lshl_b32 s57, s52, 2
    s_add_u32 s56, s56, s57
    s_mul_i32 s56, s56, {112*1024}
    s_mul_i32 s57, s47, {7*1024}
    s_add_u32 s56, s56, s57
    s_add_u32 s57, s53, s48
    s_lshl_b32 s58, s57, 10
    s_add_u32 s58, s58, s56
    v_lshl_add_u32 v{HG}, v2, 4, s58
    s_lshr_b32 s58, s57, 1
    s_lshl_b32 s58, s58, 15
    s_and_b32 s57, s57, 1
    s_lshl_b32 s57, s57, 10
    s_add_u32 s58, s58, s57
    s_add_u32 s57, s58, s54
    v_lshl_add_u32 v{HL(0)}, v2, 4, s57
    s_add_u32 s57, s58, s55
    v_lshl_add_u32 v{HL(1)}, v2, 4, s57
    s_cmp_eq_u32 s48, 0
    s_cselect_b32 s58, {6*1024}, 0
    s_cselect_b32 s59, {3*S2}, 0
    s_add_u32 s58, s58, s56
    v_lshl_add_u32 v{HGH}, v2, 4, s58
    s_add_u32 s59, s59, s54
    v_lshl_add_u32 v{HLH}, v2, 4, s59
    s_mul_i32 s70, s53, {2*112*1024}
    s_add_u32 s71, s70, {112*1024}
    s_sub_u32 s72, {2*112*1024}, s70
    s_add_u32 s73, s72, {112*1024}
    s_lshl_b32 s61, s44, 12
    s_add_u32 s62, s60, s61
    v_lshl_add_u32 v{AX2(0)}, v2, 4, s62
    s_xor_b32 s62, s62, 4096
    v_lshl_add_u32 v{AX2(1)}, v2, 4, s62
    v_lshrrev_b32 v7, 2, v4
    v_lshl_add_u32 v7, v3, 2, v7     ; row = 4g + (i>>2)
    v_lshl_add_u32 v9, v7, 7, v8
    s_lshl_b32 s54, s53, 13
    s_add_u32 s54, s54, {BB}
    v_add_u32 v9, s54, v9
    v_bfe_u32 v11, v7, 1, 2
    v_lshl_add_u32 v{AW2(0)}, v11, 5, v9
    v_xor_b32 v{AW2(1)}, 32, v{AW2(0)}
    v_xor_b32 v{AW2(2)}, 64, v{AW2(0)}
    v_xor_b32 v{AW2(3)}, 0x60, v{AW2(0)}
    v_lshrrev_b32 v8, 1, v3
    v_lshlrev_b32 v7, 4, v10
    v_lshl_add_u32 v7, v8, 3, v7
    s_lshl_b32 s54, s45, 7
    s_lshl_b32 s55, s53, 6
    s_add_u32 s54, s54, s55
    v_add_u32 v7, s54, v7
    v_lshlrev_b32 v{VC2}, 1, v7
    s_lshl_b32 s54, s46, 7
    s_lshl_b32 s55, s52, 6
    s_add_u32 s54, s54, s55
    s_lshl_b32 s55, s44, 5
    s_add_u32 s54, s54, s55
    v_add_u32 v9, s54, v4
    v_lshl_add_u32 v{VROW}, v9, 11, v{VC2}
    s_lshl_b32 s54, s46, 3
    s_add_u32 s54, s54, s45
    s_lshl_b32 s54, s54, 1
    s_add_u32 s54, s54, s44
    s_lshl_b32 s54, s54, 2
    s_add_u32 s68, s54, s3
    s_xor_b32 s69, s68, 4
    s_mul_i32 s54, s68, {exw}
    v_lshl_add_u32 v{VEXR}, v2, 4, s54
    s_mul_i32 s54, s69, {exw}
    v_lshl_add_u32 v{VEXS}, v2, 4, s54
    s_lshl_b32 s68, s68, 6
    s_lshl_b32 s69, s69, 6
    s_add_u32 s68, s68, 4096
    s_add_u32 s69, s69, 4096
    v_mov_b32 v6, s68
    v_mov_b32 v7, s69
    v_mov_b32 v4, {f32(-2*0.7978845608028654*LOG2E*0.044715)}
    v_mov_b32 v5, {f32(-2*0.7978845608028654*LOG2E)}
    s_mov_b32 s74, 32768
    s_waitcnt vmcnt(0)
    """)
    for u in range(8):
        a(f"v_lshlrev_b32 v{acc(u,0)}, 16, v{144+2*u}")
        a(f"v_and_b32 v{acc(u,0)+1}, 0xffff0000, v{144+2*u}")
        a(f"v_lshlrev_b32 v{acc(u,0)+2}, 16, v{145+2*u}")
        a(f"v_and_b32 v{acc(u,0)+3}, 0xffff0000, v{145+2*u}")
        for mi in range(1, 4 if u < 6 else 2):
            a(f"v_mov_b64 {vr(acc(u,mi),2)}, {vr(acc(u,0),2)}")
            a(f"v_mov_b64 {vr(acc(u,mi)+2,2)}, {vr(acc(u,0)+2,2)}")
    def reads(kk):
        xs = [f"ds_read_b128 {vr(FX(kk,mi),4)}, v{AX(kk,mi>>1)} offset:{2048*(mi&1)}" for mi in range(4)]
        ws = []
        for u in range(8):
            for rd in range(2):
                if u < 6: ws.append(f"ds_read_b64_tr_b16 {vr(FW(kk,u)+2*rd,2)}, v{AW(u&1)} offset:{8192*(u>>1)+(32*kk+4*rd)*128}")
                else: ws.append(f"ds_read_b64_tr_b16 {vr(FW(kk,u)+2*rd,2)}, v{AW(u-4)} offset:{(32*kk+4*rd)*64}")
        return ws[:2] + xs + ws[2:]
    def mfmas(kk):
        return [f"v_mfma_f32_16x16x32_bf16 {vr(acc(u,mi),4)}, {vr(FW(kk,u),4)}, {vr(FX(kk,mi),4)}, {vr(acc(u,mi),4)}"
                for u in range(8) for mi in range(4 if u < 6 else 2)]
    a("s_barrier")
    stamp(a, 0)
    for r in reads(0): a(r)
    a(f"""
    s_mov_b32 s57, 1
    s_mov_b32 s59, {SLOT}
    s_mov_b32 s58, {SLOT}
    s_mov_b32 s61, 0
    s_waitcnt lgkmcnt(0)
    KG_cloop:
    """)
    upd = [f"v_add_u32 v{r}, s58, v{r}" for r in range(16, 24)]
    M = mfmas(0)
    interleave(a, M[:20], reads(1))
    interleave(a, M[20:24], upd, per=2)
    interleave(a, M[24:27], [])
    a("s_waitcnt lgkmcnt(0)")
    a("s_barrier")
    a(M[27])
    M = mfmas(1)
    interleave(a, M[:20], reads(0))
    ctl = ["s_add_u32 s57, s57, 1", f"s_cmp_eq_u32 s57, {NS}", f"s_cselect_b32 s58, {(-(NS-1)*SLOT) & 0xffffffff}, s59",
           "s_cselect_b32 s57, 0, s57", "s_add_u32 s61, s61, 1", f"s_cmp_lt_u32 s61, {NST}"]
    interleave(a, M[20:26], ctl)
    a(M[26])
    a("s_waitcnt lgkmcnt(0)")
    a(M[27])
    a("s_cbranch_scc1 KG_cloop")
    stamp(a, 1)
    a("KG_gelu:")
    def gelu(x, n, t, out):
        for j in range(0, n, 2): a(f"v_pk_mul_f32 {vr(t+j,2)}, {vr(x[j],2)}, {vr(x[j],2)}")
        for j in range(0, n, 2): a(f"v_pk_fma_f32 {vr(t+j,2)}, {vr(t+j,2)}, v[4:5], v[4:5] op_sel:[0,0,1] op_sel_hi:[1,0,1]")
        for j in range(0, n, 2): a(f"v_pk_mul_f32 {vr(t+j,2)}, {vr(t+j,2)}, {vr(x[j],2)}")
        for j in range(n): a(f"v_exp_f32 v{t+j}, v{t+j}")
        for j in range(0, n, 2): a(f"v_pk_add_f32 {vr(t+j,2)}, {vr(t+j,2)}, 1.0 op_sel_hi:[1,0]")
        for j in range(n): a(f"v_rcp_f32 v{t+j}, v{t+j}")
        for j in range(0, n, 2): a(f"v_pk_mul_f32 {vr(t+j,2)}, {vr(t+j,2)}, {vr(x[j],2)}")
        for j in range(0, n, 2): a(f"v_cvt_pk_bf16_f32 v{out+j//2}, v{t+j}, v{t+j+1}")
    so = ["s70", "s71", "s72", "s73"]
    hp = cfg.h_pol if cfg.l2path else "sc1"
    k = 0
    for b in range(4):
        for mi in range(4 if b < 3 else 2):
            x = [acc(2*b, mi)+r for r in range(4)] + [acc(2*b+1, mi)+r for r in range(4)]
            out = 168 + 4*(k % 6); k += 1
            gelu(x, 8, 160, out)
            if b < 3:
                if b == 2 and mi == 0:
                    a(f"v_add_u32 v{HG}, 4096, v{HG}")
                    a(f"v_add_u32 v{HL(0)}, {2*S2}, v{HL(0)}")
                    a(f"v_add_u32 v{HL(1)}, {2*S2}, v{HL(1)}")
                if "noH" not in cfg.exp: a(f"buffer_store_dwordx4 {vr(out,4)}, v{HG}, s[28:31], {so[mi]} offen offset:{2048*(b&1)} {hp}")
                a(f"ds_write_b128 v{HL(mi>>1)}, {vr(out,4)} offset:{S2*(b&1)+2048*(mi&1)}")
            else:
                if "noH" not in cfg.exp: a(f"buffer_store_dwordx4 {vr(out,4)}, v{HGH}, s[28:31], {so[mi]} offen {hp}")
                a(f"ds_write_b128 v{HLH}, {vr(out,4)} offset:{2048*mi}")
    acc2 = lambda u, mi: 32 + (mi*4+u)*4
    FW2 = lambda s, u: 96 + 32*s + 4*u
    FX2 = lambda s, mi: 96 + 32*s + 16 + 4*mi
    EB2, EG, EX1 = 192, 200, 208
    a(f"s_waitcnt vmcnt({6 if cfg.early else 0}) lgkmcnt(0)")
    stamp(a, 2)
    a("s_barrier")
    def reads2(kk):
        xs = [f"ds_read_b128 {vr(FX2(kk,mi),4)}, v{AX2(mi>>1)} offset:{2048*(mi&1)+1024*kk}" for mi in range(4)]
        ws = []
        for u in range(4):
            for rd in range(2):
                ws.append(f"ds_read_b64_tr_b16 {vr(FW2(kk,u)+2*rd,2)}, v{AW2(u)} offset:{(32*kk+16*rd)*128}")
        return ws[:2] + xs + ws[2:]
    def mfmas2(kk, first=False):
        return [f"v_mfma_f32_16x16x32_bf16 {vr(acc2(u,mi),4)}, {vr(FW2(kk,u),4)}, {vr(FX2(kk,mi),4)}, {'0' if first else vr(acc2(u,mi),4)}"
                for u in range(4) for mi in range(4)]
    upd2 = [f"v_add_u32 v{r}, s58, v{r}" for r in range(245, 251)]
    ctl2 = ["s_add_u32 s57, s57, 1", f"s_cmp_eq_u32 s57, {NS2}", f"s_cselect_b32 s58, {(-(NS2-1)*S2) & 0xffffffff}, s59",
            "s_cselect_b32 s57, 0, s57"]
    def step(M, R, tail):
        a("s_waitcnt lgkmcnt(6)")
        interleave(a, M[:4], R[:4])
        a(f"s_waitcnt lgkmcnt({4 if R else 0})")
        interleave(a, M[4:12], R[4:])
        interleave(a, M[12:15], tail, per=2)
    def stage(bar, first=False, extra=[], last=False, ctl=ctl2):
        M = mfmas2(0, first)
        step(M, reads2(1), upd2)
        a(bar)
        a(M[15])
        M = mfmas2(1)
        step(M, [] if last else reads2(0), ctl + extra)
        return M[15]
    for r in reads2(0): a(r)
    a(f"""
    s_mov_b32 s57, 1
    s_mov_b32 s59, {S2}
    s_mov_b32 s58, {S2}
    s_mov_b32 s61, 3
    """)
    a(stage("s_waitcnt lgkmcnt(0)\ns_barrier", first=True))
    a(stage(""))
    a(stage("s_waitcnt vmcnt(0)\ns_barrier"))
    a("KG_c2loop:")
    if "nomfma" in cfg.exp:
        if "nobar" in cfg.exp: a("s_cmp_eq_u32 s61, 4\ns_cselect_b32 s61, 24, s61")
        a(f"s_barrier\ns_add_u32 s61, s61, 1\ns_cmp_lt_u32 s61, {NST2-1}")
    elif "nords" in cfg.exp:
        for m in mfmas2(0)[:15]: a(m)
        a("s_barrier")
        for m in mfmas2(1): a(m)
        a(f"s_add_u32 s61, s61, 1\ns_cmp_lt_u32 s61, {NST2-1}")
        a(mfmas2(0)[15])
    else:
        a(stage("s_barrier", extra=["s_add_u32 s61, s61, 1", f"s_cmp_lt_u32 s61, {NST2-1}"]))
    a("s_cbranch_scc1 KG_c2loop")
    ld = []
    for k in range(2):
        for p in range(2):
            ld.append(f"buffer_load_dwordx4 {vr(EX1+8*k+4*p,4)}, v{VROW}, s[32:35], {['0','s74'][k]} offen offset:{64*p}")
    for p in range(2):
        ld.append(f"buffer_load_dwordx4 {vr(EB2+4*p,4)}, v{VC2}, s[16:19], 0 offen offset:{64*p}")
        ld.append(f"buffer_load_dwordx4 {vr(EG+4*p,4)}, v{VC2}, s[20:23], 0 offen offset:{64*p}")
    M = mfmas2(0)
    step(M, reads2(1), [])
    a(M[15])
    M = mfmas2(1)
    a("s_waitcnt lgkmcnt(6)")
    for i in range(16):
        if i == 4: a("s_waitcnt lgkmcnt(0)")
        a(M[i])
        if i % 2 == 0: a(ld[i//2])
    stamp(a, 3)
    a(f"""
    v_mov_b32 v8, 1
    s_mov_b32 s54, 4096
    s_nop 4
    """)
    if cfg.ex_bf16:
        for j in range(4):
            for e in range(4):
                a(f"v_cvt_pk_bf16_f32 v{96+4*j+e}, v{64+8*j+2*e}, v{64+8*j+2*e+1}")
            a(f"buffer_store_dwordx4 {vr(96+4*j,4)}, v{VEXS}, s[40:43], 0 offen offset:{1024*j} sc1")
    else:
        for j in range(8):
            a(f"buffer_store_dwordx4 {vr(64+4*j,4)}, v{VEXS}, s[40:43], {'0' if j < 4 else 's54'} offen offset:{1024*(j%4)} sc1")
    a(f"s_waitcnt vmcnt({4 if cfg.ex_bf16 else 8})")
    for j in range(8):
        a(f"v_lshlrev_b32 v{128+2*j}, 16, v{EB2+j}")
        a(f"v_and_b32 v{129+2*j}, 0xffff0000, v{EB2+j}")
        a(f"v_lshlrev_b32 v{144+2*j}, 16, v{EG+j}")
        a(f"v_and_b32 v{145+2*j}, 0xffff0000, v{EG+j}")
    for j in range(16):
        a(f"v_lshlrev_b32 v{160+2*j}, 16, v{EX1+j}")
        a(f"v_and_b32 v{161+2*j}, 0xffff0000, v{EX1+j}")
    for k in range(2):
        for e in range(16): a(f"v_fmac_f32 v{160+16*k+e}, v{128+e}, v{144+e}")
    a(f"""
    s_waitcnt vmcnt(0)
    s_mov_b64 exec, 1
    buffer_store_dword v8, v7, s[64:67], 0 offen sc1
    s_mov_b32 s72, 0
    KG_xpoll:
    buffer_load_dword v9, v6, s[64:67], 0 offen sc1
    s_add_u32 s72, s72, 1
    s_waitcnt vmcnt(0)
    v_cmp_ne_u32 vcc, 1, v9
    s_cmp_gt_u32 s72, {SPIN_MAX}
    s_cbranch_scc1 KG_xpoll_x
    s_cbranch_vccnz KG_xpoll
    KG_xpoll_x:
    s_mov_b64 exec, -1
    """)
    stamp(a, 4)
    nld = 4 if cfg.ex_bf16 else 8
    if cfg.ex_bf16:
        for j in range(4):
            a(f"buffer_load_dwordx4 {vr(96+4*j,4)}, v{VEXR}, s[40:43], 0 offen offset:{1024*j} sc1")
    else:
        for j in range(8):
            a(f"buffer_load_dwordx4 {vr(64+4*j,4)}, v{VEXR}, s[40:43], {'0' if j < 4 else 's54'} offen offset:{1024*(j%4)} sc1")
    for j in range(4):
        k, p = j >> 1, j & 1
        t0 = 32+8*j
        if cfg.ex_bf16:
            a(f"s_waitcnt vmcnt(3)")
            for e in range(4):
                a(f"v_lshlrev_b32 v{64+2*e}, 16, v{96+4*j+e}")
                a(f"v_and_b32 v{65+2*e}, 0xffff0000, v{96+4*j+e}")
            for e in range(8): a(f"v_add_f32 v{t0+e}, v{t0+e}, v{64+e}")
        else:
            a(f"s_waitcnt vmcnt({6-j})")
            for e in range(8): a(f"v_add_f32 v{t0+e}, v{t0+e}, v{64+8*j+e}")
        a("s_nop 1")
        for r in range(4): a(f"v_permlane16_swap_b32 v{t0+r}, v{t0+4+r}")
        a("s_nop 1")
        for e in range(8): a(f"v_fma_f32 v{t0+e}, v{t0+e}, v{144+8*p+e}, v{160+8*j+e}")
        for e in range(4): a(f"v_cvt_pk_bf16_f32 v{112+4*j+e}, v{t0+2*e}, v{t0+2*e+1}")
        a(f"buffer_store_dwordx4 {vr(112+4*j,4)}, v{VROW}, s[36:39], {['0','s74'][k]} offen offset:{64*p} {cfg.out_pol}")
    stamp(a, 5)
    fin(a, kidx, "KG_end")
    return dict(name="kg_kernel", body=a.text(), vgpr=256, sgpr=76, grid=256, block=512, lds=NS2*S2)
```

```python
import sys, math
from asmlib import *

NAME = "adaLN_cond__ssm_conv_h3__mixer_channel_mlp__prompt"
S, D, F = 2048, 1024, 3584
KQ, KK, KV, KSH, KSSM, KSD, KBX, KW1, KB1, KW2, KB2, KC_, KWM, KOUT, KDBG, KWS = [8*i for i in range(16)]
WS_U    = 0x0000000
WS_MODP = 0x0400000
WS_GB   = 0x0480000
WS_Y    = 0x0800000
WS_X1   = 0x0C00000
WS_Y2   = 0x1000000
WS_H    = 0x1400000
WS_EX   = 0x2400000
MB4 = 0x400000
LOG2E = 1.4426950408889634

import struct
def f32(x):
    return "0x%08x" % struct.unpack("<I", struct.pack("<f", x))[0]

WS_ST   = 0x3800000
class Cfg:
    stamps = False
    extra = ""
    fused = True
    fuseA = True
    kb_pf = 2
    qwarm = True
    pfat = 3
    pf_code = True
    ul2 = True
    relpoll = 32
    dep = 7
    npf1 = 7
    nb1 = 0
    nb2 = 4
    pf_w1 = True
    exp = ""
    trace = False
    absord = True
    a2_pol = "sc1"
    l2path = True
    wb_mid = False
    h_pol = ""
    early = True
    ex_bf16 = True
    pf_w2 = True
    out_pol = ""
    rt = False
    diag = ""
    pf_pol = ""
    nt_in = ""
    w_pol = ""
    st_pol = "sc1"
cfg = Cfg()

def head(a, nwg, endlbl):
    a(f"s_cmp_ge_u32 s2, {nwg}")
    a(f"s_cbranch_scc1 {endlbl}_x" if cfg.stamps else f"s_cbranch_scc1 {endlbl}")
    if cfg.stamps:
        a("s_memrealtime s[76:77]")
        a("s_memtime s[78:79]")
        a(f"s_load_dwordx2 s[98:99], s[0:1], {KWS}")
        for i in range(80, 92, 2): a(f"s_mov_b64 s[{i}:{i+1}], 0")
        a("v_readfirstlane_b32 s97, v0")

def stamp(a, i):
    if cfg.stamps:
        a(f"{'s_memrealtime' if cfg.rt else 's_memtime'} s[{80+2*i}:{81+2*i}]")

def fin(a, kidx, lbl=None):
    if lbl: a(f"{lbl}:")
    if cfg.stamps:
        a(f"""
        s_waitcnt vmcnt(0)
        s_memrealtime s[92:93]
        s_memtime s[94:95]
        s_waitcnt lgkmcnt(0)
        s_mov_b64 exec, 1
        s_lshr_b32 s97, s97, 6
        s_add_u32 s96, s2, {kidx*256}
        s_lshl_b32 s96, s96, 4
        s_add_u32 s96, s96, s97
        s_lshl_b32 s96, s96, 6
        s_add_u32 s96, s96, {WS_ST}
        v_mov_b32 v0, s96
        v_mov_b32 v4, s76
        v_mov_b32 v5, s92
        v_mov_b32 v6, s78
        v_mov_b32 v7, s94
        global_store_dwordx4 v0, v[4:7], s[98:99]
        s_nop 1
        v_mov_b32 v4, s80
        v_mov_b32 v5, s82
        v_mov_b32 v6, s84
        v_mov_b32 v7, s86
        global_store_dwordx4 v0, v[4:7], s[98:99] offset:16
        s_nop 1
        v_mov_b32 v4, s88
        v_mov_b32 v5, s90
        global_store_dwordx2 v0, v[4:5], s[98:99] offset:32
        """)
        if lbl: a(f"{lbl}_x:")
    a("s_endpgm")

def gen_k0():
    a = Asm()
    head(a, 256, "K0_end")
    a(f"""
    s_load_dwordx4 s[4:7], s[0:1], {KK}
    s_load_dwordx2 s[8:9], s[0:1], {KSH}
    s_load_dwordx4 s[12:15], s[0:1], {KC_}
    s_load_dwordx2 s[10:11], s[0:1], {KWS}
    v_lshrrev_b32 v1, 6, v0
    v_and_b32 v2, 63, v0
    v_readfirstlane_b32 s3, v1
    s_and_b32 s44, s2, 7
    s_lshr_b32 s45, s2, 3
    s_lshr_b32 s46, s45, 4
    s_lshl_b32 s44, s44, 1
    s_add_u32 s44, s44, s46          ; cg
    s_and_b32 s45, s45, 15           ; rb
    s_lshl_b32 s46, s45, 7
    s_lshl_b32 s47, s3, 4
    s_add_u32 s46, s46, s47
    s_lshl_b32 s47, s46, 11
    s_lshl_b32 s48, s44, 7
    s_add_u32 s47, s47, s48
    v_lshrrev_b32 v7, 3, v2          ; l>>3
    v_and_b32 v15, 7, v2             ; l&7
    v_lshlrev_b32 v3, 11, v7
    v_lshl_add_u32 v3, v15, 4, v3
    v_add_u32 v3, s47, v3            ; vk
    v_add_u32 v4, 0xffffc000, v3
    s_mul_i32 s49, s3, 5120
    s_mov_b32 s50, 16384
    s_waitcnt lgkmcnt(0)
    """)
    srd(a, 16, 4, MB4); srd(a, 20, 6, MB4); srd(a, 24, 8, 8192)
    srd(a, 28, 10, MB4, WS_U); srd(a, 32, 12, 2048); srd(a, 36, 14, 1024*6144*2); srd(a, 40, 10, 2*6144*4, WS_MODP)
    nt = cfg.nt_in
    a(f"""
    s_add_u32 m0, s49, 1024
    s_nop 0
    buffer_load_dwordx4 v3, s[16:19], 0 offen {nt} lds
    s_add_u32 m0, s49, 2048
    s_nop 0
    buffer_load_dwordx4 v3, s[16:19], s50 offen {nt} lds
    s_add_u32 m0, s49, 3072
    s_nop 0
    buffer_load_dwordx4 v3, s[20:23], 0 offen {nt} lds
    s_add_u32 m0, s49, 4096
    s_nop 0
    buffer_load_dwordx4 v3, s[20:23], s50 offen {nt} lds
    s_mov_b32 m0, s49
    s_mov_b32 exec_lo, 0
    buffer_load_dwordx4 v4, s[16:19], 0 offen {nt} lds
    s_mov_b32 exec_lo, -1
    s_lshl_b32 s51, s44, 9
    v_lshl_add_u32 v5, v2, 3, s51
    buffer_load_dwordx2 v[8:9], v5, s[24:27], 0 offen
    s_cmp_ge_u32 s2, 192
    s_cbranch_scc1 K0_nogemv_ld
    s_lshr_b32 s52, s2, 1
    s_and_b32 s53, s2, 1             ; k half
    s_lshl_b32 s54, s53, 9
    s_lshl_b32 s55, s3, 6
    s_add_u32 s54, s54, s55
    v_lshl_add_u32 v60, v7, 3, s54
    v_lshlrev_b32 v61, 1, v60
    s_mov_b32 s55, 12288
    v_mul_lo_u32 v108, v60, s55
    s_lshl_b32 s55, s52, 7
    v_lshl_add_u32 v109, v15, 4, s55
    v_add_u32 v108, v108, v109
    buffer_load_dwordx4 v[60:63], v61, s[32:35], 0 offen
    s_mov_b32 s55, 0
    """)
    for i in range(8):
        a(f"buffer_load_dwordx4 {vr(64+4*i,4)}, v108, s[36:39], s55 offen {nt}")
        if i < 7: a("s_add_u32 s55, s55, 12288")
    a("""
    s_waitcnt vmcnt(9)
    s_branch K0_phaseA
    K0_nogemv_ld:
    s_waitcnt vmcnt(0)
    K0_phaseA:
    """)
    stamp(a, 0)
    a("""
    v_lshrrev_b32 v5, 4, v2          ; g
    v_and_b32 v6, 15, v2             ; i
    v_lshrrev_b32 v10, 2, v6
    v_and_b32 v11, 3, v6
    v_lshlrev_b32 v10, 7, v10
    v_lshl_add_u32 v10, v5, 5, v10
    v_lshl_add_u32 v10, v11, 3, v10
    v_add_u32 v5, s49, v10
    """)
    for p in range(5):
        a(f"ds_read_b64_tr_b16 {vr(16+2*p,2)}, v5 offset:{512+512*p}")
    for p in range(4):
        a(f"ds_read_b64_tr_b16 {vr(26+2*p,2)}, v5 offset:{3072+512*p}")
    a("""
    v_alignbit_b32 v10, v8, v8, 16   ; A=(w1,w0)
    v_alignbit_b32 v11, v9, v9, 16   ; B=(w3,w2)
    v_and_b32 v12, 0xffff, v8        ; C=(w0,0)
    s_mov_b32 s56, 0xffff
    v_bfi_b32 v13, s56, v9, v8       ; D=(w2,w1)
    v_and_b32 v14, 0xffff0000, v9    ; E=(0,w3)
    v_lshrrev_b32 v6, 2, v2
    v_lshlrev_b32 v6, 14, v6
    v_and_b32 v50, 3, v2
    v_lshl_add_u32 v6, v50, 4, v6
    s_lshl_b32 s56, s44, 18
    s_lshl_b32 s57, s46, 3           ; (row0/8)*64
    s_add_u32 s56, s56, s57
    v_add_u32 v6, s56, v6
    s_waitcnt lgkmcnt(0)
    """)
    P = lambda q: 16 + q + 2
    ks = lambda t: 34 + t
    for q in range(8):
        a(f"v_dot2_f32_bf16 v{ks(2*q)}, v{P(q)}, v12, 0")
        a(f"v_dot2_f32_bf16 v{ks(2*q+1)}, v{P(q)}, v10, 0")
    for q in range(8):
        a(f"v_dot2_f32_bf16 v{ks(2*q)}, v{P(q-1)}, v13, v{ks(2*q)}")
        a(f"v_dot2_f32_bf16 v{ks(2*q+1)}, v{P(q-1)}, v11, v{ks(2*q+1)}")
    for q in range(8):
        a(f"v_dot2_f32_bf16 v{ks(2*q)}, v{P(q-2)}, v14, v{ks(2*q)}")
    for q in range(8):
        a(f"v_lshlrev_b32 v{110+2*q}, 16, v{26+q}")
        a(f"v_and_b32 v{111+2*q}, 0xffff0000, v{26+q}")
    for t in range(16):
        a(f"v_mul_f32 v{ks(t)}, v{ks(t)}, v{110+t}")
    for h in range(2):
        for j in range(4):
            a(f"v_cvt_pk_bf16_f32 v{52+4*h+j}, v{ks(8*h+7-2*j)}, v{ks(8*h+6-2*j)}")
    a(f"buffer_store_dwordx4 v[52:55], v6, s[28:31], 0 offen {cfg.st_pol}")
    a(f"buffer_store_dwordx4 v[56:59], v6, s[28:31], 0 offen offset:64 {cfg.st_pol}")
    stamp(a, 1)
    a("""
    s_cmp_ge_u32 s2, 192
    s_cbranch_scc1 K0_end
    s_waitcnt vmcnt(10)
    """)
    for q in range(4):
        a(f"v_lshlrev_b32 v{110+2*q}, 16, v{60+q}")
        a(f"v_and_b32 v{111+2*q}, 0xffff0000, v{60+q}")
    for i in range(8): a(f"v_mul_f32 v{118+i}, {f32(-LOG2E)}, v{110+i}")
    for i in range(8): a(f"v_exp_f32 v{118+i}, v{118+i}")
    a("s_nop 0")
    for i in range(8): a(f"v_add_f32 v{118+i}, 1.0, v{118+i}")
    for i in range(8): a(f"v_rcp_f32 v{118+i}, v{118+i}")
    a("s_nop 0")
    for i in range(8): a(f"v_mul_f32 v{110+i}, v{110+i}, v{118+i}")
    for q in range(4): a(f"v_cvt_pk_bf16_f32 v{96+q}, v{110+2*q}, v{111+2*q}")
    a("s_mov_b32 s56, 0x05040100")
    a("s_mov_b32 s57, 0x07060302")
    for q in range(4):
        a(f"s_waitcnt vmcnt({2 + 6 - 2*q})")
        for j in range(4):
            w0 = 64 + 8*q + j; w1 = w0 + 4
            a(f"v_perm_b32 v{110+2*j}, v{w1}, v{w0}, s56")
            a(f"v_perm_b32 v{111+2*j}, v{w1}, v{w0}, s57")
        for j in range(8):
            src2 = "0" if q == 0 else f"v{100+j}"
            a(f"v_dot2_f32_bf16 v{100+j}, v{110+j}, v{96+q}, {src2}")
    stamp(a, 2)
    a("s_nop 3")
    for j in range(4): a(f"v_permlane32_swap_b32 v{100+j}, v{104+j}")
    a("s_nop 1")
    for j in range(4): a(f"v_add_f32 v{100+j}, v{100+j}, v{104+j}")
    a("s_nop 1")
    for j in range(2): a(f"v_permlane16_swap_b32 v{100+j}, v{102+j}")
    a("s_nop 1")
    for j in range(2): a(f"v_add_f32 v{100+j}, v{100+j}, v{102+j}")
    a("s_nop 1")
    for j in range(2): a(f"v_add_f32_dpp v{100+j}, v{100+j}, v{100+j} row_ror:8 row_mask:0xf bank_mask:0xf")
    a("""
    v_lshrrev_b32 v110, 4, v2
    v_lshlrev_b32 v110, 3, v110
    v_lshl_add_u32 v110, v15, 5, v110
    s_lshl_b32 s56, s3, 8
    s_add_u32 s56, s56, 40960
    v_add_u32 v110, s56, v110
    ds_write_b64 v110, v[100:101]
    s_waitcnt lgkmcnt(0)
    s_barrier
    s_cmp_lg_u32 s3, 0
    s_cbranch_scc1 K0_end
    v_lshlrev_b32 v110, 2, v2
    """)
    for w in range(8): a(f"ds_read_b32 v{100+w}, v110 offset:{40960+256*w}")
    a("""
    s_mul_i32 s56, s53, 24576
    s_lshl_b32 s57, s52, 8
    s_add_u32 s56, s56, s57
    s_waitcnt lgkmcnt(0)
    v_add_f32 v100, v100, v101
    v_add_f32 v102, v102, v103
    v_add_f32 v104, v104, v105
    v_add_f32 v106, v106, v107
    v_add_f32 v100, v100, v102
    v_add_f32 v104, v104, v106
    v_add_f32 v100, v100, v104
    buffer_store_dword v100, v110, s[40:43], s56 offen
    """)
    fin(a, 0, "K0_end")
    return dict(name="k0_kernel", body=a.text(), vgpr=128, sgpr=64, grid=256, block=512, lds=43008)

CP_STR, CH_STR = 4160, 16640
UR_BASE, UR_STR = 4*16640, 4640
def gen_k1():
    a = Asm()
    head(a, 256, "K1_end")
    a(f"""
    s_load_dwordx4 s[4:7], s[0:1], {KSSM}
    s_load_dwordx2 s[10:11], s[0:1], {KWS}
    v_lshrrev_b32 v1, 6, v0
    v_and_b32 v2, 63, v0
    v_readfirstlane_b32 s3, v1
    s_and_b32 s44, s2, 7
    s_lshr_b32 s45, s2, 3
    s_lshl_b32 s44, s44, 5
    s_add_u32 s44, s44, s45          ; cq
    s_lshl_b32 s45, s44, 2
    s_add_u32 s45, s45, s3           ; channel d
    s_lshl_b32 s46, s45, 12
    v_lshl_add_u32 v3, v2, 4, s46
    s_lshl_b32 s47, s44, 14          ; cq*16384
    s_lshl_b32 s48, s3, 12
    s_add_u32 s48, s48, s47
    v_lshl_add_u32 v4, v2, 4, s48    ; U offset
    s_mul_i32 s49, s3, {CH_STR}      ; chbase
    s_waitcnt lgkmcnt(0)
    """)
    srd(a, 16, 4, MB4); srd(a, 20, 6, 2048); srd(a, 24, 10, MB4, WS_U); srd(a, 28, 10, MB4, WS_Y)
    nt = cfg.nt_in
    for j in range(4):
        a(f"buffer_load_dwordx4 {vr(176+4*j,4)}, v4, s[24:27], 0 offen offset:{1024*j}")
    for j in range(4):
        for sft in range(3):
            a(f"buffer_load_dwordx4 {vr(32+12*j+4*sft,4)}, v3, s[16:19], 0 offen offset:{1024*j+4*sft} {nt}")
    a(f"""
    s_lshl_b32 s50, s45, 1
    v_mov_b32 v5, s50
    buffer_load_ushort v6, v5, s[20:23], 0 offen
    v_and_b32 v7, 3, v2
    v_mul_u32_u24 v7, {UR_STR}, v7
    v_lshrrev_b32 v8, 2, v2
    v_lshlrev_b32 v8, 4, v8
    v_sub_u32 v7, v7, v8
    s_lshl_b32 s50, s3, 10
    s_sub_u32 s50, {UR_BASE + 255*16 - 3*256}, s50
    v_add_u32 v7, s50, v7
    v_mov_b32 v12, 0
    v_mov_b32 v13, 0
    v_mov_b32 v14, 0
    v_mov_b32 v15, 0
    s_mul_i32 s51, s3, {UR_STR}
    s_add_u32 s51, s51, {UR_BASE}    ; URc
    v_lshl_add_u32 v8, v2, 4, s51
    s_mov_b64 exec, 0x3fffffff
    ds_write_b128 v8, v[12:15] offset:4096
    s_mov_b64 exec, -1
    v_lshl_add_u32 v9, v2, 4, s49
    v_and_b32 v10, 15, v2            ; i' / a'
    v_lshrrev_b32 v11, 4, v2         ; g
    v_add_u32 v16, 1, v10            ; o+16
    v_and_b32 v17, 3, v16            ; c'
    v_sub_u32 v16, v16, v17          ; o-c'+16
    v_lshlrev_b32 v16, 1, v16        ; 2(o-c')+32
    v_mul_u32_u24 v17, {CP_STR}, v17
    v_add_u32 v16, v16, v17
    v_lshl_add_u32 v16, v11, 4, v16
    v_add_u32 v16, s49, v16          ; vA
    v_lshlrev_b32 v17, 5, v10
    v_sub_u32 v17, 480, v17
    v_lshl_add_u32 v17, v11, 4, v17
    v_add_u32 v17, s51, v17          ; vB
    ; e = 15 - i' - 8g
    v_lshlrev_b32 v18, 3, v11
    v_add_u32 v18, v18, v10
    v_sub_u32 v18, 15, v18
    s_waitcnt vmcnt(13)
    """)
    stamp(a, 0)
    for j in range(4):
        a(f"ds_write_b128 v7, {vr(176+4*j,4)} offset:{256*(3-j)}")
    for j in range(4):
        A, B, C = 32+12*j, 36+12*j, 40+12*j
        a(f"s_waitcnt vmcnt({1+3*(3-j)})")
        o1, o3 = 80+8*j, 84+8*j
        for i in range(4): a(f"v_alignbit_b32 v{o1+i}, v{B+i}, v{A+i}, 16")
        for i in range(4): a(f"v_alignbit_b32 v{o3+i}, v{C+i}, v{B+i}, 16")
        a(f"ds_write_b128 v9, {vr(A,4)} offset:{32+1024*j}")
        a(f"ds_write_b128 v9, {vr(B,4)} offset:{2*CP_STR+32+1024*j}")
        a(f"ds_write_b128 v9, {vr(o1,4)} offset:{CP_STR+32+1024*j}")
        a(f"ds_write_b128 v9, {vr(o3,4)} offset:{3*CP_STR+32+1024*j}")
    a(f"""
    v_readfirstlane_b32 s52, v32
    v_readfirstlane_b32 s53, v33
    s_nop 1
    s_lshl_b32 s54, s52, 16
    s_lshr_b32 s55, s52, 16
    s_lshl_b32 s56, s53, 16
    s_or_b32 s55, s55, s56
    v_writelane_b32 v15, s54, 3
    v_writelane_b32 v15, s52, 5
    v_writelane_b32 v14, s54, 7
    v_writelane_b32 v15, s55, 7
    v_lshrrev_b32 v19, 1, v2
    v_mul_u32_u24 v19, {CP_STR}, v19
    v_and_b32 v20, 1, v2
    v_lshl_add_u32 v19, v20, 4, v19
    v_add_u32 v19, s49, v19
    s_mov_b64 exec, 0xff
    ds_write_b128 v19, v[12:15]
    s_mov_b64 exec, -1
    s_waitcnt vmcnt(0)
    v_lshlrev_b32 v21, 16, v6
    """)
    for j in range(4):
        a(f"v_cmp_eq_u32 vcc, {2*j}, v18")
        a("s_nop 1")
        a(f"v_cndmask_b32 v{24+j}, 0, v6, vcc")
        a(f"v_cmp_eq_u32 vcc, {2*j+1}, v18")
        a("s_nop 1")
        a(f"v_cndmask_b32 v{24+j}, v{24+j}, v21, vcc")
    a("s_waitcnt lgkmcnt(0)")
    a("s_barrier")
    stamp(a, 1)
    ACC = 192
    FA = lambda s, w: 32 + 64*s + 4*w
    FB = lambda s, v: 64 + 64*s + 4*v
    def reads(z0):
        s = z0 & 1
        R = []
        for i in range(8):
            R.append(f"ds_read_b128 {vr(FB(s,i),4)}, v17 offset:{512*(7-i)+64*z0}")
            R.append(f"ds_read_b64 {vr(FA(s,i),2)}, v16 offset:{512*i+64*z0}")
            R.append(f"ds_read_b64 {vr(FA(s,i)+2,2)}, v16 offset:{512*i+64*z0+8}")
        return R
    for r in reads(0): a(r)
    a("s_waitcnt lgkmcnt(0)")
    for n in range(8):
        a(f"v_mfma_f32_16x16x32_bf16 {vr(ACC+4*n,4)}, v[24:27], {vr(FB(0,n),4)}, 0")
    for z0 in range(8):
        s = z0 & 1
        R = reads(z0+1) if z0 < 7 else []
        M = [(w, v) for w in range(8) for v in range(8-w)]
        for i, (w, v) in enumerate(M):
            a(f"v_mfma_f32_16x16x32_bf16 {vr(ACC+4*(w+v),4)}, {vr(FA(s,w),4)}, {vr(FB(s,v),4)}, {vr(ACC+4*(w+v),4)}")
            if i < len(R): a(R[i])
        if z0 < 7: a("s_waitcnt lgkmcnt(0)")
    stamp(a, 2)
    a(f"""
    v_lshlrev_b32 v20, 5, v10
    v_lshl_add_u32 v20, v11, 3, v20
    v_add_u32 v20, s49, v20
    s_lshl_b32 s50, s3, 10
    v_lshl_add_u32 v21, v2, 2, s50
    s_mov_b32 s56, 0x05040100
    s_mov_b32 s57, 0x07060302
    s_nop 4
    """)
    for n in range(8):
        a(f"v_cvt_pk_bf16_f32 v{32+2*n}, v{ACC+4*n}, v{ACC+4*n+1}")
        a(f"v_cvt_pk_bf16_f32 v{33+2*n}, v{ACC+4*n+2}, v{ACC+4*n+3}")
        a(f"ds_write_b64 v20, {vr(32+2*n,2)} offset:{512*n}")
    a("s_waitcnt lgkmcnt(0)")
    a("s_barrier")
    for j in range(4):
        a(f"ds_read2st64_b32 {vr(64+4*j,2)}, v21 offset0:{j} offset1:{65+j}")
        a(f"ds_read2st64_b32 {vr(66+4*j,2)}, v21 offset0:{130+j} offset1:{195+j}")
    for j in range(4):
        a(f"s_waitcnt lgkmcnt({6-2*j})")
        b = 64+4*j; o = 96+4*j
        a(f"v_perm_b32 v{o}, v{b+1}, v{b}, s56")
        a(f"v_perm_b32 v{o+1}, v{b+3}, v{b+2}, s56")
        a(f"v_perm_b32 v{o+2}, v{b+1}, v{b}, s57")
        a(f"v_perm_b32 v{o+3}, v{b+3}, v{b+2}, s57")
        a(f"buffer_store_dwordx4 {vr(o,4)}, v4, s[28:31], 0 offen offset:{1024*j} {cfg.st_pol}")
    fin(a, 1, "K1_end")
    return dict(name="k1_kernel", body=a.text(), vgpr=224, sgpr=64, grid=256, block=256, lds=UR_BASE+4*UR_STR)

def wave_stats(a, s1, s2, t, mean_rs, rstd):
    steps = ["quad_perm:[1,0,3,2] row_mask:0xf", "quad_perm:[2,3,0,1] row_mask:0xf", "row_half_mirror row_mask:0xf",
             "row_mirror row_mask:0xf", "row_bcast:15 row_mask:0xa", "row_bcast:31 row_mask:0xc"]
    a("s_nop 1")
    for st in steps:
        a(f"v_add_f32_dpp v{s1}, v{s1}, v{s1} {st} bank_mask:0xf")
        a(f"v_add_f32_dpp v{s2}, v{s2}, v{s2} {st} bank_mask:0xf")
        a("s_nop 0")
    a(f"""
    v_readlane_b32 s60, v{s1}, 63
    v_readlane_b32 s61, v{s2}, 63
    s_nop 1
    v_mul_f32 v{t}, s60, v250             ; mean
    v_mul_f32 v{rstd}, s61, v250          ; E[x^2]
    v_fma_f32 v{rstd}, -v{t}, v{t}, v{rstd}
    v_max_f32 v{rstd}, 0, v{rstd}
    v_add_f32 v{rstd}, {f32(1e-5)}, v{rstd}
    v_rsq_f32 v{rstd}, v{rstd}
    s_nop 0
    v_mul_f32 v{mean_rs}, v{t}, v{rstd}
    v_sub_f32 v{mean_rs}, 0, v{mean_rs}
    """.replace("v250", "v126"))

def gen_kb():
    a = Asm()
    head(a, 256, "KB_end")
    MODL = 16384
    a(f"""
    s_load_dwordx2 s[4:5], s[0:1], {KQ}
    s_load_dwordx2 s[10:11], s[0:1], {KWS}
    s_load_dwordx2 s[6:7], s[0:1], {KW1}
    s_load_dwordx2 s[8:9], s[0:1], {KW2}
    v_lshrrev_b32 v1, 6, v0
    v_and_b32 v2, 63, v0
    v_readfirstlane_b32 s3, v1
    s_and_b32 s44, s2, 7
    s_lshr_b32 s45, s2, 3
    s_lshl_b32 s44, s44, 5
    s_add_u32 s44, s44, s45
    s_lshl_b32 s45, s44, 3
    s_add_u32 s45, s45, s3           ; row
    s_lshl_b32 s46, s45, 11
    v_lshl_add_u32 v3, v2, 4, s46
    v_lshrrev_b32 v4, 2, v2
    v_and_b32 v5, 7, v4
    v_lshlrev_b32 v5, 1, v5
    v_lshrrev_b32 v4, 3, v4
    v_add_u32 v5, v5, v4             ; G (0..15)
    v_lshrrev_b32 v6, 3, v5
    v_and_b32 v7, 3, v2
    v_xor_b32 v6, v6, v7
    v_lshlrev_b32 v5, 14, v5
    s_lshl_b32 s47, s3, 19           ; (2w*16)*16384
    s_lshl_b32 s48, s44, 6
    s_add_u32 s47, s47, s48
    v_add_u32 v5, s47, v5
    v_lshl_add_u32 v8, v6, 4, v5
    v_xor_b32 v6, 2, v6
    v_lshl_add_u32 v9, v6, 4, v5
    v_lshlrev_b32 v10, 4, v0
    s_mov_b32 s49, 0x40000
    s_mov_b32 s50, 8192
    s_mov_b32 s51, 16384
    s_mov_b32 s52, 24576
    s_mov_b32 s53, 32768
    s_mov_b32 s54, 40960
    s_waitcnt lgkmcnt(0)
    """)
    srd(a, 16, 4, MB4); srd(a, 20, 10, MB4, WS_Y); srd(a, 24, 10, 2*6144*4, WS_MODP)
    srd(a, 28, 10, MB4, WS_X1); srd(a, 32, 10, MB4, WS_Y2); srd(a, 36, 10, 8192+65536, 0x3000000)
    a("""
    s_mul_i32 s55, s2, 288
    v_lshl_add_u32 v11, v0, 2, s55
    v_mov_b32 v12, 0
    v_cmp_gt_u32 vcc, 72, v0
    s_and_saveexec_b64 s[56:57], vcc
    s_cbranch_execz KB_nz
    buffer_store_dword v12, v11, s[36:39], 0 offen
    KB_nz:
    s_mov_b64 exec, -1
    """)
    a(f"""
    s_lshl_b32 s55, s3, 11
    s_mov_b32 m0, s55
    buffer_load_dwordx4 v[16:19], v10, s[24:27], 0 offen
    buffer_load_dwordx4 v8, s[20:23], 0 offen lds
    s_add_u32 m0, s55, 1024
    buffer_load_dwordx4 v[20:23], v10, s[24:27], s52 offen
    buffer_load_dwordx4 v9, s[20:23], s49 offen lds
    buffer_load_dwordx4 v[24:27], v10, s[24:27], s50 offen
    buffer_load_dwordx4 v[28:31], v10, s[24:27], s53 offen
    buffer_load_dwordx4 v[32:35], v10, s[24:27], s51 offen
    buffer_load_dwordx4 v[36:39], v10, s[24:27], s54 offen
    buffer_load_dwordx4 v[40:43], v3, s[16:19], 0 offen {cfg.nt_in}
    buffer_load_dwordx4 v[44:47], v3, s[16:19], 0 offen offset:1024 {cfg.nt_in}
    v_lshrrev_b32 v11, 7, v0         ; (vec&1)*2 + h
    v_lshlrev_b32 v11, 11, v11
    v_and_b32 v12, 1, v0
    v_lshl_add_u32 v11, v12, 10, v11
    v_bfe_u32 v12, v0, 1, 6
    v_lshl_add_u32 v11, v12, 4, v11
    v_cmp_le_u32 vcc, 256, v0
    v_mov_b32 v126, {f32(1.0/1024)}
    s_nop 0
    v_cndmask_b32_e64 v13, 0, 1.0, vcc
    v_sub_f32 v14, 1.0, v13
    v_lshrrev_b32 v4, 3, v2
    v_lshlrev_b32 v4, 10, v4
    v_and_b32 v5, 7, v2
    v_lshl_add_u32 v4, v5, 6, v4
    v_bfe_u32 v5, v2, 2, 2
    s_lshr_b32 s56, s3, 1
    v_xor_b32 v5, s56, v5
    v_lshl_add_u32 v4, v5, 4, v4
    s_and_b32 s56, s3, 1
    s_lshl_b32 s56, s56, 3
    v_add_u32 v4, s56, v4
    v_lshlrev_b32 v5, 4, v2
    s_waitcnt vmcnt(2)
    """)
    stamp(a, 0)
    for i in range(3):
        for e in range(4):
            a(f"v_add_f32 v{16+8*i+e}, v{16+8*i+e}, v{20+8*i+e}")
        if i != 1:
            for e in range(4):
                a(f"v_add_f32 v{16+8*i+e}, v{16+8*i+e}, v{13 if i == 0 else 14}")
        a(f"ds_write_b128 v11, {vr(16+8*i,4)} offset:{MODL+8192*i}")
    srd(a, 40, 10, 2048, WS_GB)
    a("""
    s_cmp_lg_u32 s2, 0
    s_cbranch_scc1 KB_nogb
    s_cmp_lt_u32 s3, 4
    s_cbranch_scc1 KB_nogb
    v_cvt_pk_bf16_f32 v36, v32, v33
    v_cvt_pk_bf16_f32 v37, v34, v35
    v_lshlrev_b32 v38, 3, v0
    v_add_u32 v38, 0xfffff800, v38
    buffer_store_dwordx2 v[36:37], v38, s[40:43], 0 offen
    KB_nogb:
    """)
    a("s_waitcnt vmcnt(0)")
    Q, Y, T = 48, 64, 80
    for j in range(8):
        a(f"v_lshlrev_b32 v{Q+2*j}, 16, v{40+j}")
        a(f"v_and_b32 v{Q+2*j+1}, 0xffff0000, v{40+j}")
    a("s_waitcnt lgkmcnt(0)")
    a("s_barrier")
    stamp(a, 1)
    if cfg.kb_pf:
        a(f"""
        s_cmp_lt_u32 s3, 4
        s_cselect_b32 s64, s6, s8
        s_cselect_b32 s65, s7, s9
        s_mov_b32 s66, 7340032
        s_mov_b32 s67, 0x20000
        s_mul_i32 s55, s2, 28672
        s_and_b32 s56, s3, 3
        s_mul_i32 s56, s56, 7168
        s_add_u32 s55, s55, s56
        v_lshl_add_u32 v15, v2, 4, s55
        s_mov_b32 s55, 4096
        """)
        if cfg.kb_pf == 1:
            a("s_cmp_lt_u32 s3, 4")
            a("s_cbranch_scc0 KB_nopf")
        for i in range(7):
            a(f"buffer_load_dwordx4 {vr(144+4*i,4)}, v15, s[64:67], {'0' if i < 4 else 's55'} offen offset:{1024*(i%4)}")
        a("KB_nopf:")
    for h in range(2):
        for e in range(2):
            a(f"ds_read_b64 {vr(40+4*h+2*e,2)}, v4 offset:{8192*h+512*e}")
    def modread(vec, dst):
        for h in range(2):
            for half in range(2):
                a(f"ds_read_b128 {vr(dst+8*h+4*half,4)}, v5 offset:{MODL+4096*vec+2048*h+1024*half}")
    M0, M1, M2 = 16, 96, 112
    M2 = 128
    modread(1, M0); modread(0, M1); modread(2, M2)
    def stats(X):
        a(f"v_add_f32 v6, v{X}, v{X+1}")
        a(f"v_mul_f32 v7, v{X}, v{X}")
        a(f"v_fmac_f32 v7, v{X+1}, v{X+1}")
        for j in range(2, 16):
            a(f"v_add_f32 v6, v6, v{X+j}")
            a(f"v_fmac_f32 v7, v{X+j}, v{X+j}")
        wave_stats(a, 6, 7, 8, 9, 10)
    stats(Q)
    a("s_waitcnt lgkmcnt(0)")
    for j in range(8):
        a(f"v_lshlrev_b32 v{Y+2*j}, 16, v{40+j}")
        a(f"v_and_b32 v{Y+2*j+1}, 0xffff0000, v{40+j}")
    for j in range(16): a(f"v_fma_f32 v{T+j}, v{Q+j}, v10, v9")
    for j in range(16): a(f"v_fma_f32 v{T+j}, v{T+j}, v{M0+j}, v{M1+j}")
    modread(4, M0); modread(3, M1)
    for j in range(16): a(f"v_mul_f32 v{T+j}, v{T+j}, v{Y+j}")
    for j in range(16): a(f"v_fmac_f32 v{Q+j}, v{T+j}, v{M2+j}")
    for j in range(8): a(f"v_cvt_pk_bf16_f32 v{40+j}, v{Q+2*j}, v{Q+2*j+1}")
    a(f"buffer_store_dwordx4 v[40:43], v3, s[28:31], 0 offen {cfg.st_pol}")
    a(f"buffer_store_dwordx4 v[44:47], v3, s[28:31], 0 offen offset:1024 {cfg.st_pol}")
    stats(Q)
    a("s_waitcnt lgkmcnt(0)")
    for j in range(16): a(f"v_fma_f32 v{T+j}, v{Q+j}, v10, v9")
    for j in range(16): a(f"v_fma_f32 v{T+j}, v{T+j}, v{M0+j}, v{M1+j}")
    stats(T)
    for j in range(16): a(f"v_fma_f32 v{T+j}, v{T+j}, v10, v9")
    for j in range(8): a(f"v_cvt_pk_bf16_f32 v{Y+j}, v{T+2*j}, v{T+2*j+1}")
    stamp(a, 2)
    a(f"buffer_store_dwordx4 {vr(Y,4)}, v3, s[32:35], 0 offen {cfg.st_pol}")
    a(f"buffer_store_dwordx4 {vr(Y+4,4)}, v3, s[32:35], 0 offen offset:1024 {cfg.st_pol}")
    fin(a, 2, "KB_end")
    return dict(name="kb_kernel", body=a.text(), vgpr=176, sgpr=72, grid=256, block=512, lds=MODL+24576)

def gen_diag():
    ka, wa, fa, kb, wb, fb = [int(x) for x in cfg.diag.split(",")]
    off = lambda k, w, f: WS_ST + ((k*256)*16 + w)*64 + 4*f
    first = 6 if "pf" in cfg.extra else 0
    a = Asm()
    a(f"""
    s_cmp_lg_u32 s2, 0
    s_cbranch_scc1 DG_end
    s_load_dwordx2 s[4:5], s[0:1], {KWS}
    s_waitcnt lgkmcnt(0)
    s_add_u32 s6, s4, {off(first,0,0)}
    s_addc_u32 s7, s5, 0
    s_add_u32 s8, s4, {off(ka,wa,fa)}
    s_addc_u32 s9, s5, 0
    s_add_u32 s10, s4, {off(kb,wb,fb)}
    s_addc_u32 s11, s5, 0
    s_load_dword s12, s[6:7], 0
    s_load_dword s13, s[8:9], 0
    s_load_dword s14, s[10:11], 0
    s_waitcnt lgkmcnt(0)
    s_sub_u32 s14, s14, s13
    s_min_u32 s14, s14, 60000
    {"s_lshl_b32 s14, s14, 2" if (fa < 2 or cfg.rt) else "s_lshr_b32 s14, s14, 2"}
    s_add_u32 s14, s14, 20000
    s_mov_b32 s15, 0
    DG_loop:
    s_memrealtime s[16:17]
    s_waitcnt lgkmcnt(0)
    s_sub_u32 s16, s16, s12
    s_add_u32 s15, s15, 1
    s_cmp_gt_u32 s15, 200000
    s_cbranch_scc1 DG_end
    s_cmp_lt_u32 s16, s14
    s_cbranch_scc1 DG_loop
    DG_end:
    s_endpgm
    """)
    return dict(name="dg_kernel", body=a.text(), vgpr=8, sgpr=32, grid=8, block=64, lds=0)

def gen_nop():
    a = Asm()
    a("s_endpgm")
    return dict(name="nop_kernel", body=a.text(), vgpr=8, sgpr=16, grid=256, block=64, lds=0)

def gen_pf():
    a = Asm()
    head(a, 256, "PF_end")
    a(f"""
    s_load_dwordx2 s[4:5], s[0:1], {KW1}
    s_load_dwordx2 s[6:7], s[0:1], {KW2}
    s_mul_i32 s44, s2, 28672
    v_lshl_add_u32 v1, v0, 4, s44
    s_waitcnt lgkmcnt(0)
    """)
    srd(a, 16, 4, 7340032); srd(a, 20, 6, 7340032)
    a("s_mov_b32 s45, 0")
    for i in range(7):
        a(f"buffer_load_dwordx4 {vr(4+8*i,4)}, v1, s[16:19], s45 offen {cfg.pf_pol}")
        a(f"buffer_load_dwordx4 {vr(8+8*i,4)}, v1, s[20:23], s45 offen {cfg.pf_pol}")
        a("s_add_u32 s45, s45, 4096")
    a("s_waitcnt vmcnt(0)")
    fin(a, 6, "PF_end")
    return dict(name="pf_kernel", body=a.text(), vgpr=64, sgpr=64, grid=256, block=256, lds=0)

def emit(kernels):
    ref = open(f"cdna_kernels/{NAME}.s.ref").read().splitlines()
    hdr = [l for l in ref if l.startswith(";") and "@launch" not in l and "Override" not in l and "grid=ceil" not in l]
    out = list(hdr)
    for k in kernels:
        out.append(f"; @launch kernel={k['name']} grid=({k['grid']},1,1) block=({k['block']},1,1) lds={k['lds']}")
    out.append('.amdgcn_target "amdgcn-amd-amdhsa--gfx950"')
    out.append(".text")
    seen = []
    for k in kernels:
        if k['name'] in seen: continue
        seen.append(k['name'])
        out.append(kernel_text(k['name'], k['body']))
    out.append(".fill 128, 4, 0xbf800000")
    out.append('.section .rodata,"a"')
    seen = []
    for k in kernels:
        if k['name'] in seen: continue
        seen.append(k['name'])
        out.append(".p2align 6")
        out.append(kernel_desc(k['name'], k['vgpr'], 102 if cfg.stamps else k['sgpr'], k.get('accum')))
    return "\n".join(out) + "\n"

def main():
    import gemm
    for arg in sys.argv[2:]:
        k, v = arg.split("=")
        cur = getattr(cfg, k)
        setattr(cfg, k, (v == "1") if isinstance(cur, bool) else type(cur)(v.replace("+", " ")))
    import kg
    if cfg.fused: ks = [gen_k0(), gen_k1(), gen_kb(), kg.gen_kg()]
    else: ks = [gen_k0(), gen_k1(), gen_kb(), gemm.gen_kc(), gemm.gen_kd(), gemm.gen_ke()]
    if cfg.fuseA:
        import ka
        ks = [ka.gen_ka()] + ks[2:]
    if "pf" in cfg.extra: ks = [gen_pf()] + ks
    if "nop" in cfg.extra: ks = ks + [gen_nop()]
    if "nop4" in cfg.extra: ks = ks + [gen_nop()]*3
    if cfg.diag: ks = ks + [gen_diag()]
    dst = sys.argv[1] if len(sys.argv) > 1 else f"cdna_kernels/{NAME}.s"
    open(dst, "w").write(emit(ks))
    print("wrote", dst)

if __name__ == "__main__":
    import gen
    gen.main()
```

```python
from asmlib import *
from gen import *

WS_FA = 0x3100000
SPIN_MAX = 1 << 16
STG = UR_BASE + 4*UR_STR
RED = STG + 8*5120

def gen_ka(kidx=0):
    a = Asm()
    head(a, 256, "KA_end")
    nt = cfg.nt_in
    a(f"""
    s_load_dwordx4 s[4:7], s[0:1], {KK}
    s_load_dwordx2 s[10:11], s[0:1], {KWS}
    s_load_dwordx4 s[12:15], s[0:1], {KSH}
    v_lshrrev_b32 v1, 6, v0
    v_and_b32 v2, 63, v0
    v_readfirstlane_b32 s3, v1
    s_and_b32 s44, s2, 7
    s_lshr_b32 s45, s2, 3
    s_lshl_b32 s43, s44, 5
    s_add_u32 s43, s43, s45          ; cq
    s_lshr_b32 s44, s43, 4           ; cg
    s_and_b32 s45, s45, 15
    s_lshl_b32 s46, s45, 7
    s_lshl_b32 s47, s3, 4
    s_add_u32 s46, s46, s47
    s_lshl_b32 s47, s46, 11
    s_lshl_b32 s48, s44, 7
    s_add_u32 s47, s47, s48
    v_lshrrev_b32 v7, 3, v2          ; l>>3
    v_and_b32 v15, 7, v2             ; l&7
    v_lshlrev_b32 v3, 11, v7
    v_lshl_add_u32 v3, v15, 4, v3
    v_add_u32 v3, s47, v3            ; vk
    v_add_u32 v4, 0xffffc000, v3
    s_mul_i32 s49, s3, 5120
    s_add_u32 s49, s49, {STG}
    s_mov_b32 s50, 16384
    s_mov_b32 s18, {MB4}
    s_mov_b32 s19, 0x20000
    s_mov_b32 s22, {MB4}
    s_mov_b32 s23, 0x20000
    s_mov_b32 s26, 8192
    s_mov_b32 s27, 0x20000
    s_lshl_b32 s51, s44, 9
    v_lshl_add_u32 v5, v2, 3, s51
    s_add_u32 m0, s49, 1024
    s_waitcnt lgkmcnt(0)
    s_mov_b32 s16, s4
    s_mov_b32 s17, s5
    s_mov_b32 s20, s6
    s_mov_b32 s21, s7
    buffer_load_dwordx4 v3, s[16:19], 0 offen {nt} lds
    s_add_u32 m0, s49, 3072
    s_mov_b32 s24, s12
    buffer_load_dwordx4 v3, s[20:23], 0 offen {nt} lds
    s_add_u32 m0, s49, 2048
    s_mov_b32 s25, s13
    buffer_load_dwordx4 v3, s[16:19], s50 offen {nt} lds
    s_add_u32 m0, s49, 4096
    buffer_load_dwordx2 v[8:9], v5, s[24:27], 0 offen
    buffer_load_dwordx4 v3, s[20:23], s50 offen {nt} lds
    s_mov_b32 m0, s49
    s_mov_b32 exec_lo, 0
    buffer_load_dwordx4 v4, s[16:19], 0 offen {nt} lds
    s_mov_b32 exec_lo, -1
    s_lshl_b32 s51, s44, 9
    s_add_u32 s52, s10, s51
    s_addc_u32 s53, s11, 0
    s_add_u32 s52, s52, {WS_FA}
    s_addc_u32 s53, s53, 0
    s_load_dword s42, s[52:53], 256
    s_load_dwordx2 s[4:5], s[0:1], {KSD}
    s_load_dwordx4 s[56:59], s[0:1], {KC_}
    s_load_dwordx2 s[6:7], s[0:1], {KQ}
    s_load_dwordx2 s[8:9], s[0:1], {KW1}
    """)
    HB, BS = 2048*3584*2, 8*112*1024
    srd(a, 28, 10, HB - 56*1024, WS_H + 56*1024)
    a(f"""
    s_lshr_b32 s55, s44, 1
    s_mul_i32 s55, s55, 112
    s_and_b32 s63, s44, 1
    s_mul_i32 s63, s63, 28
    s_add_u32 s55, s55, s63
    s_lshl_b32 s55, s55, 10
    s_mul_i32 s63, s45, {BS}
    s_add_u32 s55, s55, s63
    s_lshl_b32 s63, s3, 7
    s_add_u32 s55, s55, s63
    v_lshrrev_b32 v6, 4, v2          ; m>>2
    v_and_b32 v50, 1, v6
    v_mad_u32_u24 v6, v6, 7, v50
    v_bfe_u32 v50, v2, 2, 2
    v_add_lshl_u32 v6, v6, v50, 10
    v_and_b32 v50, 3, v2
    v_lshl_add_u32 v6, v50, 4, v6
    v_add_u32 v6, s55, v6
    v_lshrrev_b32 v51, 5, v2
    v_lshlrev_b32 v51, 3, v51
    v_and_b32 v50, 3, v7
    v_add_lshl_u32 v51, v51, v50, 10
    v_lshl_add_u32 v51, v15, 4, v51
    v_add_u32 v51, s55, v51
    s_mov_b32 s40, 14336
    s_getreg_b32 s41, hwreg(HW_REG_XCC_ID, 0, 4)
    s_barrier
    """)
    NT = 2 if (cfg.ul2 and "notouch" not in cfg.exp) else 0
    if NT:
        a("buffer_load_dwordx4 v[164:167], v51, s[28:31], 0 offen sc1")
        a("buffer_load_dwordx4 v[168:171], v51, s[28:31], s40 offen sc1")
    a(f"""
    s_cmp_ge_u32 s3, 4
    s_cbranch_scc1 KA_hpre
    """)
    srd(a, 32, 14, MB4)
    a(f"""
    s_lshl_b32 s54, s43, 2
    s_add_u32 s54, s54, s3           ; channel d
    s_lshl_b32 s55, s54, 12
    v_lshl_add_u32 v5, v2, 4, s55
    """)
    KR = 128
    a("s_waitcnt lgkmcnt(0)")
    a("s_add_u32 s42, s42, 0x9e3779b9")
    srd(a, 36, 4, 2048); srd(a, 24, 52, 512)
    a(f"""
    s_lshl_b32 s55, s54, 1
    v_mov_b32 v50, s55
    v_mov_b32 v108, 0
    v_mov_b32 v78, -1
    v_mov_b32 v72, 0
    s_mov_b32 s64, s52
    s_mov_b32 s65, s53
    s_mov_b32 s66, 512
    s_mov_b32 s67, 0x20000
    v_and_b32 v22, 15, v2
    v_lshlrev_b32 v22, 2, v22
    v_and_b32 v23, 16, v2
    v_lshl_add_u32 v127, v23, 3, v22
    s_waitcnt vmcnt({NT})
    """)
    for j in range(4):
        a(f"buffer_load_dwordx4 {vr(KR+6*j,4)}, v5, s[32:35], 0 offen offset:{1024*j} {nt}")
        a(f"buffer_load_dwordx2 {vr(KR+6*j+4,2)}, v5, s[32:35], 0 offen offset:{1024*j+16} {nt}")
    a(f"""
    buffer_load_ushort v126, v50, s[36:39], 0 offen
    buffer_load_dword v160, v127, s[24:27], 0 offen sc1
    s_branch KA_phaseA
    KA_hpre:
    s_waitcnt lgkmcnt(0)
    """)
    srd(a, 32, 56, 2048); srd(a, 36, 58, 1024*6144*2); srd(a, 64, 52, 512)
    a(f"""
    s_add_u32 s42, s42, 0x9e3779b9
    s_lshl_b32 s58, s45, 2
    v_mov_b32 v72, s58
    s_add_u32 s58, s42, s41
    v_mov_b32 v73, s58
    v_mov_b32 v74, s42
    v_and_b32 v75, 15, v2
    v_lshlrev_b32 v75, 2, v75
    """)
    a(f"""
    v_mov_b32 v127, 0
    s_sub_u32 s60, s3, 4             ; hw
    s_and_b32 s61, s2, 7
    s_mul_i32 s61, s61, 12
    s_lshr_b32 s62, s2, 4
    s_add_u32 s61, s61, s62
    s_bfe_u32 s62, s2, 0x10003       ; k half
    s_lshl_b32 s54, s62, 9
    s_lshl_b32 s55, s60, 7
    s_add_u32 s54, s54, s55
    v_lshl_add_u32 v60, v7, 4, s54
    v_lshlrev_b32 v61, 1, v60
    s_mov_b32 s55, 12288
    v_mul_lo_u32 v108, v60, s55
    s_lshl_b32 s55, s61, 7
    v_lshl_add_u32 v109, v15, 4, s55
    v_add_u32 v108, v108, v109
    s_mov_b32 s16, s10
    s_mov_b32 s17, s11
    s_mov_b32 s18, 0x4000000
    s_lshr_b32 s54, s61, 3
    s_lshl_b32 s54, s54, 11
    s_and_b32 s55, s61, 7
    s_lshl_b32 s55, s55, 7
    s_add_u32 s54, s54, s55
    s_add_u32 s54, s54, {WS_MOD}
    v_bfe_u32 v78, v2, 2, 1
    v_lshlrev_b32 v78, 10, v78
    v_lshl_add_u32 v78, v7, 4, v78
    v_and_b32 v79, 3, v2
    v_lshl_add_u32 v78, v79, 2, v78
    v_add_u32 v78, s54, v78
    v_mov_b32 v80, 0
    s_mul_i32 s54, s2, {FL2_BYTES//256}
    s_sub_u32 s55, s60, 1
    s_lshl_b32 s55, s55, 8
    s_add_u32 s54, s54, s55
    s_add_u32 s54, s54, {WS_FL2}
    v_lshl_add_u32 v79, v2, 2, s54
    s_lshl_b32 s55, s60, 6
    v_add_u32 v81, s55, v2
    v_cmp_gt_u32 vcc, {64 + FL2_BYTES//1024}, v81
    v_mov_b32 v81, 0x4000000
    s_cmp_lt_u32 s2, 192
    s_cselect_b32 s54, s62, 1
    v_cndmask_b32 v79, v81, v79, vcc
    s_cmp_lg_u32 s60, 0
    s_cbranch_scc1 KA_z1
    s_cmp_eq_u32 s54, 0
    s_cselect_b64 vcc, -1, 0
    v_cndmask_b32 v79, v81, v78, vcc
    KA_z1:
    buffer_store_dword v80, v79, s[16:19], 0 offen sc1
    buffer_load_dwordx4 v[64:67], v61, s[32:35], 0 offen
    buffer_load_dwordx4 v[68:71], v61, s[32:35], 0 offen offset:16
    s_waitcnt vmcnt({3+NT})
    KA_phaseA:
    """)
    stamp(a, 0)
    a("""
    v_lshrrev_b32 v5, 4, v2          ; g
    v_bfe_u32 v10, v2, 2, 2
    v_and_b32 v11, 3, v2
    v_lshlrev_b32 v10, 7, v10
    v_lshl_add_u32 v10, v5, 5, v10
    v_lshl_add_u32 v10, v11, 3, v10
    v_add_u32 v5, s49, v10
    """)
    for p in range(5):
        a(f"ds_read_b64_tr_b16 {vr(16+2*p,2)}, v5 offset:{512+512*p}")
    for p in range(4):
        a(f"ds_read_b64_tr_b16 {vr(26+2*p,2)}, v5 offset:{3072+512*p}")
    a("""
    v_alignbit_b32 v10, v8, v8, 16   ; A=(w1,w0)
    v_alignbit_b32 v11, v9, v9, 16   ; B=(w3,w2)
    v_and_b32 v12, 0xffff, v8        ; C=(w0,0)
    s_mov_b32 s55, 0xffff
    v_bfi_b32 v13, s55, v9, v8       ; D=(w2,w1)
    v_and_b32 v14, 0xffff0000, v9    ; E=(0,w3)
    s_waitcnt lgkmcnt(4)
    """)
    P = lambda q: 16 + q + 2
    ks = lambda t: 34 + t
    for q in range(8):
        a(f"v_dot2_f32_bf16 v{ks(2*q)}, v{P(q)}, v12, 0")
        a(f"v_dot2_f32_bf16 v{ks(2*q+1)}, v{P(q)}, v10, 0")
    for q in range(8):
        a(f"v_dot2_f32_bf16 v{ks(2*q)}, v{P(q-1)}, v13, v{ks(2*q)}")
        a(f"v_dot2_f32_bf16 v{ks(2*q+1)}, v{P(q-1)}, v11, v{ks(2*q+1)}")
    for q in range(8):
        a(f"v_dot2_f32_bf16 v{ks(2*q)}, v{P(q-2)}, v14, v{ks(2*q)}")
    a("s_waitcnt lgkmcnt(0)")
    for h in range(2):
        for q in range(4*h, 4*h+4):
            a(f"v_lshlrev_b32 v{110+2*q}, 16, v{26+q}")
            a(f"v_and_b32 v{111+2*q}, 0xffff0000, v{26+q}")
        for t in range(8*h, 8*h+8):
            a(f"v_mul_f32 v{ks(t)}, v{ks(t)}, v{110+t}")
        for j in range(4):
            a(f"v_cvt_pk_bf16_f32 v{52+4*h+j}, v{ks(8*h+7-2*j)}, v{ks(8*h+6-2*j)}")
        a(f"buffer_store_dwordx4 {vr(52+4*h,4)}, v6, s[28:31], 0 offen offset:{64*h} {'' if cfg.ul2 else 'sc1'}")
    stamp(a, 1)
    a("""
    s_cmp_ge_u32 s3, 4
    s_cbranch_scc1 KA_helper
    """)
    srd(a, 20, 10, HB, WS_H)
    a(f"""
    s_mul_i32 s49, s3, {CH_STR}      ; chbase
    s_lshr_b32 s47, s43, 5
    s_mul_i32 s47, s47, 112
    s_bfe_u32 s48, s43, 0x30002
    s_mul_i32 s60, s48, 7
    s_add_u32 s47, s47, s60
    s_and_b32 s48, s48, 1
    s_add_u32 s47, s47, s48
    s_and_b32 s48, s43, 3
    s_add_u32 s47, s47, s48
    s_lshl_b32 s47, s47, 10
    s_mul_i32 s48, s3, {4*BS}
    s_add_u32 s48, s48, s47
    v_lshl_add_u32 v4, v2, 4, s48    ; U / Y offset
    s_mov_b32 s60, {BS}
    s_mov_b32 s61, {2*BS}
    s_mov_b32 s62, {3*BS}
    v_and_b32 v7, 3, v2
    v_mul_u32_u24 v7, {UR_STR}, v7
    v_lshrrev_b32 v8, 2, v2
    v_lshlrev_b32 v8, 4, v8
    v_sub_u32 v7, v7, v8
    s_lshl_b32 s50, s3, 10
    s_sub_u32 s50, {UR_BASE + 255*16 - 3*256}, s50
    v_add_u32 v7, s50, v7
    v_mov_b32 v12, 0
    v_mov_b32 v13, 0
    v_mov_b32 v14, 0
    v_mov_b32 v15, 0
    s_mul_i32 s51, s3, {UR_STR}
    s_add_u32 s51, s51, {UR_BASE}    ; URc
    v_lshl_add_u32 v8, v2, 4, s51
    s_mov_b64 exec, 0x3fffffff
    ds_write_b128 v8, v[12:15] offset:4096
    s_mov_b64 exec, -1
    v_lshl_add_u32 v9, v2, 4, s49
    v_and_b32 v10, 15, v2            ; i' / a'
    v_lshrrev_b32 v11, 4, v2         ; g
    v_add_u32 v16, 1, v10
    v_and_b32 v17, 3, v16
    v_sub_u32 v16, v16, v17
    v_lshlrev_b32 v16, 1, v16
    v_mul_u32_u24 v17, {CP_STR}, v17
    v_add_u32 v16, v16, v17
    v_lshl_add_u32 v16, v11, 4, v16
    v_add_u32 v16, s49, v16          ; vA
    v_lshlrev_b32 v17, 5, v10
    v_sub_u32 v17, 480, v17
    v_lshl_add_u32 v17, v11, 4, v17
    v_add_u32 v17, s51, v17          ; vB
    v_lshlrev_b32 v18, 3, v11
    v_add_u32 v18, v18, v10
    v_sub_u32 v18, 15, v18
    v_mov_b32 v22, v127
    s_lshl_b32 s50, s45, 2
    v_mov_b32 v23, s50
    v_mov_b32 v28, s42
    s_add_u32 s50, s42, s41
    v_mov_b32 v30, s50
    v_cmp_le_u32 vcc, 128, v22
    s_nop 1
    v_cndmask_b32 v30, v30, v28, vcc
    """)
    for j in range(4):
        E = KR+6*j
        a(f"s_waitcnt vmcnt({4+2*(3-j)})")
        o1, o2, o3 = 64+12*j, 68+12*j, 72+12*j
        a(f"ds_write_b128 v9, {vr(E,4)} offset:{32+1024*j}")
        for i in range(4): a(f"v_alignbit_b32 v{o1+i}, v{E+i+1}, v{E+i}, 16")
        a(f"ds_write_b128 v9, {vr(o1,4)} offset:{CP_STR+32+1024*j}")
        for i in range(4): a(f"v_mov_b32 v{o2+i}, v{E+i+1}")
        a(f"ds_write_b128 v9, {vr(o2,4)} offset:{2*CP_STR+32+1024*j}")
        for i in range(4): a(f"v_alignbit_b32 v{o3+i}, v{E+i+2}, v{E+i+1}, 16")
        a(f"ds_write_b128 v9, {vr(o3,4)} offset:{3*CP_STR+32+1024*j}")
    a(f"""
    s_waitcnt vmcnt(0)
    s_barrier
    """)
    stamp(a, 2)
    a(f"""
    v_readfirstlane_b32 s54, v{KR}
    v_readfirstlane_b32 s55, v{KR+1}
    s_nop 1
    s_lshl_b32 s56, s54, 16
    s_lshr_b32 s57, s54, 16
    s_lshl_b32 s58, s55, 16
    s_or_b32 s57, s57, s58
    v_writelane_b32 v15, s56, 3
    v_writelane_b32 v15, s54, 5
    v_writelane_b32 v14, s56, 7
    v_writelane_b32 v15, s57, 7
    v_lshrrev_b32 v19, 1, v2
    v_mul_u32_u24 v19, {CP_STR}, v19
    v_and_b32 v20, 1, v2
    v_lshl_add_u32 v19, v20, 4, v19
    v_add_u32 v19, s49, v19
    s_mov_b64 exec, 0xff
    ds_write_b128 v19, v[12:15]
    s_mov_b64 exec, -1
    v_lshlrev_b32 v21, 16, v126
    """)
    for j in range(4):
        a(f"v_cmp_eq_u32 vcc, {2*j}, v18")
        a("s_nop 1")
        a(f"v_cndmask_b32 v{24+j}, 0, v126, vcc")
        a(f"v_cmp_eq_u32 vcc, {2*j+1}, v18")
        a("s_nop 1")
        a(f"v_cndmask_b32 v{24+j}, v{24+j}, v21, vcc")
    ACC = 192
    FA = lambda s, w: 32 + 64*s + 4*w
    FB = lambda s, v: 64 + 64*s + 4*v
    def readsA(z0):
        s = z0 & 1
        R = []
        for i in range(8):
            R.append(f"ds_read_b64 {vr(FA(s,i),2)}, v16 offset:{512*i+64*z0}")
            R.append(f"ds_read_b64 {vr(FA(s,i)+2,2)}, v16 offset:{512*i+64*z0+8}")
        return R
    def readsB(z0):
        s = z0 & 1
        return [f"ds_read_b128 {vr(FB(s,i),4)}, v17 offset:{512*(7-i)+64*z0}" for i in range(8)]
    a("s_waitcnt lgkmcnt(0)")
    for r in readsA(0): a(r)
    a(f"""
    s_mov_b32 s59, 0
    s_cmp_eq_u32 s3, 0
    s_cselect_b32 s58, {cfg.relpoll if cfg.ul2 else -1}, -1
    KA_poll:
    s_cmp_lg_u32 s59, s58
    s_cbranch_scc1 KA_norel
    buffer_wbl2 sc1
    s_waitcnt vmcnt(0)
    s_mov_b64 exec, 1
    buffer_store_dword v28, v23, s[24:27], 0 offen offset:128 sc1
    s_mov_b64 exec, -1
    KA_norel:
    buffer_load_dword v29, v22, s[24:27], 0 offen sc1
    s_add_u32 s59, s59, 1
    s_waitcnt vmcnt(0)
    v_cmp_eq_u32 vcc, v30, v29
    s_cmp_gt_u32 s59, {SPIN_MAX}
    s_cbranch_scc1 KA_poll_x
    s_lshr_b32 s57, vcc_lo, 16
    s_or_b32 s57, s57, vcc_lo
    s_and_b32 s57, s57, 0xffff
    s_cmp_lg_u32 s57, 0xffff
    s_cbranch_scc1 KA_poll
    KA_poll_x:
    s_and_b32 s57, vcc_lo, 0xffff
    s_cmp_eq_u32 s57, 0xffff
    s_cbranch_scc1 KA_near
    s_cmp_gt_u32 s59, s58
    s_cbranch_scc1 KA_acq
    s_cmp_lg_u32 s3, 0
    s_cbranch_scc1 KA_acq
    buffer_wbl2 sc1
    s_waitcnt vmcnt(0)
    s_mov_b64 exec, 1
    buffer_store_dword v28, v23, s[24:27], 0 offen offset:128 sc1
    s_mov_b64 exec, -1
    KA_acq:
    buffer_inv sc1
    s_waitcnt vmcnt(0)
    KA_near:
    """)
    for j in range(4):
        a(f"buffer_load_dwordx4 {vr(176+4*j,4)}, v4, s[28:31], {['0','s60','s61','s62'][j]} offen sc1")
    a("s_barrier")
    stamp(a, 3)
    for j in range(4):
        a(f"s_waitcnt vmcnt({3-j})" if j < 3 else "s_waitcnt vmcnt(0)")
        a(f"ds_write_b128 v7, {vr(176+4*j,4)} offset:{256*(3-j)}")
    a("s_waitcnt lgkmcnt(0)")
    a("s_barrier")
    stamp(a, 4)
    for r in readsB(0): a(r)
    for n in range(8):
        a(f"s_waitcnt lgkmcnt({7-n})")
        a(f"v_mfma_f32_16x16x32_bf16 {vr(ACC+4*n,4)}, v[24:27], {vr(FB(0,n),4)}, 0")
    a("s_mov_b32 s59, 0")
    a("KA_loop:")
    for z0 in range(2):
        s = z0 & 1
        ra, rb = readsA(z0+1), readsB(z0+1)
        R = ra[:2] + rb + ra[2:]
        if z0 == 1: R += ["v_add_u32 v16, 128, v16", "v_add_u32 v17, 128, v17", "s_add_u32 s59, s59, 1", "s_cmp_lt_u32 s59, 4"]
        M = [(w, v) for w in range(8) for v in range(8-w)]
        for i, (w, v) in enumerate(M):
            if i == 35: a("s_waitcnt lgkmcnt(0)")
            if "nomfA" in cfg.exp: a("s_nop 3")
            else: a(f"v_mfma_f32_16x16x32_bf16 {vr(ACC+4*(w+v),4)}, {vr(FA(s,w),4)}, {vr(FB(s,v),4)}, {vr(ACC+4*(w+v),4)}")
            if i < len(R): a(R[i])
    a("s_cbranch_scc1 KA_loop")
    stamp(a, 5)
    a(f"""
    v_lshlrev_b32 v20, 5, v10
    v_lshl_add_u32 v20, v11, 3, v20
    v_add_u32 v20, s49, v20
    s_lshl_b32 s50, s3, 10
    v_lshl_add_u32 v21, v2, 2, s50
    s_mov_b32 s56, 0x05040100
    s_mov_b32 s57, 0x07060302
    """)
    for n in range(8):
        a(f"v_cvt_pk_bf16_f32 v{32+2*n}, v{ACC+4*n}, v{ACC+4*n+1}")
        a(f"v_cvt_pk_bf16_f32 v{33+2*n}, v{ACC+4*n+2}, v{ACC+4*n+3}")
        a(f"ds_write_b64 v20, {vr(32+2*n,2)} offset:{512*n}")
    a("s_waitcnt lgkmcnt(0)")
    a("s_barrier")
    for j in range(4):
        a(f"ds_read2st64_b32 {vr(64+4*j,2)}, v21 offset0:{j} offset1:{65+j}")
        a(f"ds_read2st64_b32 {vr(66+4*j,2)}, v21 offset0:{130+j} offset1:{195+j}")
    for j in range(4):
        a(f"s_waitcnt lgkmcnt({6-2*j})")
        b = 64+4*j; o = 96+4*j
        a(f"v_perm_b32 v{o}, v{b+1}, v{b}, s56")
        a(f"v_perm_b32 v{o+1}, v{b+3}, v{b+2}, s56")
        a(f"v_perm_b32 v{o+2}, v{b+1}, v{b}, s57")
        a(f"v_perm_b32 v{o+3}, v{b+3}, v{b+2}, s57")
        a(f"buffer_store_dwordx4 {vr(o,4)}, v4, s[20:23], {['0','s60','s61','s62'][j]} offen {cfg.st_pol}")
    a(f"""
    s_or_b32 s59, s3, s45
    s_cmp_lg_u32 s59, 0
    s_cbranch_scc1 KA_noep
    s_mov_b64 exec, 1
    buffer_store_dword v28, v23, s[24:27], 0 offen offset:256 sc1
    KA_noep:
    """)
    fin(a, kidx)
    NB1 = cfg.nb1
    WR = 128
    a("KA_helper:")
    srd(a, 24, 6, MB4)
    a(f"""
    s_mov_b32 s63, 12288
    s_cmp_lt_u32 s2, 192
    s_cbranch_scc1 KA_isgemv
    s_mov_b32 s36, s8
    s_mov_b32 s37, s9
    s_mov_b32 s38, {1024*3584*2 if cfg.idle_w1 else 0}
    s_sub_u32 s54, s2, 192
    s_lshl_b32 s54, s54, 16
    s_lshl_b32 s55, s60, 14
    s_add_u32 s54, s54, s55
    v_lshl_add_u32 v108, v2, 4, s54
    s_mov_b32 s63, 1024
    KA_isgemv:
    s_mov_b32 s55, 0
    """)
    def wload(i):
        a(f"buffer_load_dwordx4 {vr(WR+4*i,4)}, v108, s[36:39], s55 offen {nt}")
        a("s_add_u32 s55, s55, s63")
    for i in range(NB1): wload(i)
    a(f"s_waitcnt vmcnt({2+NB1})")
    for q in range(8):
        a(f"v_lshlrev_b32 v{16+2*q}, 16, v{64+q}")
        a(f"v_and_b32 v{17+2*q}, 0xffff0000, v{64+q}")
    for i in range(16): a(f"v_mul_f32 v{32+i}, {f32(-LOG2E)}, v{16+i}")
    for i in range(16): a(f"v_exp_f32 v{32+i}, v{32+i}")
    a(f"""
    s_waitcnt vmcnt({NB1})
    s_barrier
    s_cmp_lg_u32 s60, 0
    s_cbranch_scc1 KA_nopost
    s_mov_b64 exec, 1
    buffer_store_dword v73, v72, s[64:67], 0 offen
    """)
    if not cfg.ul2: a("buffer_store_dword v74, v72, s[64:67], 0 offen offset:128 sc1")
    a("s_mov_b64 exec, -1")
    a("KA_nopost:")
    for i in range(16): a(f"v_add_f32 v{32+i}, 1.0, v{32+i}")
    for i in range(16): a(f"v_rcp_f32 v{32+i}, v{32+i}")
    for i in range(16): a(f"v_mul_f32 v{16+i}, v{16+i}, v{32+i}")
    for q in range(8): a(f"v_cvt_pk_bf16_f32 v{96+q}, v{16+2*q}, v{17+2*q}")
    for q in range(8):
        a(f"v_lshlrev_b32 v{16+2*q}, 16, v{96+q}")
        a(f"v_and_b32 v{17+2*q}, 0xffff0000, v{96+q}")
    if cfg.map == "4x2":
        a("""
        s_bfe_u32 s54, s2, 0x20001
        s_lshl_b32 s54, s54, 2
        s_lshr_b32 s56, s2, 6
        s_add_u32 s54, s54, s56          ; mt
        s_and_b32 s56, s2, 1             ; fh
        s_bfe_u32 s57, s2, 0x30003       ; nt
        """)
    else:
        a("""
        s_bfe_u32 s54, s2, 0x10002
        s_lshl_b32 s54, s54, 3
        s_lshr_b32 s56, s2, 5
        s_add_u32 s54, s54, s56          ; mt
        s_bfe_u32 s56, s2, 0x10001       ; fh
        s_and_b32 s57, s2, 1
        s_lshl_b32 s57, s57, 2
        s_bfe_u32 s58, s2, 0x20003
        s_add_u32 s57, s57, s58          ; nt
        """)
    a(f"""
    s_lshl_b32 s54, s54, 4
    s_lshl_b32 s56, s56, 2
    s_add_u32 s54, s54, s56
    s_lshr_b32 s56, s57, 2
    s_lshl_b32 s56, s56, 3
    s_add_u32 s54, s54, s56
    s_and_b32 s57, s57, 3
    s_add_u32 s54, s54, s57
    s_lshl_b32 s54, s54, 14
    s_lshl_b32 s56, s60, 12
    s_add_u32 s54, s54, s56
    v_lshl_add_u32 v109, v2, 4, s54
    s_barrier
    """)
    stamp(a, 2)
    NB2 = min(16, NB1 + cfg.nb2)
    for i in range(NB1, NB2): wload(i)
    a("s_barrier")
    npf = 4 if cfg.qwarm else 0
    if cfg.ka_code:
        a("""
        s_getpc_b64 s[68:69]
        KA_pcref:
        s_lshr_b32 s54, s2, 3
        s_lshl_b32 s54, s54, 2
        s_add_u32 s54, s54, s60
        s_lshl_b32 s54, s54, 6
        s_add_u32 s54, s54, km_kernel-KA_pcref
        s_load_dword s70, s[68:69], s54
        """)
    if cfg.xmode == "sent":
        a(f"""
        s_lshl_b32 s54, s2, 14
        s_lshl_b32 s56, s60, 12
        s_add_u32 s54, s54, s56
        s_add_u32 s54, s54, {WS_EX}
        v_lshl_add_u32 v82, v2, 4, s54
        v_mov_b32 v84, -1
        v_mov_b32 v85, -1
        v_mov_b32 v86, -1
        v_mov_b32 v87, -1
        """)
    def pfload(i):
        a(f"buffer_load_dwordx4 {vr(192+4*i,4)}, v109, s[24:27], 0 offen offset:{1024*i}")
    DEP = cfg.dep
    issued = NB2
    def more():
        nonlocal issued
        if issued < 16: wload(issued)
        elif issued < 16 + npf: pfload(issued - 16)
        else: return
        issued += 1
    while issued < DEP: more()
    for i in range(16):
        a(f"s_waitcnt vmcnt({min(issued - 1 - i, DEP - 1) if issued < 16 + npf else issued - 1 - i})")
        more()
        t = 48 + 8*(i & 1)
        for j in range(4):
            a(f"v_lshlrev_b32 v{t+2*j}, 16, v{WR+4*i+j}")
            a(f"v_and_b32 v{t+2*j+1}, 0xffff0000, v{WR+4*i+j}")
        for j in range(8):
            if i == 0: a(f"v_mul_f32 v{32+j}, v{t+j}, v16")
            else: a(f"v_fmac_f32 v{32+j}, v{t+j}, v{16+i}")
    while issued < 16 + npf: more()
    if cfg.xmode == "sent":
        for i in range(4): a(f"buffer_store_dwordx4 v[84:87], v82, s[16:19], 0 offen offset:{1024*i} sc1")
    a("""
    s_cmp_lt_u32 s2, 192
    s_cbranch_scc0 KA_end
    """)
    stamp(a, 3)
    a("s_nop 3")
    for j in range(4): a(f"v_permlane32_swap_b32 v{32+j}, v{36+j}")
    a("s_nop 1")
    for j in range(4): a(f"v_add_f32 v{32+j}, v{32+j}, v{36+j}")
    a("s_nop 1")
    for j in range(2): a(f"v_permlane16_swap_b32 v{32+j}, v{34+j}")
    a("s_nop 1")
    for j in range(2): a(f"v_add_f32 v{32+j}, v{32+j}, v{34+j}")
    a("s_nop 1")
    for j in range(2): a(f"v_add_f32_dpp v{32+j}, v{32+j}, v{32+j} row_ror:8 row_mask:0xf bank_mask:0xf")
    a(f"""
    v_lshrrev_b32 v40, 4, v2
    v_lshlrev_b32 v40, 3, v40
    v_lshl_add_u32 v40, v15, 5, v40
    s_lshl_b32 s56, s60, 8
    s_add_u32 s56, s56, {RED}
    v_add_u32 v40, s56, v40
    ds_write_b64 v40, v[32:33]
    v_lshlrev_b32 v41, 2, v2
    v_add_u32 v42, {RED}, v41
    s_lshr_b32 s56, s61, 4
    s_lshl_b32 s56, 1, s56
    s_and_b32 s56, s56, 0x12
    s_cselect_b32 s56, 1.0, 0
    s_cmp_eq_u32 s62, 0
    s_cselect_b32 s56, s56, 0
    s_waitcnt lgkmcnt(0)
    s_barrier
    s_cmp_lg_u32 s60, 0
    s_cbranch_scc1 KA_end
    """)
    for w in range(4): a(f"ds_read_b32 v{32+w}, v42 offset:{256*w}")
    a(f"""
    s_waitcnt lgkmcnt(0)
    v_add_f32 v32, v32, v33
    v_add_f32 v34, v34, v35
    v_add_f32 v32, v32, v34
    v_add_f32 v32, s56, v32
    buffer_atomic_add_f32 v32, v78, s[16:19], 0 offen
    """)
    fin(a, kidx, "KA_end")
    return dict(name="ka_kernel", body=a.text(), vgpr=224, sgpr=72, grid=256, block=512, lds=RED+1024)
```

```python
from asmlib import *
from gen import *
from gemm import interleave

FL_R  = WS_FL2
FL_HN = FL_R + 32768
FL_HF = FL_HN + 4096
FL_HA = FL_HF + 4096
FL_X  = FL_HA + 4096
WSZ = 0x4000000
SPIN_MAX = 1 << 16

def wave_stats2(a, s, t, mean_rs, rstd, inv):
    a(f"v_add_f32 v{s}, v{s}, v{s+1}")
    a(f"v_add_f32 v{s+2}, v{s+2}, v{s+3}")
    steps = ["quad_perm:[1,0,3,2] row_mask:0xf", "quad_perm:[2,3,0,1] row_mask:0xf", "row_half_mirror row_mask:0xf",
             "row_mirror row_mask:0xf", "row_bcast:15 row_mask:0xa", "row_bcast:31 row_mask:0xc"]
    a("s_nop 0")
    for st in steps:
        a(f"v_add_f32_dpp v{s}, v{s}, v{s} {st} bank_mask:0xf")
        a(f"v_add_f32_dpp v{s+2}, v{s+2}, v{s+2} {st} bank_mask:0xf")
        a("s_nop 0")
    a(f"""
    v_readlane_b32 s60, v{s}, 63
    v_readlane_b32 s61, v{s+2}, 63
    s_nop 0
    v_mul_f32 v{t}, s60, v{inv}
    v_mul_f32 v{rstd}, s61, v{inv}
    v_fma_f32 v{rstd}, -v{t}, v{t}, v{rstd}
    v_max_f32 v{rstd}, 0, v{rstd}
    v_add_f32 v{rstd}, {f32(1e-5)}, v{rstd}
    v_rsq_f32 v{rstd}, v{rstd}
    s_nop 0
    v_mul_f32_e64 v{mean_rs}, -v{t}, v{rstd}
    """)

def gen_km(kidx=3):
    a = Asm()
    SLOT, NS, NST = 45056, 3, 16
    BF, BH = 16384, 16384 + 24576
    S2, NS2, NST2, BB = 32768, 5, 28, 16384
    YL, MODL = 2*SLOT, 3*SLOT
    WS = "s[20:23]"
    head(a, 256, "KM_end")
    a(f"""
    s_load_dwordx2 s[16:17], s[0:1], {KQ}
    s_load_dwordx2 s[20:21], s[0:1], {KWS}
    s_load_dwordx4 s[4:7], s[0:1], {KW1}
    s_load_dwordx4 s[12:15], s[0:1], {KW2}
    s_load_dwordx2 s[8:9], s[0:1], {KOUT}
    v_lshrrev_b32 v1, 6, v0
    v_and_b32 v2, 63, v0
    v_readfirstlane_b32 s3, v1
    s_and_b32 s44, s2, 7
    s_lshr_b32 s45, s2, 3
    """)
    if cfg.map == "4x2":
        a("""
        s_lshr_b32 s46, s44, 1
        s_lshl_b32 s46, s46, 2
        s_lshr_b32 s47, s45, 3
        s_add_u32 s46, s46, s47          ; mt
        s_and_b32 s44, s44, 1            ; fh
        s_and_b32 s45, s45, 7            ; nt
        s_lshl_b32 s47, s44, 3
        s_add_u32 s47, s47, s45          ; nc
        """)
    else:
        a("""
        s_lshr_b32 s46, s44, 2
        s_lshl_b32 s46, s46, 3
        s_lshr_b32 s47, s45, 2
        s_add_u32 s46, s46, s47          ; mt
        s_and_b32 s47, s44, 3
        s_lshl_b32 s47, s47, 2
        s_and_b32 s45, s45, 3
        s_add_u32 s47, s47, s45          ; nc
        s_lshr_b32 s44, s47, 3           ; fh
        s_and_b32 s45, s47, 7            ; nt
        """)
    a(f"""
    s_lshr_b32 s52, s45, 2
    s_lshl_b32 s52, s52, 3
    s_lshl_b32 s53, s44, 2
    s_add_u32 s52, s52, s53
    s_and_b32 s53, s45, 3
    s_add_u32 s52, s52, s53
    s_lshl_b32 s53, s46, 4
    s_add_u32 s53, s52, s53
    s_lshl_b32 s53, s53, 3
    s_add_u32 s53, s53, s3           ; row
    s_lshl_b32 s53, s53, 11
    v_lshl_add_u32 v3, v2, 4, s53
    v_lshrrev_b32 v4, 2, v2
    v_and_b32 v5, 7, v4
    v_lshlrev_b32 v5, 1, v5
    v_lshrrev_b32 v4, 3, v4
    v_add_u32 v5, v5, v4             ; G (0..15)
    v_lshrrev_b32 v6, 3, v5
    v_and_b32 v7, 3, v2
    v_xor_b32 v6, v6, v7
    v_lshrrev_b32 v4, 2, v5
    v_and_b32 v7, 1, v4
    v_mad_u32_u24 v4, v4, 7, v7
    v_and_b32 v5, 3, v5
    v_add_lshl_u32 v5, v5, v4, 10
    s_lshl_b32 s54, s46, 3
    s_add_u32 s54, s54, s3
    s_mul_i32 s54, s54, {112*1024}
    s_lshl_b32 s55, s52, 6
    s_add_u32 s54, s54, s55
    s_add_u32 s54, s54, {WS_H}
    v_add_u32 v5, s54, v5
    v_lshl_add_u32 v8, v6, 4, v5
    v_xor_b32 v6, 2, v6
    v_lshl_add_u32 v9, v6, 4, v5
    v_lshlrev_b32 v10, 4, v0
    s_mov_b32 s49, 28672
    s_mov_b32 s18, {MB4}
    s_mov_b32 s19, 0x20000
    s_mov_b32 s22, {WSZ}
    s_mov_b32 s23, 0x20000
    s_lshl_b32 s55, s3, 11
    s_add_u32 s55, s55, {YL}
    s_lshl_b32 s56, s3, 10
    s_add_u32 s56, s56, {MODL}
    s_mov_b32 s57, {WS_MOD}
    s_mov_b32 s58, {WS_MOD+8192}
    s_mov_b32 s59, {WS_MOD+16384}
    s_mov_b32 m0, s55
    s_waitcnt lgkmcnt(0)
    buffer_load_dwordx4 v[40:43], v3, s[16:19], 0 offen
    buffer_load_dwordx4 v[44:47], v3, s[16:19], 0 offen offset:1024
    buffer_load_dwordx4 v8, {WS}, 0 offen lds
    s_add_u32 m0, s55, 1024
    s_mov_b32 s24, s4
    buffer_load_dwordx4 v9, {WS}, s49 offen lds
    s_mov_b32 m0, s56
    s_mov_b32 s25, s5
    buffer_load_dwordx4 v10, {WS}, s57 offen lds
    s_add_u32 m0, s56, 8192
    s_mov_b32 s26, {1024*3584*2}
    buffer_load_dwordx4 v10, {WS}, s58 offen lds
    s_add_u32 m0, s56, 16384
    s_mov_b32 s27, 0x20000
    s_cmp_ge_u32 s3, 4
    s_cbranch_scc1 KM_m3
    buffer_load_dwordx4 v10, {WS}, s59 offen lds
    KM_m3:
    s_and_b32 s48, s47, 1            ; parity
    s_mul_i32 s49, s47, 448
    s_lshl_b32 s50, s48, 6
    s_add_u32 s50, s50, s49
    s_cmp_eq_u32 s48, 0
    s_cselect_b32 s51, 384, 0
    s_add_u32 s51, s51, s49
    s_mul_i32 s55, s2, 28672
    v_add_u32 v11, s55, v10
    s_mov_b32 s55, 8192
    s_mov_b32 s56, 16384
    s_mov_b32 s57, 20480
    s_barrier
    """)
    NPF = 4 if cfg.km_pf else 0
    if cfg.km_pf:
        for i, so in enumerate(["0", "s55", "s56", "s57"]):
            a(f"buffer_load_dwordx4 {vr(144+4*i,4)}, v11, s[24:27], {so} offen")
    Q, Y, T, M0, M1, M2, INV = 48, 64, 80, 16, 96, 128, 126
    a(f"""
    v_mov_b32 v{INV}, {f32(1.0/1024)}
    v_lshrrev_b32 v4, 3, v2
    v_lshlrev_b32 v4, 10, v4
    v_and_b32 v5, 7, v2
    v_lshl_add_u32 v4, v5, 6, v4
    v_bfe_u32 v5, v2, 2, 2
    s_lshr_b32 s56, s3, 1
    v_xor_b32 v5, s56, v5
    v_lshl_add_u32 v4, v5, 4, v4
    s_and_b32 s56, s3, 1
    s_lshl_b32 s56, s56, 3
    s_add_u32 s56, s56, {YL}
    v_add_u32 v4, s56, v4
    v_lshlrev_b32 v5, 4, v2
    v_add_u32 v5, {MODL}, v5
    s_mov_b32 s58, {WS_Y2}
    s_mov_b32 s59, {WS_X1}
    s_waitcnt vmcnt({4+NPF})
    """)
    def unpack(dst, src):
        for j in range(8):
            a(f"v_lshlrev_b32 v{dst+2*j}, 16, v{src+j}")
            a(f"v_and_b32 v{dst+2*j+1}, 0xffff0000, v{src+j}")
    def stats(X):
        a(f"v_pk_add_f32 v[6:7], {vr(X,2)}, {vr(X+2,2)}")
        a(f"v_pk_mul_f32 v[8:9], {vr(X,2)}, {vr(X,2)}")
        a(f"v_pk_fma_f32 v[8:9], {vr(X+2,2)}, {vr(X+2,2)}, v[8:9]")
        for j in range(4, 16, 2):
            a(f"v_pk_add_f32 v[6:7], v[6:7], {vr(X+j,2)}")
            a(f"v_pk_fma_f32 v[8:9], {vr(X+j,2)}, {vr(X+j,2)}, v[8:9]")
        wave_stats2(a, 6, 10, 13, 12, INV)
    def norm(D, X):
        for j in range(0, 16, 2): a(f"v_pk_fma_f32 {vr(D+j,2)}, {vr(X+j,2)}, v[12:13], v[12:13] op_sel:[0,0,1] op_sel_hi:[1,0,1]")
    def modread(vec, dst):
        for h in range(2):
            for half in range(2):
                a(f"ds_read_b128 {vr(dst+8*h+4*half,4)}, v5 offset:{4096*vec+2048*h+1024*half}")
    unpack(Q, 40)
    stats(Q)
    norm(T, Q)
    a(f"s_waitcnt vmcnt({NPF})")
    a("s_barrier")
    stamp(a, 0)
    modread(1, M0); modread(0, M1)
    for h in range(2):
        for e in range(2):
            a(f"ds_read_b64 {vr(40+4*h+2*e,2)}, v4 offset:{8192*h+512*e}")
    a("s_waitcnt lgkmcnt(4)")
    modread(2, M2)
    for j in range(0, 16, 2): a(f"v_pk_fma_f32 {vr(T+j,2)}, {vr(T+j,2)}, {vr(M0+j,2)}, {vr(M1+j,2)}")
    a("s_waitcnt lgkmcnt(4)")
    modread(4, M0); modread(3, M1)
    unpack(Y, 40)
    for j in range(0, 16, 2): a(f"v_pk_mul_f32 {vr(T+j,2)}, {vr(T+j,2)}, {vr(Y+j,2)}")
    a("s_waitcnt lgkmcnt(8)")
    for j in range(0, 16, 2): a(f"v_pk_fma_f32 {vr(Q+j,2)}, {vr(T+j,2)}, {vr(M2+j,2)}, {vr(Q+j,2)}")
    stats(Q)
    norm(T, Q)
    a("s_waitcnt lgkmcnt(0)")
    for j in range(0, 16, 2): a(f"v_pk_fma_f32 {vr(T+j,2)}, {vr(T+j,2)}, {vr(M0+j,2)}, {vr(M1+j,2)}")
    stats(T)
    norm(T, T)
    for h in range(2):
        for j in range(4*h, 4*h+4): a(f"v_cvt_pk_bf16_f32 v{Y+j}, v{T+2*j}, v{T+2*j+1}")
        a(f"buffer_store_dwordx4 {vr(Y+4*h,4)}, v3, {WS}, s58 offen offset:{1024*h} sc1")
    stamp(a, 1)
    for j in range(8): a(f"v_cvt_pk_bf16_f32 v{40+j}, v{Q+2*j}, v{Q+2*j+1}")
    a(f"v_add_u32 v39, {WS_X1}, v3")
    a("""
    s_cmp_ge_u32 s3, 4
    s_cbranch_scc0 KM_compute
    """)
    W1S, W2S = "s[24:27]", "s[28:31]"
    a(f"""
    s_sub_u32 s3, s3, 4
    v_lshrrev_b32 v3, 3, v2
    v_and_b32 v4, 7, v2              ; position
    v_bfe_u32 v5, v2, 4, 1
    v_lshlrev_b32 v5, 1, v5
    v_xor_b32 v5, v5, v4
    s_lshl_b32 s53, s3, 4
    v_add_u32 v6, s53, v3
    v_mul_u32_u24 v6, 7168, v6
    v_add_u32 v6, s50, v6
    v_lshl_add_u32 v12, v5, 4, v6    ; vB0
    v_xor_b32 v5, 4, v5
    v_lshl_add_u32 v13, v5, 4, v6
    v_add_u32 v13, {8*7168}, v13     ; vB1
    v_lshrrev_b32 v6, 2, v2
    v_add_u32 v6, s53, v6
    v_mul_u32_u24 v6, 7168, v6
    v_add_u32 v6, s51, v6
    v_lshrrev_b32 v5, 5, v2
    v_lshlrev_b32 v5, 1, v5
    v_and_b32 v7, 3, v2
    v_xor_b32 v5, v5, v7
    v_lshl_add_u32 v14, v5, 4, v6    ; vBH
    s_lshl_b32 s54, s3, 12
    s_lshl_b32 s55, s3, 11
    s_add_u32 s55, s55, {BF}
    s_lshl_b32 s56, s3, 10
    s_add_u32 s56, s56, {BH}
    s_mov_b32 s57, 0
    s_mov_b32 s58, 0                 ; A soffset
    s_mov_b32 s59, 0                 ; B soffset
    """)
    PREP = ["s_add_u32 s60, s55, s57", "s_add_u32 s62, s59, 128", "s_add_u32 s63, s59, 256", "s_mov_b32 m0, s60"]
    def prep():
        for x in PREP: a(x)
    def fireB():
        fill = iter(["s_add_u32 s64, s54, s57", "s_add_u32 s52, s58, 32768", "s_nop 0", "s_nop 0", "s_nop 0", "s_nop 0"])
        for lc in range(3):
            for i2 in range(2):
                if lc or i2:
                    a(f"s_add_u32 m0, s60, {8192*lc+1024*i2}"); a(next(fill))
                a(f"buffer_load_dwordx4 v{12+i2}, {W1S}, {['s59','s62','s63'][lc]} offen lds")
        a(f"""
        s_add_u32 m0, s56, s57
        s_add_u32 s57, s57, {SLOT}
        buffer_load_dwordx4 v14, {W1S}, s59 offen lds
        s_cmp_eq_u32 s57, {NS*SLOT}
        s_cselect_b32 s57, 0, s57
        s_add_u32 s59, s59, {64*7168}
        """)
    def fireA():
        for i in range(4):
            a(f"s_add_u32 m0, s64, {1024*i}"); a("s_nop 0")
            a(f"buffer_load_dwordx4 v{10+(i&1)}, {WS}, {'s58' if i < 2 else 's52'} offen sc1 lds")
        a("s_add_u32 s58, s58, 128")
    NB0, NB1 = cfg.km_b0, cfg.km_b1
    X1ST = [f"buffer_store_dwordx4 {vr(40+4*h,4)}, v39, {WS}, 0 offen offset:{1024*h} sc1" for h in range(2)]
    for i in range(NB0):
        prep(); a("s_nop 0"); fireB()
    a(f"s_waitcnt vmcnt({7*NB0})")
    if cfg.stR: stamp(a, 3)
    a("s_barrier")
    if cfg.stR: stamp(a, 4)
    for i in range(NB0, NB1):
        prep(); a("s_nop 0"); fireB()
    a(f"""
    v_lshrrev_b32 v5, 4, v2
    v_xor_b32 v5, v5, v4
    s_lshl_b32 s52, s46, 7
    s_lshl_b32 s53, s3, 5
    s_add_u32 s52, s52, s53
    v_add_u32 v6, s52, v3
    v_lshlrev_b32 v6, 11, v6
    v_add_u32 v6, {WS_Y2}, v6
    v_lshl_add_u32 v10, v5, 4, v6    ; vA0
    v_xor_b32 v5, 4, v5
    v_lshl_add_u32 v11, v5, 4, v6
    v_add_u32 v11, 16384, v11
    s_lshl_b32 s52, s46, 11
    s_add_u32 s52, s52, {FL_R}
    v_and_b32 v5, 15, v2
    v_lshl_add_u32 v24, v5, 7, s52
    s_mov_b32 s72, 0
    """)
    if cfg.stR: stamp(a, 5)
    a(f"""
    KM_rpoll:
    buffer_load_dword v27, v24, {WS}, 0 offen sc1
    s_add_u32 s72, s72, 1
    s_cmp_gt_u32 s72, {SPIN_MAX}
    s_cbranch_scc1 KM_rpoll_x
    s_waitcnt vmcnt(0)
    v_cmp_ne_u32 vcc, 1, v27
    s_cbranch_vccnz KM_rpoll
    KM_rpoll_x:
    """)
    stamp(a, 2)
    q = []
    def A_(st_):
        a(f"s_add_u32 s64, s54, {st_*SLOT}")
        a("s_add_u32 s52, s58, 32768")
        fireA(); q.append((st_, 4))
    def B_(st_):
        prep(); a("s_nop 0"); fireB(); q.append((st_, 7))
    def younger(st_):
        last = max(i for i, (x, n) in enumerate(q) if x <= st_)
        return sum(n for x, n in q[last+1:])
    A_(0)
    if NB1 < 2: B_(1)
    A_(1)
    srd(a, 28, 12, 3584*1024*2)
    a(f"s_waitcnt vmcnt({younger(0)})")
    a("s_barrier")
    if NB1 < 3: B_(2)
    A_(2)
    for x in X1ST: a(x)
    q.append((9, 2))
    a(f"""
    s_mul_i32 s52, s2, 28672
    s_mul_i32 s64, s3, 7168
    s_add_u32 s52, s52, s64
    v_lshl_add_u32 v15, v2, 4, s52
    s_lshr_b32 s74, s2, 3
    s_and_b32 s74, s74, 3
    s_add_u32 s74, s74, {cfg.pfat}
    s_mov_b32 s73, 0
    """)
    prep()
    a(f"s_waitcnt vmcnt({younger(1)})")
    a("s_barrier")
    fireB(); fireA()
    a("s_mov_b32 s61, 1")
    a("KM_lloop:")
    prep()
    if cfg.pf_w2:
        a(f"""
        s_cmp_eq_u32 s73, 0
        s_cbranch_scc1 KM_w11
        s_sub_u32 s73, s73, 1
        s_waitcnt vmcnt(15)
        s_branch KM_w15
        KM_w11:
        s_waitcnt vmcnt(11)
        KM_w15:
        """)
    else:
        a("s_waitcnt vmcnt(11)")
    a("s_barrier")
    fireB(); fireA()
    if cfg.pf_w2:
        a(f"""
        s_sub_u32 s52, s61, s74
        s_and_b32 s52, s52, {~4 & 0xffffffff}
        s_cbranch_scc1 KM_nopf
        s_mov_b32 s73, 2
        """)
        for i in range(4):
            a(f"buffer_load_dwordx4 {vr(32+4*i,4)}, v15, {W2S}, 0 offen offset:{1024*i}")
        a("v_add_u32 v15, 3072, v15")
        a("KM_nopf:")
    if cfg.pf_code:
        a(f"""
        s_cmp_lg_u32 s61, 10
        s_cbranch_scc1 KM_nocp
        s_getpc_b64 s[70:71]
        KM_pcref:
        s_lshr_b32 s52, s2, 3
        s_lshl_b32 s52, s52, 2
        s_add_u32 s52, s52, s3
        s_lshl_b32 s52, s52, 6
        s_add_u32 s70, s70, s52
        s_addc_u32 s71, s71, 0
        s_load_dword s72, s[70:71], 0
        s_mov_b32 s52, KM_gelu-KM_pcref
        s_load_dword s72, s[70:71], s52
        KM_nocp:
        """)
    a(f"""
    s_add_u32 s61, s61, 1
    s_cmp_lt_u32 s61, {NST-NS}
    s_cbranch_scc1 KM_lloop
    s_waitcnt vmcnt(11)
    s_barrier
    s_lshl_b32 s52, s46, 3
    s_and_b32 s53, s3, 1
    s_lshl_b32 s64, s53, 2
    s_add_u32 s52, s52, s64
    s_mul_i32 s52, s52, 112
    s_mul_i32 s64, s44, 56
    s_add_u32 s52, s52, s64
    s_lshl_b32 s52, s52, 10
    s_add_u32 s52, s52, {WS_H}
    v_lshl_add_u32 v16, v2, 4, s52
    v_add_u32 v17, {112*1024}, v16
    v_add_u32 v18, {2*112*1024}, v16
    v_add_u32 v19, {3*112*1024}, v16
    v_lshrrev_b32 v5, 4, v2
    v_lshlrev_b32 v5, 1, v5
    v_xor_b32 v5, v5, v4
    s_mul_i32 s52, s44, 1792
    s_lshl_b32 s64, s53, 4
    s_add_u32 s52, s52, s64
    v_add_u32 v6, s52, v3
    v_lshlrev_b32 v6, 11, v6
    s_lshl_b32 s64, s45, 8
    v_add_u32 v6, s64, v6
    v_lshl_add_u32 v20, v5, 4, v6
    v_add_u32 v21, 16384, v20
    v_add_u32 v22, 128, v20
    v_add_u32 v23, 16384+128, v20
    s_lshr_b32 s65, s3, 1
    s_lshl_b32 s66, s53, 13
    s_lshl_b32 s64, s65, 10
    s_add_u32 s66, s66, s64
    s_lshl_b32 s67, s3, 11
    s_add_u32 s67, s67, {BB}
    s_lshl_b32 s52, s46, 1
    s_add_u32 s52, s52, s44
    s_lshl_b32 s52, s52, 7
    s_add_u32 s52, s52, {FL_HN}
    v_and_b32 v5, 31, v2
    v_lshl_add_u32 v24, v5, 2, s52
    v_and_b32 v5, 32, v2
    v_lshl_add_u32 v25, v5, 7, v24
    v_lshl_add_u32 v31, v5, 8, v24
    s_getreg_b32 s75, hwreg(HW_REG_XCC_ID, 0, 4)
    s_add_u32 s75, s75, 1
    s_lshl_b32 s75, s75, 4
    v_mov_b32 v29, s75
    v_cmp_gt_u32 vcc, 32, v2
    s_lshl_b32 s64, s45, 4
    s_add_u32 s52, s52, s64
    v_cndmask_b32 v30, 0, v29, vcc
    s_add_u32 s52, s52, 8192
    v_lshl_add_u32 v33, v2, 2, s52
    s_mov_b32 s75, 0
    buffer_load_dword v27, v24, {WS}, 0 offen sc1
    s_mul_i32 s52, s45, 7
    v_add_u32 v26, s52, v2
    """)
    skipown = """v_cmp_le_u32 vcc, s45, v6
    s_nop 1
    v_addc_co_u32 v6, vcc, 0, v6, vcc"""
    a(f"""
    v_subrev_u32 v5, 7, v2
    v_lshrrev_b32 v6, 2, v5
    {skipown}
    v_and_b32 v7, 3, v5
    v_and_b32 v8, 1, v6
    v_add_u32 v7, v7, v8
    v_mad_u32_u24 v28, v6, 7, v7
    v_cmp_le_u32 vcc, 7, v2
    s_nop 1
    v_cndmask_b32 v26, v26, v28, vcc
    """)
    a(f"""
    v_subrev_u32 v5, 35, v2
    v_mul_u32_u24 v6, 43, v5
    v_lshrrev_b32 v6, 7, v6          ; /3
    v_mul_u32_u24 v7, 3, v6
    v_sub_u32 v7, v5, v7
    {skipown}
    v_and_b32 v8, 1, v6
    v_add3_u32 v9, v7, 4, v8
    v_mul_u32_u24 v8, 6, v8
    v_sub_u32 v8, 6, v8
    v_cmp_eq_u32 vcc, 2, v7
    s_nop 1
    v_cndmask_b32 v9, v9, v8, vcc
    v_mad_u32_u24 v28, v6, 7, v9
    v_cmp_le_u32 vcc, 35, v2
    s_nop 1
    v_cndmask_b32 v26, v26, v28, vcc
    s_waitcnt vmcnt(0) lgkmcnt(0)
    s_barrier
    s_barrier
    """)
    def blk():
        a("v_readlane_b32 s69, v26, s68")
        a("s_add_u32 s68, s68, 2")
    def issueA():
        a("s_lshl_b32 s70, s69, 10")
        a("s_add_u32 s60, s66, s57")
        for i in range(4):
            a(f"s_add_u32 m0, s60, {2048*i}")
            a("s_nop 0")
            a(f"buffer_load_dwordx4 v{16+i}, {WS}, s70 offen sc1 lds")
    def issueB():
        a("s_lshl_b32 s71, s69, 16")
        a("s_add_u32 s60, s67, s57")
        for lc in range(2):
            for i2 in range(2):
                a(f"s_add_u32 m0, s60, {8192*lc+1024*i2}")
                a("s_nop 0")
                a(f"buffer_load_dwordx4 v{20+2*lc+i2}, {W2S}, s71 offen lds")
    def nextslot():
        a(f"s_add_u32 s57, s57, {S2}")
        a(f"s_cmp_eq_u32 s57, {NS2*S2}")
        a("s_cselect_b32 s57, 0, s57")
    def prep2():
        blk()
        a("s_add_u32 s60, s67, s57")
        a("s_add_u32 s62, s66, s57")
        a("s_lshl_b32 s71, s69, 16")
        a("s_lshl_b32 s70, s69, 10")
        a("s_mov_b32 m0, s60")
        nextslot()
    def fire2():
        for lc in range(2):
            for i2 in range(2):
                if lc or i2:
                    a(f"s_add_u32 m0, s60, {8192*lc+1024*i2}")
                    a("s_nop 0")
                a(f"buffer_load_dwordx4 v{20+2*lc+i2}, {W2S}, s71 offen lds")
        for i in range(4):
            a(f"s_add_u32 m0, s62, {2048*i}")
            a("s_nop 0")
            a(f"buffer_load_dwordx4 v{16+i}, {WS}, s70 offen sc1 lds")
    def check(val, lbl):
        a(f"""
        s_mov_b32 s72, 0
        {lbl}:
        v_sub_u32 v28, v27, v29
        v_subrev_u32 v28, {val}, v28
        v_cmp_le_u32 vcc, 8, v28
        s_and_b32 s53, vcc_lo, vcc_hi
        s_cbranch_scc0 {lbl}_x
        s_add_u32 s72, s72, 1
        s_cmp_gt_u32 s72, {SPIN_MAX}
        s_cbranch_scc1 {lbl}_x
        """)
        if val == 1:
            a(f"""
            s_cmp_lg_u32 s72, {cfg.relpoll}
            s_cbranch_scc1 {lbl}_n
            s_mov_b32 s75, 1
            v_mov_b32 v24, v31
            v_mov_b32 v29, v30
            s_cmp_lg_u32 s3, 0
            s_cbranch_scc1 {lbl}_n
            buffer_wbl2 sc1
            v_mov_b32 v28, 1
            s_waitcnt vmcnt(0)
            s_mov_b64 exec, 15
            buffer_store_dword v28, v33, {WS}, 0 offen sc1
            s_mov_b64 exec, -1
            {lbl}_n:
            """)
        a(f"""
        buffer_load_dword v27, v24, {WS}, 0 offen sc1
        s_waitcnt vmcnt(0)
        s_branch {lbl}
        {lbl}_x:
        s_cmp_eq_u32 s75, 0
        s_cbranch_scc1 {lbl}_y
        v_mov_b32 v24, v25
        buffer_inv sc1
        s_waitcnt vmcnt(0)
        {lbl}_y:
        """)
    look = f"buffer_load_dword v27, v24, {WS}, 0 offen sc1"
    a("""
    s_mov_b32 s68, s65
    s_mov_b32 s57, 0
    s_mov_b32 s61, 0
    KM_l2pro:
    """)
    blk(); issueB(); nextslot()
    a(f"""
    s_add_u32 s61, s61, 1
    s_cmp_lt_u32 s61, {NS2}
    s_cbranch_scc1 KM_l2pro
    s_waitcnt vmcnt(0)
    s_barrier
    """)
    if not cfg.stR: stamp(a, 3)
    a(look)
    a("s_barrier")
    blk(); issueB()
    a("s_waitcnt vmcnt(4)")
    check(1, "KM_c1")
    if not cfg.stR: stamp(a, 4)
    a(f"""
    s_add_u32 s68, s65, 6
    s_mov_b32 s57, {3*S2}
    """)
    blk()
    a("s_cmp_eq_u32 s65, 0")
    a("s_cbranch_scc1 KM_skipA3")
    issueA()
    a("KM_skipA3:")
    nextslot(); blk(); issueA(); nextslot(); blk(); issueA(); nextslot()
    prep2()
    a("s_waitcnt vmcnt(8)")
    if not cfg.stR: stamp(a, 5)
    a("s_barrier")
    fire2()
    prep2()
    a("s_waitcnt vmcnt(12)")
    a("s_barrier")
    fire2()
    a(f"""
    s_mov_b32 s61, 4
    KM_l2loop:
    s_cmp_lg_u32 s61, 10
    s_cbranch_scc1 KM_nolook
    {look}
    KM_nolook:
    """)
    prep2()
    a("""
    s_cmp_lg_u32 s61, 12
    s_waitcnt vmcnt(16)
    s_cbranch_scc1 KM_c2_y
    """)
    check(2, "KM_c2")
    a("s_barrier")
    fire2()
    a(f"""
    s_add_u32 s61, s61, 1
    s_cmp_lt_u32 s61, {NST2-4}
    s_cbranch_scc1 KM_l2loop
    """)
    for left in (2, 1, 0):
        a(f"s_waitcnt vmcnt({8*left})")
        a("s_barrier")
    fin(a, kidx)
    import km_c
    km_c.compute(a, kidx)
    return dict(name="km_kernel", body=a.text(), vgpr=256, sgpr=76, grid=256, block=512, lds=NS2*S2)
```

```python
from asmlib import *
from gen import *
from gemm import interleave
from km import FL_R, FL_HN, FL_HF, FL_X, WSZ, SPIN_MAX

def compute(a, kidx):
    SLOT, NS, NST = 45056, 3, 16
    BF, BH = 16384, 16384 + 24576
    S2, NS2, NST2, BB = 32768, 5, 28, 16384
    WS = "s[20:23]"
    ACC = 32
    acc = lambda u, mi: ACC + (u*4+mi)*4 if u < 6 else ACC + 96 + ((u-6)*2+mi)*4
    FW = lambda s, u: 144 + 48*s + 4*u
    FX = lambda s, mi: 144 + 48*s + 32 + 4*mi
    AW = lambda j: 16 + j
    AX = lambda kk, h: 20 + 2*kk + h
    HG, HGH = 240, 241
    HL = lambda h: 242 + h
    HLH = 244
    AW2 = lambda u: 245 + u
    AX2 = lambda h: 249 + h
    VROW, VC2, VEXS, VEXR, VGB = 251, 252, 253, 254, 255
    VFL, VV = 14, 15
    a("KM_compute:")
    a(f"""
    s_lshr_b32 s52, s3, 1            ; wm
    s_and_b32 s53, s3, 1             ; wn
    v_lshrrev_b32 v3, 4, v2          ; g
    v_and_b32 v4, 15, v2             ; i
    s_lshl_b32 s54, s53, 6
    s_add_u32 s54, s54, s50
    v_lshl_add_u32 v5, v3, 3, s54
    v_lshl_add_u32 v6, v3, 3, s51
    """)
    srd(a, 28, 6, 3584*2)
    for u in range(6): a(f"buffer_load_dwordx2 {vr(160+2*u,2)}, v5, s[28:31], 0 offen offset:{128*(u>>1)+32*(u&1)}")
    for u in range(2): a(f"buffer_load_dwordx2 {vr(172+2*u,2)}, v6, s[28:31], 0 offen offset:{32*u}")
    a(f"""
    v_cmp_eq_u32 vcc, 0, v2
    v_mov_b32 v13, {WSZ}
    s_lshl_b32 s54, s46, 4
    s_add_u32 s54, s54, s47
    s_lshl_b32 s54, s54, 7
    s_add_u32 s54, s54, {FL_R}
    v_mov_b32 v12, s54
    v_cndmask_b32 v{VFL}, v13, v12, vcc
    v_mov_b32 v{VV}, 1
    s_waitcnt vmcnt(8)
    s_barrier
    s_cmp_lg_u32 s3, 0
    s_cbranch_scc1 KM_norp
    buffer_store_dword v{VV}, v{VFL}, {WS}, 0 offen sc1
    KM_norp:
    """)
    srd(a, 16, 14, 2048); srd(a, 36, 8, MB4)
    a(f"""
    s_lshl_b32 s54, s46, 1
    s_add_u32 s54, s54, s44
    s_lshl_b32 s54, s54, 3
    s_add_u32 s54, s54, s45
    s_lshl_b32 s54, s54, 2
    s_add_u32 s54, s54, s3
    s_lshl_b32 s54, s54, 2
    s_add_u32 s54, s54, {FL_HN}
    v_mov_b32 v12, s54
    v_cndmask_b32 v{VFL}, v13, v12, vcc
    s_lshl_b32 s60, s52, 13          ; wm*8192
    s_lshl_b32 s61, s53, 12
    s_add_u32 s54, s60, s61
    s_xor_b32 s55, s54, 4096
    v_lshrrev_b32 v8, 1, v4
    v_xor_b32 v8, v8, v3
    v_lshlrev_b32 v8, 4, v8
    v_lshl_add_u32 v7, v4, 7, v8
    v_add_u32 v{AX(0,0)}, s54, v7
    v_add_u32 v{AX(0,1)}, s55, v7
    v_xor_b32 v7, 64, v7
    v_add_u32 v{AX(1,0)}, s54, v7
    v_add_u32 v{AX(1,1)}, s55, v7
    v_lshrrev_b32 v7, 2, v4
    v_lshl_add_u32 v7, v3, 3, v7     ; row
    v_and_b32 v8, 3, v4
    v_lshlrev_b32 v8, 3, v8          ; (i&3)*8
    v_lshl_add_u32 v9, v7, 7, v8
    v_add_u32 v9, {BF}, v9
    v_and_b32 v10, 1, v3
    v_lshrrev_b32 v11, 3, v4
    v_lshl_add_u32 v11, v10, 1, v11  ; phi
    s_lshl_b32 s56, s53, 1
    v_xor_b32 v12, s56, v11
    v_lshl_add_u32 v{AW(0)}, v12, 5, v9
    v_xor_b32 v{AW(1)}, 32, v{AW(0)}
    v_lshl_add_u32 v9, v7, 6, v8
    v_lshl_add_u32 v9, v10, 5, v9
    v_add_u32 v{AW(2)}, {BH}, v9
    v_xor_b32 v{AW(3)}, 32, v{AW(2)}
    s_lshl_b32 s56, s46, 3
    s_lshl_b32 s57, s52, 2
    s_add_u32 s56, s56, s57
    s_mul_i32 s56, s56, {112*1024}
    s_mul_i32 s57, s47, {7*1024}
    s_add_u32 s56, s56, s57
    s_add_u32 s56, s56, {WS_H}
    s_add_u32 s57, s53, s48
    s_lshl_b32 s58, s57, 10
    s_add_u32 s58, s58, s56
    v_lshl_add_u32 v{HG}, v2, 4, s58
    s_lshr_b32 s58, s57, 1
    s_lshl_b32 s58, s58, 15
    s_and_b32 s57, s57, 1
    s_lshl_b32 s57, s57, 10
    s_add_u32 s58, s58, s57
    s_add_u32 s57, s58, s54
    v_lshl_add_u32 v{HL(0)}, v2, 4, s57
    s_add_u32 s57, s58, s55
    v_lshl_add_u32 v{HL(1)}, v2, 4, s57
    s_cmp_eq_u32 s48, 0
    s_cselect_b32 s58, {6*1024}, 0
    s_cselect_b32 s59, {3*S2}, 0
    s_add_u32 s58, s58, s56
    v_lshl_add_u32 v{HGH}, v2, 4, s58
    s_add_u32 s59, s59, s54
    v_lshl_add_u32 v{HLH}, v2, 4, s59
    s_mul_i32 s70, s53, {2*112*1024}
    s_add_u32 s71, s70, {112*1024}
    s_sub_u32 s72, {2*112*1024}, s70
    s_add_u32 s73, s72, {112*1024}
    s_lshl_b32 s61, s44, 12
    s_add_u32 s62, s60, s61
    v_lshl_add_u32 v{AX2(0)}, v2, 4, s62
    s_xor_b32 s62, s62, 4096
    v_lshl_add_u32 v{AX2(1)}, v2, 4, s62
    v_lshrrev_b32 v7, 2, v4
    v_lshl_add_u32 v7, v3, 2, v7     ; row = 4g + (i>>2)
    v_lshl_add_u32 v9, v7, 7, v8
    s_lshl_b32 s54, s53, 13
    s_add_u32 s54, s54, {BB}
    v_add_u32 v9, s54, v9
    v_bfe_u32 v11, v7, 1, 2
    v_lshl_add_u32 v{AW2(0)}, v11, 5, v9
    v_xor_b32 v{AW2(1)}, 32, v{AW2(0)}
    v_xor_b32 v{AW2(2)}, 64, v{AW2(0)}
    v_xor_b32 v{AW2(3)}, 0x60, v{AW2(0)}
    v_lshrrev_b32 v8, 1, v3
    v_lshlrev_b32 v7, 4, v10
    v_lshl_add_u32 v7, v8, 3, v7
    s_lshl_b32 s54, s45, 7
    s_lshl_b32 s55, s53, 6
    s_add_u32 s54, s54, s55
    v_add_u32 v7, s54, v7
    v_lshlrev_b32 v{VC2}, 1, v7
    s_lshr_b32 s54, s45, 2
    s_lshl_b32 s54, s54, 10
    s_add_u32 s54, s54, {WS_MOD + 5*4096}
    v_add_u32 v{VGB}, s54, v{VC2}    ; (d>>9)*2048 + ((d>>3)&63)*16 = 2d + (d>>9)*1024
    s_lshl_b32 s54, s46, 7
    s_lshl_b32 s55, s52, 6
    s_add_u32 s54, s54, s55
    s_lshl_b32 s55, s44, 5
    s_add_u32 s54, s54, s55
    v_add_u32 v9, s54, v4
    v_lshl_add_u32 v{VROW}, v9, 11, v{VC2}
    s_lshl_b32 s54, s46, 3
    s_add_u32 s54, s54, s45
    s_lshl_b32 s54, s54, 1
    s_add_u32 s54, s54, s44
    s_lshl_b32 s54, s54, 2
    s_add_u32 s68, s54, s3
    s_xor_b32 s69, s68, 4
    s_lshl_b32 s54, s68, 12
    s_add_u32 s54, s54, {WS_EX}
    v_lshl_add_u32 v{VEXR}, v2, 4, s54
    s_lshl_b32 s54, s69, 12
    s_add_u32 s54, s54, {WS_EX}
    v_lshl_add_u32 v{VEXS}, v2, 4, s54
    s_lshl_b32 s68, s68, 6
    s_lshl_b32 s69, s69, 6
    s_add_u32 s68, s68, {FL_X}
    s_add_u32 s69, s69, {FL_X}
    v_mov_b32 v6, s68
    v_mov_b32 v7, s69
    v_mov_b32 v4, {f32(-2*0.7978845608028654*LOG2E*0.044715)}
    v_mov_b32 v5, {f32(-2*0.7978845608028654*LOG2E)}
    s_getreg_b32 s64, hwreg(HW_REG_XCC_ID, 0, 4)
    s_add_u32 s64, s64, 1
    s_lshl_b32 s64, s64, 4
    s_add_u32 s64, s64, 1
    s_add_u32 s65, s64, 1
    s_mov_b32 s74, 32768
    s_mov_b32 s75, 4096
    s_mov_b32 s66, {WS_X1}
    s_mov_b32 s67, {WS_X1+32768}
    s_waitcnt vmcnt(1)
    s_cmp_eq_u32 s3, 0
    s_cbranch_scc1 KM_bw
    s_waitcnt vmcnt(0)
    KM_bw:
    v_mov_b32 v13, v39
    v_mov_b64 v[24:25], v[40:41]
    v_mov_b64 v[26:27], v[42:43]
    v_mov_b64 v[28:29], v[44:45]
    v_mov_b64 v[30:31], v[46:47]
    """)
    for u in range(8):
        a(f"v_lshlrev_b32 v{acc(u,0)}, 16, v{160+2*u}")
        a(f"v_and_b32 v{acc(u,0)+1}, 0xffff0000, v{160+2*u}")
        a(f"v_lshlrev_b32 v{acc(u,0)+2}, 16, v{161+2*u}")
        a(f"v_and_b32 v{acc(u,0)+3}, 0xffff0000, v{161+2*u}")
        for mi in range(1, 4 if u < 6 else 2):
            a(f"v_mov_b64 {vr(acc(u,mi),2)}, {vr(acc(u,0),2)}")
            a(f"v_mov_b64 {vr(acc(u,mi)+2,2)}, {vr(acc(u,0)+2,2)}")
    def reads(kk):
        xs = [f"ds_read_b128 {vr(FX(kk,mi),4)}, v{AX(kk,mi>>1)} offset:{2048*(mi&1)}" for mi in range(4)]
        ws = []
        for u in range(8):
            for rd in range(2):
                if u < 6: ws.append(f"ds_read_b64_tr_b16 {vr(FW(kk,u)+2*rd,2)}, v{AW(u&1)} offset:{8192*(u>>1)+(32*kk+4*rd)*128}")
                else: ws.append(f"ds_read_b64_tr_b16 {vr(FW(kk,u)+2*rd,2)}, v{AW(u-4)} offset:{(32*kk+4*rd)*64}")
        return ws[:2] + xs + ws[2:]
    def mfmas(kk):
        return [f"v_mfma_f32_16x16x32_bf16 {vr(acc(u,mi),4)}, {vr(FW(kk,u),4)}, {vr(FX(kk,mi),4)}, {vr(acc(u,mi),4)}"
                for u in range(8) for mi in range(4 if u < 6 else 2)]
    a(f"""
    s_mov_b32 s57, 1
    s_mov_b32 s59, {SLOT}
    s_mov_b32 s58, {SLOT}
    s_mov_b32 s61, 0
    s_barrier
    """)
    stamp(a, 2)
    for r in reads(0): a(r)
    for h in range(2): a(f"buffer_store_dwordx4 {vr(24+4*h,4)}, v13, {WS}, 0 offen offset:{1024*h} sc1")
    a("s_waitcnt lgkmcnt(0)")
    a("KM_cloop:")
    upd = [f"v_add_u32 v{r}, s58, v{r}" for r in range(16, 24)]
    M = mfmas(0)
    interleave(a, M[:20], reads(1))
    interleave(a, M[20:24], upd, per=2)
    interleave(a, M[24:27], [])
    a("s_waitcnt lgkmcnt(0)")
    a("s_barrier")
    a(M[27])
    M = mfmas(1)
    interleave(a, M[:20], reads(0))
    ctl = ["s_add_u32 s57, s57, 1", f"s_cmp_eq_u32 s57, {NS}", f"s_cselect_b32 s58, {(-(NS-1)*SLOT) & 0xffffffff}, s59",
           "s_cselect_b32 s57, 0, s57", "s_add_u32 s61, s61, 1", f"s_cmp_lt_u32 s61, {NST}"]
    interleave(a, M[20:26], ctl)
    a(M[26])
    a("s_waitcnt lgkmcnt(0)")
    a(M[27])
    a("s_cbranch_scc1 KM_cloop")
    stamp(a, 3)
    a("KM_gelu:")
    def post(val):
        if val == 1: return [f"v_mov_b32 v{VV}, s64", f"buffer_store_dword v{VV}, v{VFL}, {WS}, 0 offen"]
        return [f"v_mov_b32 v{VV}, s65", "v_mov_b32 v13, 2", f"buffer_store_dword v{VV}, v{VFL}, {WS}, 0 offen",
                f"buffer_store_dword v13, v{VFL}, {WS}, s75 offen sc1"]
    def gelu(x, n, t, out, mid1, mid2):
        for j in range(0, n, 2): a(f"v_pk_mul_f32 {vr(t+j,2)}, {vr(x[j],2)}, {vr(x[j],2)}")
        for j in range(0, n, 2): a(f"v_pk_fma_f32 {vr(t+j,2)}, {vr(t+j,2)}, v[4:5], v[4:5] op_sel:[0,0,1] op_sel_hi:[1,0,1]")
        for j in range(0, n, 2): a(f"v_pk_mul_f32 {vr(t+j,2)}, {vr(t+j,2)}, {vr(x[j],2)}")
        for j in range(n):
            a(f"v_exp_f32 v{t+j}, v{t+j}")
            if j == 1:
                for m in mid1: a(m)
        for j in range(0, n, 2): a(f"v_pk_add_f32 {vr(t+j,2)}, {vr(t+j,2)}, 1.0 op_sel_hi:[1,0]")
        for j in range(n):
            a(f"v_rcp_f32 v{t+j}, v{t+j}")
            if j == 1:
                for m in mid2: a(m)
        for j in range(0, n, 2): a(f"v_pk_mul_f32 {vr(t+j,2)}, {vr(t+j,2)}, {vr(x[j],2)}")
        for j in range(0, n, 2): a(f"v_cvt_pk_bf16_f32 v{out+j//2}, v{t+j}, v{t+j+1}")
    so = ["s70", "s71", "s72", "s73"]
    k = 0
    pend1, pend2 = [], []
    for b in range(4):
        for mi in range(4 if b < 3 else 2):
            x = [acc(2*b, mi)+r for r in range(4)] + [acc(2*b+1, mi)+r for r in range(4)]
            out = 168 + 4*(k % 6)
            gelu(x, 8, 160, out, pend1, pend2)
            if b < 3:
                pend1 = [f"buffer_store_dwordx4 {vr(out,4)}, v{HG}, {WS}, {so[mi]} offen offset:{2048*(b&1)} {'' if b < 2 else 'sc1'}"]
                pend2 = [f"ds_write_b128 v{HL(mi>>1)}, {vr(out,4)} offset:{S2*(b&1)+2048*(mi&1)}"]
                if b == 2 and mi == 0:
                    pend1 = [f"v_add_u32 v{HG}, 4096, v{HG}"] + pend1
                    pend2 = [f"v_add_u32 v{HL(0)}, {2*S2}, v{HL(0)}", f"v_add_u32 v{HL(1)}, {2*S2}, v{HL(1)}"] + pend2
            else:
                pend1 = [f"buffer_store_dwordx4 {vr(out,4)}, v{HGH}, {WS}, {so[mi]} offen sc1"]
                pend2 = [f"ds_write_b128 v{HLH}, {vr(out,4)} offset:{2048*mi}"]
            if k == cfg.post1: pend2 = pend2 + [f"s_waitcnt vmcnt({k-7})"] + post(1)
            k += 1
    for m in pend2 + pend1: a(m)
    acc2 = lambda u, mi: 32 + (mi*4+u)*4
    FW2 = lambda s, u: 96 + 32*s + 4*u
    FX2 = lambda s, mi: 96 + 32*s + 16 + 4*mi
    EB2, EG, EX1 = 192, 200, 216
    a(f"""
    s_mov_b32 s57, 1
    s_mov_b32 s59, {S2}
    s_mov_b32 s58, {S2}
    s_mov_b32 s61, 2
    s_waitcnt lgkmcnt(0)
    """)
    stamp(a, 4)
    a("s_barrier")
    def reads2(kk):
        xs = [f"ds_read_b128 {vr(FX2(kk,mi),4)}, v{AX2(mi>>1)} offset:{2048*(mi&1)+1024*kk}" for mi in range(4)]
        ws = []
        for u in range(4):
            for rd in range(2):
                ws.append(f"ds_read_b64_tr_b16 {vr(FW2(kk,u)+2*rd,2)}, v{AW2(u)} offset:{(32*kk+16*rd)*128}")
        return ws[:2] + xs + ws[2:]
    def mfmas2(kk, first=False):
        return [f"v_mfma_f32_16x16x32_bf16 {vr(acc2(u,mi),4)}, {vr(FW2(kk,u),4)}, {vr(FX2(kk,mi),4)}, {'0' if first else vr(acc2(u,mi),4)}"
                for u in range(4) for mi in range(4)]
    upd2 = [f"v_add_u32 v{r}, s58, v{r}" for r in range(245, 251)]
    ctl2 = ["s_add_u32 s57, s57, 1", f"s_cmp_eq_u32 s57, {NS2}", f"s_cselect_b32 s58, {(-(NS2-1)*S2) & 0xffffffff}, s59",
            "s_cselect_b32 s57, 0, s57"]
    def step(M, R, tail):
        a("s_waitcnt lgkmcnt(6)")
        interleave(a, M[:4], R[:4])
        a(f"s_waitcnt lgkmcnt({4 if R else 0})")
        interleave(a, M[4:12], R[4:])
        interleave(a, M[12:15], tail, per=2)
    def stage(bar, first=False, extra=[]):
        M = mfmas2(0, first)
        step(M, reads2(1), upd2)
        a(bar)
        a(M[15])
        M = mfmas2(1)
        step(M, reads2(0), ctl2 + extra)
        return M[15]
    for r in reads2(0): a(r)
    a(stage("s_waitcnt lgkmcnt(0)\ns_barrier", first=True))
    a(stage(""))
    a(f"s_mov_b32 s62, {cfg.post2}")
    a("KM_c2loop:")
    a(stage("s_barrier", extra=["s_add_u32 s61, s61, 1", f"s_cmp_lt_u32 s61, s62"]))
    a("s_cbranch_scc1 KM_c2loop")
    a(f"s_cmp_eq_u32 s61, {NST2-1}")
    a("s_cbranch_scc1 KM_c2done")
    a("s_waitcnt vmcnt(0)")
    for m in post(2): a(m)
    a(f"s_mov_b32 s62, {NST2-1}")
    a("s_branch KM_c2loop")
    a("KM_c2done:")
    ld = []
    for k in range(2):
        for p in range(2):
            ld.append(f"buffer_load_dwordx4 {vr(EX1+8*k+4*p,4)}, v{VROW}, {WS}, {['s66','s67'][k]} offen offset:{64*p} sc1")
    for p in range(2):
        ld.append(f"buffer_load_dwordx4 {vr(EB2+4*p,4)}, v{VC2}, s[16:19], 0 offen offset:{64*p}")
        for h in range(2):
            ld.append(f"buffer_load_dwordx4 {vr(EG+8*p+4*h,4)}, v{VGB}, {WS}, 0 offen offset:{64*p+1024*h}")
    M = mfmas2(0)
    a("s_waitcnt lgkmcnt(6)")
    R = reads2(1)
    interleave(a, M[:4], R[:4])
    a("s_waitcnt lgkmcnt(4)")
    interleave(a, M[4:12], R[4:])
    interleave(a, M[12:16], ld[:4])
    order = [(u, mi) for u in range(4) for mi in (2, 3)] + [(u, mi) for u in range(4) for mi in (0, 1)]
    M = [f"v_mfma_f32_16x16x32_bf16 {vr(acc2(u,mi),4)}, {vr(FW2(1,u),4)}, {vr(FX2(1,mi),4)}, {vr(acc2(u,mi),4)}" for u, mi in order]
    a("s_waitcnt lgkmcnt(0)")
    interleave(a, M, ld[4:])
    stamp(a, 5)
    for j in range(4):
        for e in range(4):
            a(f"v_cvt_pk_bf16_f32 v{96+4*j+e}, v{64+8*j+2*e}, v{64+8*j+2*e+1}")
        if cfg.xmode == "sent":
            for e in range(4): a(f"v_min_u32 v{96+4*j+e}, -2, v{96+4*j+e}")
        a(f"buffer_store_dwordx4 {vr(96+4*j,4)}, v{VEXS}, {WS}, 0 offen offset:{1024*j} sc1")
    a("s_waitcnt vmcnt(4)")
    for j in range(8):
        a(f"v_lshlrev_b32 v{128+2*j}, 16, v{EB2+j}")
        a(f"v_and_b32 v{129+2*j}, 0xffff0000, v{EB2+j}")
    for j in range(16):
        a(f"v_lshlrev_b32 v{160+2*j}, 16, v{EX1+j}")
        a(f"v_and_b32 v{161+2*j}, 0xffff0000, v{EX1+j}")
    for k in range(2):
        for e in range(0, 16, 2): a(f"v_pk_fma_f32 {vr(160+16*k+e,2)}, {vr(128+e,2)}, {vr(EG+e,2)}, {vr(160+16*k+e,2)}")
    RX = 144
    if cfg.xmode == "sent":
        a(f"""
        s_mov_b32 s72, 0
        KM_xpoll:
        """)
        for j in range(4):
            a(f"buffer_load_dwordx4 {vr(RX+4*j,4)}, v{VEXR}, {WS}, 0 offen offset:{1024*j} sc1")
        a(f"""
        s_add_u32 s72, s72, 1
        s_cmp_gt_u32 s72, {SPIN_MAX}
        s_waitcnt vmcnt(0)
        s_cbranch_scc1 KM_xpoll_x
        v_max3_u32 v8, v{RX}, v{RX+1}, v{RX+2}
        v_max3_u32 v9, v{RX+3}, v{RX+4}, v{RX+5}
        v_max3_u32 v10, v{RX+6}, v{RX+7}, v{RX+8}
        v_max3_u32 v11, v{RX+9}, v{RX+10}, v{RX+11}
        v_max3_u32 v8, v8, v{RX+12}, v{RX+13}
        v_max3_u32 v9, v9, v{RX+14}, v{RX+15}
        v_max3_u32 v8, v8, v9, v10
        v_max_u32 v8, v8, v11
        v_cmp_eq_u32 vcc, -1, v8
        s_cbranch_vccnz KM_xpoll
        KM_xpoll_x:
        """)
    else:
        a(f"""
        v_mov_b32 v8, 1
        s_waitcnt vmcnt(0)
        s_mov_b64 exec, 1
        buffer_store_dword v8, v7, {WS}, 0 offen sc1
        s_mov_b32 s72, 0
        KM_xpoll:
        buffer_load_dword v9, v6, {WS}, 0 offen sc1
        s_add_u32 s72, s72, 1
        s_waitcnt vmcnt(0)
        v_cmp_ne_u32 vcc, 1, v9
        s_cmp_gt_u32 s72, {SPIN_MAX}
        s_cbranch_scc1 KM_xpoll_x
        s_cbranch_vccnz KM_xpoll
        KM_xpoll_x:
        s_mov_b64 exec, -1
        """)
        for j in range(4):
            a(f"buffer_load_dwordx4 {vr(RX+4*j,4)}, v{VEXR}, {WS}, 0 offen offset:{1024*j} sc1")
    for j in range(4):
        k, p = j >> 1, j & 1
        t0 = 32+8*j
        if cfg.xmode != "sent": a("s_waitcnt vmcnt(3)")
        for e in range(4):
            a(f"v_lshlrev_b32 v{64+2*e}, 16, v{RX+4*j+e}")
            a(f"v_and_b32 v{65+2*e}, 0xffff0000, v{RX+4*j+e}")
        for e in range(0, 8, 2): a(f"v_pk_add_f32 {vr(t0+e,2)}, {vr(t0+e,2)}, {vr(64+e,2)}")
        a("s_nop 1")
        for r in range(4): a(f"v_permlane16_swap_b32 v{t0+r}, v{t0+4+r}")
        a("s_nop 1")
        for e in range(0, 8, 2): a(f"v_pk_fma_f32 {vr(t0+e,2)}, {vr(t0+e,2)}, {vr(EG+8*p+e,2)}, {vr(160+8*j+e,2)}")
        for e in range(4): a(f"v_cvt_pk_bf16_f32 v{112+4*j+e}, v{t0+2*e}, v{t0+2*e+1}")
        a(f"buffer_store_dwordx4 {vr(112+4*j,4)}, v{VROW}, s[36:39], {['0','s74'][k]} offen offset:{64*p} {cfg.out_pol}")
    fin(a, kidx, "KM_end")
```

```python
import sys, math
from asmlib import *

NAME = "adaLN_cond__ssm_conv_h3__mixer_channel_mlp__prompt"
S, D, F = 2048, 1024, 3584
KQ, KK, KV, KSH, KSSM, KSD, KBX, KW1, KB1, KW2, KB2, KC_, KWM, KOUT, KDBG, KWS = [8*i for i in range(16)]
WS_U    = 0x0000000
WS_MODP = 0x0400000
WS_MOD  = 0x0440000
WS_FL2  = 0x3200000
FL2_BYTES = 32768 + 12288 + 65536
WS_GB   = 0x0480000
WS_Y    = 0x0800000
WS_X1   = 0x0C00000
WS_Y2   = 0x1000000
WS_H    = 0x1400000
WS_EX   = 0x2400000
MB4 = 0x400000
LOG2E = 1.4426950408889634

import struct
def f32(x):
    return "0x%08x" % struct.unpack("<I", struct.pack("<f", x))[0]

WS_ST   = 0x3800000
class Cfg:
    stamps = False
    extra = ""
    merged = True
    stR = False
    ka_code = True
    map = "4x2"
    km_pf = True
    km_b0 = 1
    km_b1 = 2
    post1 = 9
    post2 = 6
    xmode = "sent"
    idle_w1 = False
    fused = True
    fuseA = True
    kb_pf = 2
    qwarm = True
    pfat = 3
    pf_code = True
    ul2 = True
    relpoll = 32
    dep = 2
    npf1 = 7
    nb1 = 6
    nb2 = 0
    pf_w1 = True
    exp = ""
    trace = False
    absord = True
    a2_pol = "sc1"
    l2path = True
    wb_mid = False
    h_pol = ""
    early = True
    ex_bf16 = True
    pf_w2 = True
    out_pol = ""
    rt = False
    diag = ""
    pf_pol = ""
    nt_in = ""
    w_pol = ""
    st_pol = "sc1"
cfg = Cfg()

def head(a, nwg, endlbl):
    a(f"s_cmp_ge_u32 s2, {nwg}")
    a(f"s_cbranch_scc1 {endlbl}_x" if cfg.stamps else f"s_cbranch_scc1 {endlbl}")
    if cfg.stamps:
        a("s_memrealtime s[76:77]")
        a("s_memtime s[78:79]")
        a(f"s_load_dwordx2 s[98:99], s[0:1], {KWS}")
        for i in range(80, 92, 2): a(f"s_mov_b64 s[{i}:{i+1}], 0")
        a("v_readfirstlane_b32 s97, v0")

def stamp(a, i):
    if cfg.stamps:
        a(f"{'s_memrealtime' if cfg.rt else 's_memtime'} s[{80+2*i}:{81+2*i}]")

def fin(a, kidx, lbl=None):
    if lbl: a(f"{lbl}:")
    if cfg.stamps:
        a(f"""
        s_waitcnt vmcnt(0)
        s_memrealtime s[92:93]
        s_memtime s[94:95]
        s_waitcnt lgkmcnt(0)
        s_mov_b64 exec, 1
        s_lshr_b32 s97, s97, 6
        s_add_u32 s96, s2, {kidx*256}
        s_lshl_b32 s96, s96, 4
        s_add_u32 s96, s96, s97
        s_lshl_b32 s96, s96, 6
        s_add_u32 s96, s96, {WS_ST}
        v_mov_b32 v0, s96
        v_mov_b32 v4, s76
        v_mov_b32 v5, s92
        v_mov_b32 v6, s78
        v_mov_b32 v7, s94
        global_store_dwordx4 v0, v[4:7], s[98:99]
        s_nop 1
        v_mov_b32 v4, s80
        v_mov_b32 v5, s82
        v_mov_b32 v6, s84
        v_mov_b32 v7, s86
        global_store_dwordx4 v0, v[4:7], s[98:99] offset:16
        s_nop 1
        v_mov_b32 v4, s88
        v_mov_b32 v5, s90
        global_store_dwordx2 v0, v[4:5], s[98:99] offset:32
        """)
        if lbl: a(f"{lbl}_x:")
    a("s_endpgm")

def gen_k0():
    a = Asm()
    head(a, 256, "K0_end")
    a(f"""
    s_load_dwordx4 s[4:7], s[0:1], {KK}
    s_load_dwordx2 s[8:9], s[0:1], {KSH}
    s_load_dwordx4 s[12:15], s[0:1], {KC_}
    s_load_dwordx2 s[10:11], s[0:1], {KWS}
    v_lshrrev_b32 v1, 6, v0
    v_and_b32 v2, 63, v0
    v_readfirstlane_b32 s3, v1
    s_and_b32 s44, s2, 7
    s_lshr_b32 s45, s2, 3
    s_lshr_b32 s46, s45, 4
    s_lshl_b32 s44, s44, 1
    s_add_u32 s44, s44, s46          ; cg
    s_and_b32 s45, s45, 15           ; rb
    s_lshl_b32 s46, s45, 7
    s_lshl_b32 s47, s3, 4
    s_add_u32 s46, s46, s47
    s_lshl_b32 s47, s46, 11
    s_lshl_b32 s48, s44, 7
    s_add_u32 s47, s47, s48
    v_lshrrev_b32 v7, 3, v2          ; l>>3
    v_and_b32 v15, 7, v2             ; l&7
    v_lshlrev_b32 v3, 11, v7
    v_lshl_add_u32 v3, v15, 4, v3
    v_add_u32 v3, s47, v3            ; vk
    v_add_u32 v4, 0xffffc000, v3
    s_mul_i32 s49, s3, 5120
    s_mov_b32 s50, 16384
    s_waitcnt lgkmcnt(0)
    """)
    srd(a, 16, 4, MB4); srd(a, 20, 6, MB4); srd(a, 24, 8, 8192)
    srd(a, 28, 10, MB4, WS_U); srd(a, 32, 12, 2048); srd(a, 36, 14, 1024*6144*2); srd(a, 40, 10, 2*6144*4, WS_MODP)
    nt = cfg.nt_in
    a(f"""
    s_add_u32 m0, s49, 1024
    s_nop 0
    buffer_load_dwordx4 v3, s[16:19], 0 offen {nt} lds
    s_add_u32 m0, s49, 2048
    s_nop 0
    buffer_load_dwordx4 v3, s[16:19], s50 offen {nt} lds
    s_add_u32 m0, s49, 3072
    s_nop 0
    buffer_load_dwordx4 v3, s[20:23], 0 offen {nt} lds
    s_add_u32 m0, s49, 4096
    s_nop 0
    buffer_load_dwordx4 v3, s[20:23], s50 offen {nt} lds
    s_mov_b32 m0, s49
    s_mov_b32 exec_lo, 0
    buffer_load_dwordx4 v4, s[16:19], 0 offen {nt} lds
    s_mov_b32 exec_lo, -1
    s_lshl_b32 s51, s44, 9
    v_lshl_add_u32 v5, v2, 3, s51
    buffer_load_dwordx2 v[8:9], v5, s[24:27], 0 offen
    s_cmp_ge_u32 s2, 192
    s_cbranch_scc1 K0_nogemv_ld
    s_lshr_b32 s52, s2, 1
    s_and_b32 s53, s2, 1             ; k half
    s_lshl_b32 s54, s53, 9
    s_lshl_b32 s55, s3, 6
    s_add_u32 s54, s54, s55
    v_lshl_add_u32 v60, v7, 3, s54
    v_lshlrev_b32 v61, 1, v60
    s_mov_b32 s55, 12288
    v_mul_lo_u32 v108, v60, s55
    s_lshl_b32 s55, s52, 7
    v_lshl_add_u32 v109, v15, 4, s55
    v_add_u32 v108, v108, v109
    buffer_load_dwordx4 v[60:63], v61, s[32:35], 0 offen
    s_mov_b32 s55, 0
    """)
    for i in range(8):
        a(f"buffer_load_dwordx4 {vr(64+4*i,4)}, v108, s[36:39], s55 offen {nt}")
        if i < 7: a("s_add_u32 s55, s55, 12288")
    a("""
    s_waitcnt vmcnt(9)
    s_branch K0_phaseA
    K0_nogemv_ld:
    s_waitcnt vmcnt(0)
    K0_phaseA:
    """)
    stamp(a, 0)
    a("""
    v_lshrrev_b32 v5, 4, v2          ; g
    v_and_b32 v6, 15, v2             ; i
    v_lshrrev_b32 v10, 2, v6
    v_and_b32 v11, 3, v6
    v_lshlrev_b32 v10, 7, v10
    v_lshl_add_u32 v10, v5, 5, v10
    v_lshl_add_u32 v10, v11, 3, v10
    v_add_u32 v5, s49, v10
    """)
    for p in range(5):
        a(f"ds_read_b64_tr_b16 {vr(16+2*p,2)}, v5 offset:{512+512*p}")
    for p in range(4):
        a(f"ds_read_b64_tr_b16 {vr(26+2*p,2)}, v5 offset:{3072+512*p}")
    a("""
    v_alignbit_b32 v10, v8, v8, 16   ; A=(w1,w0)
    v_alignbit_b32 v11, v9, v9, 16   ; B=(w3,w2)
    v_and_b32 v12, 0xffff, v8        ; C=(w0,0)
    s_mov_b32 s56, 0xffff
    v_bfi_b32 v13, s56, v9, v8       ; D=(w2,w1)
    v_and_b32 v14, 0xffff0000, v9    ; E=(0,w3)
    v_lshrrev_b32 v6, 2, v2
    v_lshlrev_b32 v6, 14, v6
    v_and_b32 v50, 3, v2
    v_lshl_add_u32 v6, v50, 4, v6
    s_lshl_b32 s56, s44, 18
    s_lshl_b32 s57, s46, 3           ; (row0/8)*64
    s_add_u32 s56, s56, s57
    v_add_u32 v6, s56, v6
    s_waitcnt lgkmcnt(0)
    """)
    P = lambda q: 16 + q + 2
    ks = lambda t: 34 + t
    for q in range(8):
        a(f"v_dot2_f32_bf16 v{ks(2*q)}, v{P(q)}, v12, 0")
        a(f"v_dot2_f32_bf16 v{ks(2*q+1)}, v{P(q)}, v10, 0")
    for q in range(8):
        a(f"v_dot2_f32_bf16 v{ks(2*q)}, v{P(q-1)}, v13, v{ks(2*q)}")
        a(f"v_dot2_f32_bf16 v{ks(2*q+1)}, v{P(q-1)}, v11, v{ks(2*q+1)}")
    for q in range(8):
        a(f"v_dot2_f32_bf16 v{ks(2*q)}, v{P(q-2)}, v14, v{ks(2*q)}")
    for q in range(8):
        a(f"v_lshlrev_b32 v{110+2*q}, 16, v{26+q}")
        a(f"v_and_b32 v{111+2*q}, 0xffff0000, v{26+q}")
    for t in range(16):
        a(f"v_mul_f32 v{ks(t)}, v{ks(t)}, v{110+t}")
    for h in range(2):
        for j in range(4):
            a(f"v_cvt_pk_bf16_f32 v{52+4*h+j}, v{ks(8*h+7-2*j)}, v{ks(8*h+6-2*j)}")
    a(f"buffer_store_dwordx4 v[52:55], v6, s[28:31], 0 offen {cfg.st_pol}")
    a(f"buffer_store_dwordx4 v[56:59], v6, s[28:31], 0 offen offset:64 {cfg.st_pol}")
    stamp(a, 1)
    a("""
    s_cmp_ge_u32 s2, 192
    s_cbranch_scc1 K0_end
    s_waitcnt vmcnt(10)
    """)
    for q in range(4):
        a(f"v_lshlrev_b32 v{110+2*q}, 16, v{60+q}")
        a(f"v_and_b32 v{111+2*q}, 0xffff0000, v{60+q}")
    for i in range(8): a(f"v_mul_f32 v{118+i}, {f32(-LOG2E)}, v{110+i}")
    for i in range(8): a(f"v_exp_f32 v{118+i}, v{118+i}")
    a("s_nop 0")
    for i in range(8): a(f"v_add_f32 v{118+i}, 1.0, v{118+i}")
    for i in range(8): a(f"v_rcp_f32 v{118+i}, v{118+i}")
    a("s_nop 0")
    for i in range(8): a(f"v_mul_f32 v{110+i}, v{110+i}, v{118+i}")
    for q in range(4): a(f"v_cvt_pk_bf16_f32 v{96+q}, v{110+2*q}, v{111+2*q}")
    a("s_mov_b32 s56, 0x05040100")
    a("s_mov_b32 s57, 0x07060302")
    for q in range(4):
        a(f"s_waitcnt vmcnt({2 + 6 - 2*q})")
        for j in range(4):
            w0 = 64 + 8*q + j; w1 = w0 + 4
            a(f"v_perm_b32 v{110+2*j}, v{w1}, v{w0}, s56")
            a(f"v_perm_b32 v{111+2*j}, v{w1}, v{w0}, s57")
        for j in range(8):
            src2 = "0" if q == 0 else f"v{100+j}"
            a(f"v_dot2_f32_bf16 v{100+j}, v{110+j}, v{96+q}, {src2}")
    stamp(a, 2)
    a("s_nop 3")
    for j in range(4): a(f"v_permlane32_swap_b32 v{100+j}, v{104+j}")
    a("s_nop 1")
    for j in range(4): a(f"v_add_f32 v{100+j}, v{100+j}, v{104+j}")
    a("s_nop 1")
    for j in range(2): a(f"v_permlane16_swap_b32 v{100+j}, v{102+j}")
    a("s_nop 1")
    for j in range(2): a(f"v_add_f32 v{100+j}, v{100+j}, v{102+j}")
    a("s_nop 1")
    for j in range(2): a(f"v_add_f32_dpp v{100+j}, v{100+j}, v{100+j} row_ror:8 row_mask:0xf bank_mask:0xf")
    a("""
    v_lshrrev_b32 v110, 4, v2
    v_lshlrev_b32 v110, 3, v110
    v_lshl_add_u32 v110, v15, 5, v110
    s_lshl_b32 s56, s3, 8
    s_add_u32 s56, s56, 40960
    v_add_u32 v110, s56, v110
    ds_write_b64 v110, v[100:101]
    s_waitcnt lgkmcnt(0)
    s_barrier
    s_cmp_lg_u32 s3, 0
    s_cbranch_scc1 K0_end
    v_lshlrev_b32 v110, 2, v2
    """)
    for w in range(8): a(f"ds_read_b32 v{100+w}, v110 offset:{40960+256*w}")
    a("""
    s_mul_i32 s56, s53, 24576
    s_lshl_b32 s57, s52, 8
    s_add_u32 s56, s56, s57
    s_waitcnt lgkmcnt(0)
    v_add_f32 v100, v100, v101
    v_add_f32 v102, v102, v103
    v_add_f32 v104, v104, v105
    v_add_f32 v106, v106, v107
    v_add_f32 v100, v100, v102
    v_add_f32 v104, v104, v106
    v_add_f32 v100, v100, v104
    buffer_store_dword v100, v110, s[40:43], s56 offen
    """)
    fin(a, 0, "K0_end")
    return dict(name="k0_kernel", body=a.text(), vgpr=128, sgpr=64, grid=256, block=512, lds=43008)

CP_STR, CH_STR = 4160, 16640
UR_BASE, UR_STR = 4*16640, 4640
def gen_k1():
    a = Asm()
    head(a, 256, "K1_end")
    a(f"""
    s_load_dwordx4 s[4:7], s[0:1], {KSSM}
    s_load_dwordx2 s[10:11], s[0:1], {KWS}
    v_lshrrev_b32 v1, 6, v0
    v_and_b32 v2, 63, v0
    v_readfirstlane_b32 s3, v1
    s_and_b32 s44, s2, 7
    s_lshr_b32 s45, s2, 3
    s_lshl_b32 s44, s44, 5
    s_add_u32 s44, s44, s45          ; cq
    s_lshl_b32 s45, s44, 2
    s_add_u32 s45, s45, s3           ; channel d
    s_lshl_b32 s46, s45, 12
    v_lshl_add_u32 v3, v2, 4, s46
    s_lshl_b32 s47, s44, 14          ; cq*16384
    s_lshl_b32 s48, s3, 12
    s_add_u32 s48, s48, s47
    v_lshl_add_u32 v4, v2, 4, s48    ; U offset
    s_mul_i32 s49, s3, {CH_STR}      ; chbase
    s_waitcnt lgkmcnt(0)
    """)
    srd(a, 16, 4, MB4); srd(a, 20, 6, 2048); srd(a, 24, 10, MB4, WS_U); srd(a, 28, 10, MB4, WS_Y)
    nt = cfg.nt_in
    for j in range(4):
        a(f"buffer_load_dwordx4 {vr(176+4*j,4)}, v4, s[24:27], 0 offen offset:{1024*j}")
    for j in range(4):
        for sft in range(3):
            a(f"buffer_load_dwordx4 {vr(32+12*j+4*sft,4)}, v3, s[16:19], 0 offen offset:{1024*j+4*sft} {nt}")
    a(f"""
    s_lshl_b32 s50, s45, 1
    v_mov_b32 v5, s50
    buffer_load_ushort v6, v5, s[20:23], 0 offen
    v_and_b32 v7, 3, v2
    v_mul_u32_u24 v7, {UR_STR}, v7
    v_lshrrev_b32 v8, 2, v2
    v_lshlrev_b32 v8, 4, v8
    v_sub_u32 v7, v7, v8
    s_lshl_b32 s50, s3, 10
    s_sub_u32 s50, {UR_BASE + 255*16 - 3*256}, s50
    v_add_u32 v7, s50, v7
    v_mov_b32 v12, 0
    v_mov_b32 v13, 0
    v_mov_b32 v14, 0
    v_mov_b32 v15, 0
    s_mul_i32 s51, s3, {UR_STR}
    s_add_u32 s51, s51, {UR_BASE}    ; URc
    v_lshl_add_u32 v8, v2, 4, s51
    s_mov_b64 exec, 0x3fffffff
    ds_write_b128 v8, v[12:15] offset:4096
    s_mov_b64 exec, -1
    v_lshl_add_u32 v9, v2, 4, s49
    v_and_b32 v10, 15, v2            ; i' / a'
    v_lshrrev_b32 v11, 4, v2         ; g
    v_add_u32 v16, 1, v10            ; o+16
    v_and_b32 v17, 3, v16            ; c'
    v_sub_u32 v16, v16, v17          ; o-c'+16
    v_lshlrev_b32 v16, 1, v16        ; 2(o-c')+32
    v_mul_u32_u24 v17, {CP_STR}, v17
    v_add_u32 v16, v16, v17
    v_lshl_add_u32 v16, v11, 4, v16
    v_add_u32 v16, s49, v16          ; vA
    v_lshlrev_b32 v17, 5, v10
    v_sub_u32 v17, 480, v17
    v_lshl_add_u32 v17, v11, 4, v17
    v_add_u32 v17, s51, v17          ; vB
    ; e = 15 - i' - 8g
    v_lshlrev_b32 v18, 3, v11
    v_add_u32 v18, v18, v10
    v_sub_u32 v18, 15, v18
    s_waitcnt vmcnt(13)
    """)
    stamp(a, 0)
    for j in range(4):
        a(f"ds_write_b128 v7, {vr(176+4*j,4)} offset:{256*(3-j)}")
    for j in range(4):
        A, B, C = 32+12*j, 36+12*j, 40+12*j
        a(f"s_waitcnt vmcnt({1+3*(3-j)})")
        o1, o3 = 80+8*j, 84+8*j
        for i in range(4): a(f"v_alignbit_b32 v{o1+i}, v{B+i}, v{A+i}, 16")
        for i in range(4): a(f"v_alignbit_b32 v{o3+i}, v{C+i}, v{B+i}, 16")
        a(f"ds_write_b128 v9, {vr(A,4)} offset:{32+1024*j}")
        a(f"ds_write_b128 v9, {vr(B,4)} offset:{2*CP_STR+32+1024*j}")
        a(f"ds_write_b128 v9, {vr(o1,4)} offset:{CP_STR+32+1024*j}")
        a(f"ds_write_b128 v9, {vr(o3,4)} offset:{3*CP_STR+32+1024*j}")
    a(f"""
    v_readfirstlane_b32 s52, v32
    v_readfirstlane_b32 s53, v33
    s_nop 1
    s_lshl_b32 s54, s52, 16
    s_lshr_b32 s55, s52, 16
    s_lshl_b32 s56, s53, 16
    s_or_b32 s55, s55, s56
    v_writelane_b32 v15, s54, 3
    v_writelane_b32 v15, s52, 5
    v_writelane_b32 v14, s54, 7
    v_writelane_b32 v15, s55, 7
    v_lshrrev_b32 v19, 1, v2
    v_mul_u32_u24 v19, {CP_STR}, v19
    v_and_b32 v20, 1, v2
    v_lshl_add_u32 v19, v20, 4, v19
    v_add_u32 v19, s49, v19
    s_mov_b64 exec, 0xff
    ds_write_b128 v19, v[12:15]
    s_mov_b64 exec, -1
    s_waitcnt vmcnt(0)
    v_lshlrev_b32 v21, 16, v6
    """)
    for j in range(4):
        a(f"v_cmp_eq_u32 vcc, {2*j}, v18")
        a("s_nop 1")
        a(f"v_cndmask_b32 v{24+j}, 0, v6, vcc")
        a(f"v_cmp_eq_u32 vcc, {2*j+1}, v18")
        a("s_nop 1")
        a(f"v_cndmask_b32 v{24+j}, v{24+j}, v21, vcc")
    a("s_waitcnt lgkmcnt(0)")
    a("s_barrier")
    stamp(a, 1)
    ACC = 192
    FA = lambda s, w: 32 + 64*s + 4*w
    FB = lambda s, v: 64 + 64*s + 4*v
    def reads(z0):
        s = z0 & 1
        R = []
        for i in range(8):
            R.append(f"ds_read_b128 {vr(FB(s,i),4)}, v17 offset:{512*(7-i)+64*z0}")
            R.append(f"ds_read_b64 {vr(FA(s,i),2)}, v16 offset:{512*i+64*z0}")
            R.append(f"ds_read_b64 {vr(FA(s,i)+2,2)}, v16 offset:{512*i+64*z0+8}")
        return R
    for r in reads(0): a(r)
    a("s_waitcnt lgkmcnt(0)")
    for n in range(8):
        a(f"v_mfma_f32_16x16x32_bf16 {vr(ACC+4*n,4)}, v[24:27], {vr(FB(0,n),4)}, 0")
    for z0 in range(8):
        s = z0 & 1
        R = reads(z0+1) if z0 < 7 else []
        M = [(w, v) for w in range(8) for v in range(8-w)]
        for i, (w, v) in enumerate(M):
            a(f"v_mfma_f32_16x16x32_bf16 {vr(ACC+4*(w+v),4)}, {vr(FA(s,w),4)}, {vr(FB(s,v),4)}, {vr(ACC+4*(w+v),4)}")
            if i < len(R): a(R[i])
        if z0 < 7: a("s_waitcnt lgkmcnt(0)")
    stamp(a, 2)
    a(f"""
    v_lshlrev_b32 v20, 5, v10
    v_lshl_add_u32 v20, v11, 3, v20
    v_add_u32 v20, s49, v20
    s_lshl_b32 s50, s3, 10
    v_lshl_add_u32 v21, v2, 2, s50
    s_mov_b32 s56, 0x05040100
    s_mov_b32 s57, 0x07060302
    s_nop 4
    """)
    for n in range(8):
        a(f"v_cvt_pk_bf16_f32 v{32+2*n}, v{ACC+4*n}, v{ACC+4*n+1}")
        a(f"v_cvt_pk_bf16_f32 v{33+2*n}, v{ACC+4*n+2}, v{ACC+4*n+3}")
        a(f"ds_write_b64 v20, {vr(32+2*n,2)} offset:{512*n}")
    a("s_waitcnt lgkmcnt(0)")
    a("s_barrier")
    for j in range(4):
        a(f"ds_read2st64_b32 {vr(64+4*j,2)}, v21 offset0:{j} offset1:{65+j}")
        a(f"ds_read2st64_b32 {vr(66+4*j,2)}, v21 offset0:{130+j} offset1:{195+j}")
    for j in range(4):
        a(f"s_waitcnt lgkmcnt({6-2*j})")
        b = 64+4*j; o = 96+4*j
        a(f"v_perm_b32 v{o}, v{b+1}, v{b}, s56")
        a(f"v_perm_b32 v{o+1}, v{b+3}, v{b+2}, s56")
        a(f"v_perm_b32 v{o+2}, v{b+1}, v{b}, s57")
        a(f"v_perm_b32 v{o+3}, v{b+3}, v{b+2}, s57")
        a(f"buffer_store_dwordx4 {vr(o,4)}, v4, s[28:31], 0 offen offset:{1024*j} {cfg.st_pol}")
    fin(a, 1, "K1_end")
    return dict(name="k1_kernel", body=a.text(), vgpr=224, sgpr=64, grid=256, block=256, lds=UR_BASE+4*UR_STR)

def wave_stats(a, s1, s2, t, mean_rs, rstd):
    steps = ["quad_perm:[1,0,3,2] row_mask:0xf", "quad_perm:[2,3,0,1] row_mask:0xf", "row_half_mirror row_mask:0xf",
             "row_mirror row_mask:0xf", "row_bcast:15 row_mask:0xa", "row_bcast:31 row_mask:0xc"]
    a("s_nop 1")
    for st in steps:
        a(f"v_add_f32_dpp v{s1}, v{s1}, v{s1} {st} bank_mask:0xf")
        a(f"v_add_f32_dpp v{s2}, v{s2}, v{s2} {st} bank_mask:0xf")
        a("s_nop 0")
    a(f"""
    v_readlane_b32 s60, v{s1}, 63
    v_readlane_b32 s61, v{s2}, 63
    s_nop 1
    v_mul_f32 v{t}, s60, v250             ; mean
    v_mul_f32 v{rstd}, s61, v250          ; E[x^2]
    v_fma_f32 v{rstd}, -v{t}, v{t}, v{rstd}
    v_max_f32 v{rstd}, 0, v{rstd}
    v_add_f32 v{rstd}, {f32(1e-5)}, v{rstd}
    v_rsq_f32 v{rstd}, v{rstd}
    s_nop 0
    v_mul_f32 v{mean_rs}, v{t}, v{rstd}
    v_sub_f32 v{mean_rs}, 0, v{mean_rs}
    """.replace("v250", "v126"))

def gen_kb():
    a = Asm()
    head(a, 256, "KB_end")
    MODL = 16384
    a(f"""
    s_load_dwordx2 s[4:5], s[0:1], {KQ}
    s_load_dwordx2 s[10:11], s[0:1], {KWS}
    s_load_dwordx2 s[6:7], s[0:1], {KW1}
    s_load_dwordx2 s[8:9], s[0:1], {KW2}
    v_lshrrev_b32 v1, 6, v0
    v_and_b32 v2, 63, v0
    v_readfirstlane_b32 s3, v1
    s_and_b32 s44, s2, 7
    s_lshr_b32 s45, s2, 3
    s_lshl_b32 s44, s44, 5
    s_add_u32 s44, s44, s45
    s_lshl_b32 s45, s44, 3
    s_add_u32 s45, s45, s3           ; row
    s_lshl_b32 s46, s45, 11
    v_lshl_add_u32 v3, v2, 4, s46
    v_lshrrev_b32 v4, 2, v2
    v_and_b32 v5, 7, v4
    v_lshlrev_b32 v5, 1, v5
    v_lshrrev_b32 v4, 3, v4
    v_add_u32 v5, v5, v4             ; G (0..15)
    v_lshrrev_b32 v6, 3, v5
    v_and_b32 v7, 3, v2
    v_xor_b32 v6, v6, v7
    v_lshlrev_b32 v5, 14, v5
    s_lshl_b32 s47, s3, 19           ; (2w*16)*16384
    s_lshl_b32 s48, s44, 6
    s_add_u32 s47, s47, s48
    v_add_u32 v5, s47, v5
    v_lshl_add_u32 v8, v6, 4, v5
    v_xor_b32 v6, 2, v6
    v_lshl_add_u32 v9, v6, 4, v5
    v_lshlrev_b32 v10, 4, v0
    s_mov_b32 s49, 0x40000
    s_mov_b32 s50, 8192
    s_mov_b32 s51, 16384
    s_mov_b32 s52, 24576
    s_mov_b32 s53, 32768
    s_mov_b32 s54, 40960
    s_waitcnt lgkmcnt(0)
    """)
    srd(a, 16, 4, MB4); srd(a, 20, 10, MB4, WS_Y); srd(a, 24, 10, 2*6144*4, WS_MODP)
    srd(a, 28, 10, MB4, WS_X1); srd(a, 32, 10, MB4, WS_Y2); srd(a, 36, 10, 8192+65536, 0x3000000)
    a("""
    s_mul_i32 s55, s2, 288
    v_lshl_add_u32 v11, v0, 2, s55
    v_mov_b32 v12, 0
    v_cmp_gt_u32 vcc, 72, v0
    s_and_saveexec_b64 s[56:57], vcc
    s_cbranch_execz KB_nz
    buffer_store_dword v12, v11, s[36:39], 0 offen
    KB_nz:
    s_mov_b64 exec, -1
    """)
    a(f"""
    s_lshl_b32 s55, s3, 11
    s_mov_b32 m0, s55
    buffer_load_dwordx4 v[16:19], v10, s[24:27], 0 offen
    buffer_load_dwordx4 v8, s[20:23], 0 offen lds
    s_add_u32 m0, s55, 1024
    buffer_load_dwordx4 v[20:23], v10, s[24:27], s52 offen
    buffer_load_dwordx4 v9, s[20:23], s49 offen lds
    buffer_load_dwordx4 v[24:27], v10, s[24:27], s50 offen
    buffer_load_dwordx4 v[28:31], v10, s[24:27], s53 offen
    buffer_load_dwordx4 v[32:35], v10, s[24:27], s51 offen
    buffer_load_dwordx4 v[36:39], v10, s[24:27], s54 offen
    buffer_load_dwordx4 v[40:43], v3, s[16:19], 0 offen {cfg.nt_in}
    buffer_load_dwordx4 v[44:47], v3, s[16:19], 0 offen offset:1024 {cfg.nt_in}
    v_lshrrev_b32 v11, 7, v0         ; (vec&1)*2 + h
    v_lshlrev_b32 v11, 11, v11
    v_and_b32 v12, 1, v0
    v_lshl_add_u32 v11, v12, 10, v11
    v_bfe_u32 v12, v0, 1, 6
    v_lshl_add_u32 v11, v12, 4, v11
    v_cmp_le_u32 vcc, 256, v0
    v_mov_b32 v126, {f32(1.0/1024)}
    s_nop 0
    v_cndmask_b32_e64 v13, 0, 1.0, vcc
    v_sub_f32 v14, 1.0, v13
    v_lshrrev_b32 v4, 3, v2
    v_lshlrev_b32 v4, 10, v4
    v_and_b32 v5, 7, v2
    v_lshl_add_u32 v4, v5, 6, v4
    v_bfe_u32 v5, v2, 2, 2
    s_lshr_b32 s56, s3, 1
    v_xor_b32 v5, s56, v5
    v_lshl_add_u32 v4, v5, 4, v4
    s_and_b32 s56, s3, 1
    s_lshl_b32 s56, s56, 3
    v_add_u32 v4, s56, v4
    v_lshlrev_b32 v5, 4, v2
    s_waitcnt vmcnt(2)
    """)
    stamp(a, 0)
    for i in range(3):
        for e in range(4):
            a(f"v_add_f32 v{16+8*i+e}, v{16+8*i+e}, v{20+8*i+e}")
        if i != 1:
            for e in range(4):
                a(f"v_add_f32 v{16+8*i+e}, v{16+8*i+e}, v{13 if i == 0 else 14}")
        a(f"ds_write_b128 v11, {vr(16+8*i,4)} offset:{MODL+8192*i}")
    srd(a, 40, 10, 2048, WS_GB)
    a("""
    s_cmp_lg_u32 s2, 0
    s_cbranch_scc1 KB_nogb
    s_cmp_lt_u32 s3, 4
    s_cbranch_scc1 KB_nogb
    v_cvt_pk_bf16_f32 v36, v32, v33
    v_cvt_pk_bf16_f32 v37, v34, v35
    v_lshlrev_b32 v38, 3, v0
    v_add_u32 v38, 0xfffff800, v38
    buffer_store_dwordx2 v[36:37], v38, s[40:43], 0 offen
    KB_nogb:
    """)
    a("s_waitcnt vmcnt(0)")
    Q, Y, T = 48, 64, 80
    for j in range(8):
        a(f"v_lshlrev_b32 v{Q+2*j}, 16, v{40+j}")
        a(f"v_and_b32 v{Q+2*j+1}, 0xffff0000, v{40+j}")
    a("s_waitcnt lgkmcnt(0)")
    a("s_barrier")
    stamp(a, 1)
    if cfg.kb_pf:
        a(f"""
        s_cmp_lt_u32 s3, 4
        s_cselect_b32 s64, s6, s8
        s_cselect_b32 s65, s7, s9
        s_mov_b32 s66, 7340032
        s_mov_b32 s67, 0x20000
        s_mul_i32 s55, s2, 28672
        s_and_b32 s56, s3, 3
        s_mul_i32 s56, s56, 7168
        s_add_u32 s55, s55, s56
        v_lshl_add_u32 v15, v2, 4, s55
        s_mov_b32 s55, 4096
        """)
        if cfg.kb_pf == 1:
            a("s_cmp_lt_u32 s3, 4")
            a("s_cbranch_scc0 KB_nopf")
        for i in range(7):
            a(f"buffer_load_dwordx4 {vr(144+4*i,4)}, v15, s[64:67], {'0' if i < 4 else 's55'} offen offset:{1024*(i%4)}")
        a("KB_nopf:")
    for h in range(2):
        for e in range(2):
            a(f"ds_read_b64 {vr(40+4*h+2*e,2)}, v4 offset:{8192*h+512*e}")
    def modread(vec, dst):
        for h in range(2):
            for half in range(2):
                a(f"ds_read_b128 {vr(dst+8*h+4*half,4)}, v5 offset:{MODL+4096*vec+2048*h+1024*half}")
    M0, M1, M2 = 16, 96, 112
    M2 = 128
    modread(1, M0); modread(0, M1); modread(2, M2)
    def stats(X):
        a(f"v_add_f32 v6, v{X}, v{X+1}")
        a(f"v_mul_f32 v7, v{X}, v{X}")
        a(f"v_fmac_f32 v7, v{X+1}, v{X+1}")
        for j in range(2, 16):
            a(f"v_add_f32 v6, v6, v{X+j}")
            a(f"v_fmac_f32 v7, v{X+j}, v{X+j}")
        wave_stats(a, 6, 7, 8, 9, 10)
    stats(Q)
    a("s_waitcnt lgkmcnt(0)")
    for j in range(8):
        a(f"v_lshlrev_b32 v{Y+2*j}, 16, v{40+j}")
        a(f"v_and_b32 v{Y+2*j+1}, 0xffff0000, v{40+j}")
    for j in range(16): a(f"v_fma_f32 v{T+j}, v{Q+j}, v10, v9")
    for j in range(16): a(f"v_fma_f32 v{T+j}, v{T+j}, v{M0+j}, v{M1+j}")
    modread(4, M0); modread(3, M1)
    for j in range(16): a(f"v_mul_f32 v{T+j}, v{T+j}, v{Y+j}")
    for j in range(16): a(f"v_fmac_f32 v{Q+j}, v{T+j}, v{M2+j}")
    for j in range(8): a(f"v_cvt_pk_bf16_f32 v{40+j}, v{Q+2*j}, v{Q+2*j+1}")
    a(f"buffer_store_dwordx4 v[40:43], v3, s[28:31], 0 offen {cfg.st_pol}")
    a(f"buffer_store_dwordx4 v[44:47], v3, s[28:31], 0 offen offset:1024 {cfg.st_pol}")
    stats(Q)
    a("s_waitcnt lgkmcnt(0)")
    for j in range(16): a(f"v_fma_f32 v{T+j}, v{Q+j}, v10, v9")
    for j in range(16): a(f"v_fma_f32 v{T+j}, v{T+j}, v{M0+j}, v{M1+j}")
    stats(T)
    for j in range(16): a(f"v_fma_f32 v{T+j}, v{T+j}, v10, v9")
    for j in range(8): a(f"v_cvt_pk_bf16_f32 v{Y+j}, v{T+2*j}, v{T+2*j+1}")
    stamp(a, 2)
    a(f"buffer_store_dwordx4 {vr(Y,4)}, v3, s[32:35], 0 offen {cfg.st_pol}")
    a(f"buffer_store_dwordx4 {vr(Y+4,4)}, v3, s[32:35], 0 offen offset:1024 {cfg.st_pol}")
    fin(a, 2, "KB_end")
    return dict(name="kb_kernel", body=a.text(), vgpr=176, sgpr=72, grid=256, block=512, lds=MODL+24576)

def gen_diag():
    ka, wa, fa, kb, wb, fb = [int(x) for x in cfg.diag.split(",")]
    off = lambda k, w, f: WS_ST + ((k*256)*16 + w)*64 + 4*f
    first = 6 if "pf" in cfg.extra else 0
    a = Asm()
    a(f"""
    s_cmp_lg_u32 s2, 0
    s_cbranch_scc1 DG_end
    s_load_dwordx2 s[4:5], s[0:1], {KWS}
    s_waitcnt lgkmcnt(0)
    s_add_u32 s6, s4, {off(first,0,0)}
    s_addc_u32 s7, s5, 0
    s_add_u32 s8, s4, {off(ka,wa,fa)}
    s_addc_u32 s9, s5, 0
    s_add_u32 s10, s4, {off(kb,wb,fb)}
    s_addc_u32 s11, s5, 0
    s_load_dword s12, s[6:7], 0
    s_load_dword s13, s[8:9], 0
    s_load_dword s14, s[10:11], 0
    s_waitcnt lgkmcnt(0)
    s_sub_u32 s14, s14, s13
    s_min_u32 s14, s14, 60000
    {"s_lshl_b32 s14, s14, 2" if (fa < 2 or cfg.rt) else "s_lshr_b32 s14, s14, 2"}
    s_add_u32 s14, s14, 20000
    s_mov_b32 s15, 0
    DG_loop:
    s_memrealtime s[16:17]
    s_waitcnt lgkmcnt(0)
    s_sub_u32 s16, s16, s12
    s_add_u32 s15, s15, 1
    s_cmp_gt_u32 s15, 200000
    s_cbranch_scc1 DG_end
    s_cmp_lt_u32 s16, s14
    s_cbranch_scc1 DG_loop
    DG_end:
    s_endpgm
    """)
    return dict(name="dg_kernel", body=a.text(), vgpr=8, sgpr=32, grid=8, block=64, lds=0)

def gen_nop():
    a = Asm()
    a("s_endpgm")
    return dict(name="nop_kernel", body=a.text(), vgpr=8, sgpr=16, grid=256, block=64, lds=0)

def gen_pf():
    a = Asm()
    head(a, 256, "PF_end")
    a(f"""
    s_load_dwordx2 s[4:5], s[0:1], {KW1}
    s_load_dwordx2 s[6:7], s[0:1], {KW2}
    s_mul_i32 s44, s2, 28672
    v_lshl_add_u32 v1, v0, 4, s44
    s_waitcnt lgkmcnt(0)
    """)
    srd(a, 16, 4, 7340032); srd(a, 20, 6, 7340032)
    a("s_mov_b32 s45, 0")
    for i in range(7):
        a(f"buffer_load_dwordx4 {vr(4+8*i,4)}, v1, s[16:19], s45 offen {cfg.pf_pol}")
        a(f"buffer_load_dwordx4 {vr(8+8*i,4)}, v1, s[20:23], s45 offen {cfg.pf_pol}")
        a("s_add_u32 s45, s45, 4096")
    a("s_waitcnt vmcnt(0)")
    fin(a, 6, "PF_end")
    return dict(name="pf_kernel", body=a.text(), vgpr=64, sgpr=64, grid=256, block=256, lds=0)

def emit(kernels):
    ref = open(f"cdna_kernels/{NAME}.s.ref").read().splitlines()
    hdr = [l for l in ref if l.startswith(";") and "@launch" not in l and "Override" not in l and "grid=ceil" not in l]
    out = list(hdr)
    for k in kernels:
        out.append(f"; @launch kernel={k['name']} grid=({k['grid']},1,1) block=({k['block']},1,1) lds={k['lds']}")
    out.append('.amdgcn_target "amdgcn-amd-amdhsa--gfx950"')
    out.append(".text")
    seen = []
    for k in kernels:
        if k['name'] in seen: continue
        seen.append(k['name'])
        out.append(kernel_text(k['name'], k['body']))
    out.append(".fill 128, 4, 0xbf800000")
    out.append('.section .rodata,"a"')
    seen = []
    for k in kernels:
        if k['name'] in seen: continue
        seen.append(k['name'])
        out.append(".p2align 6")
        out.append(kernel_desc(k['name'], k['vgpr'], 102 if cfg.stamps else k['sgpr'], k.get('accum')))
    return "\n".join(out) + "\n"

def main():
    import gemm
    for arg in sys.argv[2:]:
        k, v = arg.split("=")
        cur = getattr(cfg, k)
        setattr(cfg, k, (v == "1") if isinstance(cur, bool) else type(cur)(v.replace("+", " ")))
    import kg
    if cfg.fused: ks = [gen_k0(), gen_k1(), gen_kb(), kg.gen_kg()]
    else: ks = [gen_k0(), gen_k1(), gen_kb(), gemm.gen_kc(), gemm.gen_kd(), gemm.gen_ke()]
    if cfg.fuseA:
        import ka
        ks = [ka.gen_ka()] + ks[2:]
    if cfg.merged:
        import ka2, km
        ks = [ka2.gen_ka(), km.gen_km()]
    if "pf" in cfg.extra: ks = [gen_pf()] + ks
    if "nop" in cfg.extra: ks = ks + [gen_nop()]
    if "nop4" in cfg.extra: ks = ks + [gen_nop()]*3
    if cfg.diag: ks = ks + [gen_diag()]
    dst = sys.argv[1] if len(sys.argv) > 1 else f"cdna_kernels/{NAME}.s"
    open(dst, "w").write(emit(ks))
    print("wrote", dst)

if __name__ == "__main__":
    import gen
    gen.main()
```

```python
from asmlib import *
from gen import *

WS_FA = 0x3100000
SPIN_MAX = 1 << 16
STG = UR_BASE + 4*UR_STR
RED = STG + 8*5120

def gen_ka(kidx=0):
    a = Asm()
    head(a, 256, "KA_end")
    nt = cfg.nt_in
    a(f"""
    s_load_dwordx4 s[4:7], s[0:1], {KK}
    s_load_dwordx2 s[10:11], s[0:1], {KWS}
    s_load_dwordx4 s[12:15], s[0:1], {KSH}
    v_lshrrev_b32 v1, 6, v0
    v_and_b32 v2, 63, v0
    v_readfirstlane_b32 s3, v1
    s_and_b32 s44, s2, 7
    s_lshr_b32 s45, s2, 3
    s_lshl_b32 s43, s44, 5
    s_add_u32 s43, s43, s45          ; cq
    s_lshr_b32 s44, s43, 4           ; cg
    s_and_b32 s45, s45, 15
    s_lshl_b32 s46, s45, 7
    s_lshl_b32 s47, s3, 4
    s_add_u32 s46, s46, s47
    s_lshl_b32 s47, s46, 11
    s_lshl_b32 s48, s44, 7
    s_add_u32 s47, s47, s48
    v_lshrrev_b32 v7, 3, v2          ; l>>3
    v_and_b32 v15, 7, v2             ; l&7
    v_lshlrev_b32 v3, 11, v7
    v_lshl_add_u32 v3, v15, 4, v3
    v_add_u32 v3, s47, v3            ; vk
    v_add_u32 v4, 0xffffc000, v3
    s_mul_i32 s49, s3, 5120
    s_add_u32 s49, s49, {STG}
    s_mov_b32 s50, 16384
    s_mov_b32 s18, {MB4}
    s_mov_b32 s19, 0x20000
    s_mov_b32 s22, {MB4}
    s_mov_b32 s23, 0x20000
    s_mov_b32 s26, 8192
    s_mov_b32 s27, 0x20000
    s_lshl_b32 s51, s44, 9
    v_lshl_add_u32 v5, v2, 3, s51
    s_add_u32 m0, s49, 1024
    s_waitcnt lgkmcnt(0)
    s_mov_b32 s16, s4
    s_mov_b32 s17, s5
    s_mov_b32 s20, s6
    s_mov_b32 s21, s7
    buffer_load_dwordx4 v3, s[16:19], 0 offen {nt} lds
    s_add_u32 m0, s49, 3072
    s_mov_b32 s24, s12
    buffer_load_dwordx4 v3, s[20:23], 0 offen {nt} lds
    s_add_u32 m0, s49, 2048
    s_mov_b32 s25, s13
    buffer_load_dwordx4 v3, s[16:19], s50 offen {nt} lds
    s_add_u32 m0, s49, 4096
    buffer_load_dwordx2 v[8:9], v5, s[24:27], 0 offen
    buffer_load_dwordx4 v3, s[20:23], s50 offen {nt} lds
    s_mov_b32 m0, s49
    s_mov_b32 exec_lo, 0
    buffer_load_dwordx4 v4, s[16:19], 0 offen {nt} lds
    s_mov_b32 exec_lo, -1
    s_lshl_b32 s51, s44, 9
    s_add_u32 s52, s10, s51
    s_addc_u32 s53, s11, 0
    s_add_u32 s52, s52, {WS_FA}
    s_addc_u32 s53, s53, 0
    s_load_dword s42, s[52:53], 256
    s_load_dwordx2 s[4:5], s[0:1], {KSD}
    s_load_dwordx4 s[56:59], s[0:1], {KC_}
    s_load_dwordx2 s[6:7], s[0:1], {KQ}
    s_load_dwordx2 s[8:9], s[0:1], {KW1}
    """)
    HB, BS = 2048*3584*2, 8*112*1024
    srd(a, 28, 10, HB - 56*1024, WS_H + 56*1024)
    a(f"""
    s_lshr_b32 s55, s44, 1
    s_mul_i32 s55, s55, 112
    s_and_b32 s63, s44, 1
    s_mul_i32 s63, s63, 28
    s_add_u32 s55, s55, s63
    s_lshl_b32 s55, s55, 10
    s_mul_i32 s63, s45, {BS}
    s_add_u32 s55, s55, s63
    s_lshl_b32 s63, s3, 7
    s_add_u32 s55, s55, s63
    v_lshrrev_b32 v6, 4, v2          ; m>>2
    v_and_b32 v50, 1, v6
    v_mad_u32_u24 v6, v6, 7, v50
    v_bfe_u32 v50, v2, 2, 2
    v_add_lshl_u32 v6, v6, v50, 10
    v_and_b32 v50, 3, v2
    v_lshl_add_u32 v6, v50, 4, v6
    v_add_u32 v6, s55, v6
    v_lshrrev_b32 v51, 5, v2
    v_lshlrev_b32 v51, 3, v51
    v_and_b32 v50, 3, v7
    v_add_lshl_u32 v51, v51, v50, 10
    v_lshl_add_u32 v51, v15, 4, v51
    v_add_u32 v51, s55, v51
    s_mov_b32 s40, 14336
    s_getreg_b32 s41, hwreg(HW_REG_XCC_ID, 0, 4)
    s_barrier
    """)
    NT = 2 if (cfg.ul2 and "notouch" not in cfg.exp) else 0
    if NT:
        a("buffer_load_dwordx4 v[164:167], v51, s[28:31], 0 offen sc1")
        a("buffer_load_dwordx4 v[168:171], v51, s[28:31], s40 offen sc1")
    a(f"""
    s_cmp_ge_u32 s3, 4
    s_cbranch_scc1 KA_hpre
    """)
    srd(a, 32, 14, MB4)
    a(f"""
    s_lshl_b32 s54, s43, 2
    s_add_u32 s54, s54, s3           ; channel d
    s_lshl_b32 s55, s54, 12
    v_lshl_add_u32 v5, v2, 4, s55
    """)
    KR = 128
    a("s_waitcnt lgkmcnt(0)")
    a("s_add_u32 s42, s42, 0x9e3779b9")
    srd(a, 36, 4, 2048); srd(a, 24, 52, 512)
    a(f"""
    s_lshl_b32 s55, s54, 1
    v_mov_b32 v50, s55
    v_mov_b32 v108, 0
    v_mov_b32 v78, -1
    v_mov_b32 v72, 0
    s_mov_b32 s64, s52
    s_mov_b32 s65, s53
    s_mov_b32 s66, 512
    s_mov_b32 s67, 0x20000
    v_and_b32 v22, 15, v2
    v_lshlrev_b32 v22, 2, v22
    v_and_b32 v23, 16, v2
    v_lshl_add_u32 v127, v23, 3, v22
    s_waitcnt vmcnt({NT})
    """)
    for j in range(4):
        a(f"buffer_load_dwordx4 {vr(KR+6*j,4)}, v5, s[32:35], 0 offen offset:{1024*j} {nt}")
        a(f"buffer_load_dwordx2 {vr(KR+6*j+4,2)}, v5, s[32:35], 0 offen offset:{1024*j+16} {nt}")
    a(f"""
    buffer_load_ushort v126, v50, s[36:39], 0 offen
    buffer_load_dword v160, v127, s[24:27], 0 offen sc1
    s_branch KA_phaseA
    KA_hpre:
    s_waitcnt lgkmcnt(0)
    """)
    srd(a, 32, 56, 2048); srd(a, 36, 58, 1024*6144*2); srd(a, 64, 52, 512)
    a(f"""
    s_add_u32 s42, s42, 0x9e3779b9
    s_lshl_b32 s58, s45, 2
    v_mov_b32 v72, s58
    s_add_u32 s58, s42, s41
    v_mov_b32 v73, s58
    v_mov_b32 v74, s42
    v_and_b32 v75, 15, v2
    v_lshlrev_b32 v75, 2, v75
    """)
    a(f"""
    v_mov_b32 v127, 0
    s_sub_u32 s60, s3, 4             ; hw
    s_and_b32 s61, s2, 7
    s_mul_i32 s61, s61, 12
    s_lshr_b32 s62, s2, 4
    s_add_u32 s61, s61, s62
    s_bfe_u32 s62, s2, 0x10003       ; k half
    s_lshl_b32 s54, s62, 9
    s_lshl_b32 s55, s60, 7
    s_add_u32 s54, s54, s55
    v_lshl_add_u32 v60, v7, 4, s54
    v_lshlrev_b32 v61, 1, v60
    s_mov_b32 s55, 12288
    v_mul_lo_u32 v108, v60, s55
    s_lshl_b32 s55, s61, 7
    v_lshl_add_u32 v109, v15, 4, s55
    v_add_u32 v108, v108, v109
    s_mov_b32 s16, s10
    s_mov_b32 s17, s11
    s_mov_b32 s18, 0x4000000
    s_lshr_b32 s54, s61, 3
    s_lshl_b32 s54, s54, 11
    s_and_b32 s55, s61, 7
    s_lshl_b32 s55, s55, 7
    s_add_u32 s54, s54, s55
    s_add_u32 s54, s54, {WS_MOD}
    v_bfe_u32 v78, v2, 2, 1
    v_lshlrev_b32 v78, 10, v78
    v_lshl_add_u32 v78, v7, 4, v78
    v_and_b32 v79, 3, v2
    v_lshl_add_u32 v78, v79, 2, v78
    v_add_u32 v78, s54, v78
    v_mov_b32 v80, 0
    s_mul_i32 s54, s2, {FL2_BYTES//256}
    s_sub_u32 s55, s60, 1
    s_lshl_b32 s55, s55, 8
    s_add_u32 s54, s54, s55
    s_add_u32 s54, s54, {WS_FL2}
    v_lshl_add_u32 v79, v2, 2, s54
    s_lshl_b32 s55, s60, 6
    v_add_u32 v81, s55, v2
    v_cmp_gt_u32 vcc, {64 + FL2_BYTES//1024}, v81
    v_mov_b32 v81, 0x4000000
    s_cmp_lt_u32 s2, 192
    s_cselect_b32 s54, s62, 1
    v_cndmask_b32 v79, v81, v79, vcc
    s_cmp_lg_u32 s60, 0
    s_cbranch_scc1 KA_z1
    s_cmp_eq_u32 s54, 0
    s_cselect_b64 vcc, -1, 0
    v_cndmask_b32 v79, v81, v78, vcc
    KA_z1:
    buffer_store_dword v80, v79, s[16:19], 0 offen sc1
    buffer_load_dwordx4 v[64:67], v61, s[32:35], 0 offen
    buffer_load_dwordx4 v[68:71], v61, s[32:35], 0 offen offset:16
    s_waitcnt vmcnt({3+NT})
    KA_phaseA:
    """)
    stamp(a, 0)
    a("""
    v_lshrrev_b32 v5, 4, v2          ; g
    v_bfe_u32 v10, v2, 2, 2
    v_and_b32 v11, 3, v2
    v_lshlrev_b32 v10, 7, v10
    v_lshl_add_u32 v10, v5, 5, v10
    v_lshl_add_u32 v10, v11, 3, v10
    v_add_u32 v5, s49, v10
    """)
    for p in range(5):
        a(f"ds_read_b64_tr_b16 {vr(16+2*p,2)}, v5 offset:{512+512*p}")
    for p in range(4):
        a(f"ds_read_b64_tr_b16 {vr(26+2*p,2)}, v5 offset:{3072+512*p}")
    a("""
    v_alignbit_b32 v10, v8, v8, 16   ; A=(w1,w0)
    v_alignbit_b32 v11, v9, v9, 16   ; B=(w3,w2)
    v_and_b32 v12, 0xffff, v8        ; C=(w0,0)
    s_mov_b32 s55, 0xffff
    v_bfi_b32 v13, s55, v9, v8       ; D=(w2,w1)
    v_and_b32 v14, 0xffff0000, v9    ; E=(0,w3)
    s_waitcnt lgkmcnt(4)
    """)
    P = lambda q: 16 + q + 2
    ks = lambda t: 34 + t
    for q in range(8):
        a(f"v_dot2_f32_bf16 v{ks(2*q)}, v{P(q)}, v12, 0")
        a(f"v_dot2_f32_bf16 v{ks(2*q+1)}, v{P(q)}, v10, 0")
    for q in range(8):
        a(f"v_dot2_f32_bf16 v{ks(2*q)}, v{P(q-1)}, v13, v{ks(2*q)}")
        a(f"v_dot2_f32_bf16 v{ks(2*q+1)}, v{P(q-1)}, v11, v{ks(2*q+1)}")
    for q in range(8):
        a(f"v_dot2_f32_bf16 v{ks(2*q)}, v{P(q-2)}, v14, v{ks(2*q)}")
    a("s_waitcnt lgkmcnt(0)")
    for h in range(2):
        for q in range(4*h, 4*h+4):
            a(f"v_lshlrev_b32 v{110+2*q}, 16, v{26+q}")
            a(f"v_and_b32 v{111+2*q}, 0xffff0000, v{26+q}")
        for t in range(8*h, 8*h+8):
            a(f"v_mul_f32 v{ks(t)}, v{ks(t)}, v{110+t}")
        for j in range(4):
            a(f"v_cvt_pk_bf16_f32 v{52+4*h+j}, v{ks(8*h+7-2*j)}, v{ks(8*h+6-2*j)}")
        a(f"buffer_store_dwordx4 {vr(52+4*h,4)}, v6, s[28:31], 0 offen offset:{64*h} {'' if cfg.ul2 else 'sc1'}")
    stamp(a, 1)
    a("""
    s_cmp_ge_u32 s3, 4
    s_cbranch_scc1 KA_helper
    """)
    srd(a, 20, 10, HB, WS_H)
    a(f"""
    s_mul_i32 s49, s3, {CH_STR}      ; chbase
    s_lshr_b32 s47, s43, 5
    s_mul_i32 s47, s47, 112
    s_bfe_u32 s48, s43, 0x30002
    s_mul_i32 s60, s48, 7
    s_add_u32 s47, s47, s60
    s_and_b32 s48, s48, 1
    s_add_u32 s47, s47, s48
    s_and_b32 s48, s43, 3
    s_add_u32 s47, s47, s48
    s_lshl_b32 s47, s47, 10
    s_mul_i32 s48, s3, {4*BS}
    s_add_u32 s48, s48, s47
    v_lshl_add_u32 v4, v2, 4, s48    ; U / Y offset
    s_mov_b32 s60, {BS}
    s_mov_b32 s61, {2*BS}
    s_mov_b32 s62, {3*BS}
    v_and_b32 v7, 3, v2
    v_mul_u32_u24 v7, {UR_STR}, v7
    v_lshrrev_b32 v8, 2, v2
    v_lshlrev_b32 v8, 4, v8
    v_sub_u32 v7, v7, v8
    s_lshl_b32 s50, s3, 10
    s_sub_u32 s50, {UR_BASE + 255*16 - 3*256}, s50
    v_add_u32 v7, s50, v7
    v_mov_b32 v12, 0
    v_mov_b32 v13, 0
    v_mov_b32 v14, 0
    v_mov_b32 v15, 0
    s_mul_i32 s51, s3, {UR_STR}
    s_add_u32 s51, s51, {UR_BASE}    ; URc
    v_lshl_add_u32 v8, v2, 4, s51
    s_mov_b64 exec, 0x3fffffff
    ds_write_b128 v8, v[12:15] offset:4096
    s_mov_b64 exec, -1
    v_lshl_add_u32 v9, v2, 4, s49
    v_and_b32 v10, 15, v2            ; i' / a'
    v_lshrrev_b32 v11, 4, v2         ; g
    v_add_u32 v16, 1, v10
    v_and_b32 v17, 3, v16
    v_sub_u32 v16, v16, v17
    v_lshlrev_b32 v16, 1, v16
    v_mul_u32_u24 v17, {CP_STR}, v17
    v_add_u32 v16, v16, v17
    v_lshl_add_u32 v16, v11, 4, v16
    v_add_u32 v16, s49, v16          ; vA
    v_lshlrev_b32 v17, 5, v10
    v_sub_u32 v17, 480, v17
    v_lshl_add_u32 v17, v11, 4, v17
    v_add_u32 v17, s51, v17          ; vB
    v_lshlrev_b32 v18, 3, v11
    v_add_u32 v18, v18, v10
    v_sub_u32 v18, 15, v18
    v_mov_b32 v22, v127
    s_lshl_b32 s50, s45, 2
    v_mov_b32 v23, s50
    v_mov_b32 v28, s42
    s_add_u32 s50, s42, s41
    v_mov_b32 v30, s50
    v_cmp_le_u32 vcc, 128, v22
    s_nop 1
    v_cndmask_b32 v30, v30, v28, vcc
    """)
    for j in range(4):
        E = KR+6*j
        a(f"s_waitcnt vmcnt({4+2*(3-j)})")
        o1, o2, o3 = 64+12*j, 68+12*j, 72+12*j
        a(f"ds_write_b128 v9, {vr(E,4)} offset:{32+1024*j}")
        for i in range(4): a(f"v_alignbit_b32 v{o1+i}, v{E+i+1}, v{E+i}, 16")
        a(f"ds_write_b128 v9, {vr(o1,4)} offset:{CP_STR+32+1024*j}")
        for i in range(4): a(f"v_mov_b32 v{o2+i}, v{E+i+1}")
        a(f"ds_write_b128 v9, {vr(o2,4)} offset:{2*CP_STR+32+1024*j}")
        for i in range(4): a(f"v_alignbit_b32 v{o3+i}, v{E+i+2}, v{E+i+1}, 16")
        a(f"ds_write_b128 v9, {vr(o3,4)} offset:{3*CP_STR+32+1024*j}")
    a(f"""
    s_waitcnt vmcnt(0)
    s_barrier
    """)
    stamp(a, 2)
    a(f"""
    v_readfirstlane_b32 s54, v{KR}
    v_readfirstlane_b32 s55, v{KR+1}
    s_nop 1
    s_lshl_b32 s56, s54, 16
    s_lshr_b32 s57, s54, 16
    s_lshl_b32 s58, s55, 16
    s_or_b32 s57, s57, s58
    v_writelane_b32 v15, s56, 3
    v_writelane_b32 v15, s54, 5
    v_writelane_b32 v14, s56, 7
    v_writelane_b32 v15, s57, 7
    v_lshrrev_b32 v19, 1, v2
    v_mul_u32_u24 v19, {CP_STR}, v19
    v_and_b32 v20, 1, v2
    v_lshl_add_u32 v19, v20, 4, v19
    v_add_u32 v19, s49, v19
    s_mov_b64 exec, 0xff
    ds_write_b128 v19, v[12:15]
    s_mov_b64 exec, -1
    v_lshlrev_b32 v21, 16, v126
    """)
    for j in range(4):
        a(f"v_cmp_eq_u32 vcc, {2*j}, v18")
        a("s_nop 1")
        a(f"v_cndmask_b32 v{24+j}, 0, v126, vcc")
        a(f"v_cmp_eq_u32 vcc, {2*j+1}, v18")
        a("s_nop 1")
        a(f"v_cndmask_b32 v{24+j}, v{24+j}, v21, vcc")
    ACC = 192
    FA = lambda s, w: 32 + 64*s + 4*w
    FB = lambda s, v: 64 + 64*s + 4*v
    def readsA(z0):
        s = z0 & 1
        R = []
        for i in range(8):
            R.append(f"ds_read_b64 {vr(FA(s,i),2)}, v16 offset:{512*i+64*z0}")
            R.append(f"ds_read_b64 {vr(FA(s,i)+2,2)}, v16 offset:{512*i+64*z0+8}")
        return R
    def readsB(z0):
        s = z0 & 1
        return [f"ds_read_b128 {vr(FB(s,i),4)}, v17 offset:{512*(7-i)+64*z0}" for i in range(8)]
    a("s_waitcnt lgkmcnt(0)")
    for r in readsA(0): a(r)
    a(f"""
    s_mov_b32 s59, 0
    s_cmp_eq_u32 s3, 0
    s_cselect_b32 s58, {cfg.relpoll if cfg.ul2 else -1}, -1
    KA_poll:
    s_cmp_lg_u32 s59, s58
    s_cbranch_scc1 KA_norel
    buffer_wbl2 sc1
    s_waitcnt vmcnt(0)
    s_mov_b64 exec, 1
    buffer_store_dword v28, v23, s[24:27], 0 offen offset:128 sc1
    s_mov_b64 exec, -1
    KA_norel:
    buffer_load_dword v29, v22, s[24:27], 0 offen sc1
    s_add_u32 s59, s59, 1
    s_waitcnt vmcnt(0)
    v_cmp_eq_u32 vcc, v30, v29
    s_cmp_gt_u32 s59, {SPIN_MAX}
    s_cbranch_scc1 KA_poll_x
    s_lshr_b32 s57, vcc_lo, 16
    s_or_b32 s57, s57, vcc_lo
    s_and_b32 s57, s57, 0xffff
    s_cmp_lg_u32 s57, 0xffff
    s_cbranch_scc1 KA_poll
    KA_poll_x:
    s_and_b32 s57, vcc_lo, 0xffff
    s_cmp_eq_u32 s57, 0xffff
    s_cbranch_scc1 KA_near
    s_cmp_gt_u32 s59, s58
    s_cbranch_scc1 KA_acq
    s_cmp_lg_u32 s3, 0
    s_cbranch_scc1 KA_acq
    buffer_wbl2 sc1
    s_waitcnt vmcnt(0)
    s_mov_b64 exec, 1
    buffer_store_dword v28, v23, s[24:27], 0 offen offset:128 sc1
    s_mov_b64 exec, -1
    KA_acq:
    buffer_inv sc1
    s_waitcnt vmcnt(0)
    KA_near:
    """)
    for j in range(4):
        a(f"buffer_load_dwordx4 {vr(176+4*j,4)}, v4, s[28:31], {['0','s60','s61','s62'][j]} offen sc1")
    a("s_barrier")
    stamp(a, 3)
    for j in range(4):
        a(f"s_waitcnt vmcnt({3-j})" if j < 3 else "s_waitcnt vmcnt(0)")
        a(f"ds_write_b128 v7, {vr(176+4*j,4)} offset:{256*(3-j)}")
    a("s_waitcnt lgkmcnt(0)")
    a("s_barrier")
    stamp(a, 4)
    for r in readsB(0): a(r)
    a(f"""
    s_lshr_b32 s58, s2, 3
    s_lshl_b32 s58, s58, 2
    s_add_u32 s58, s58, s3
    s_cmp_eq_u32 s58, 124
    s_cselect_b32 s58, {cfg.ka_wb}, 99
    """)
    for n in range(8):
        a(f"s_waitcnt lgkmcnt({7-n})")
        a(f"v_mfma_f32_16x16x32_bf16 {vr(ACC+4*n,4)}, v[24:27], {vr(FB(0,n),4)}, 0")
    a("s_mov_b32 s59, 0")
    a("KA_loop:")
    if cfg.ka_wb:
        a("""
        s_cmp_lg_u32 s59, s58
        s_cbranch_scc1 KA_nowb
        buffer_wbl2 sc1
        KA_nowb:
        """)
    for z0 in range(2):
        s = z0 & 1
        ra, rb = readsA(z0+1), readsB(z0+1)
        R = ra[:2] + rb + ra[2:]
        if z0 == 1: R += ["v_add_u32 v16, 128, v16", "v_add_u32 v17, 128, v17", "s_add_u32 s59, s59, 1", "s_cmp_lt_u32 s59, 4"]
        M = [(w, v) for w in range(8) for v in range(8-w)]
        for i, (w, v) in enumerate(M):
            if i == 35: a("s_waitcnt lgkmcnt(0)")
            if i == 30: a("s_barrier")
            if "nomfA" in cfg.exp: a("s_nop 3")
            else: a(f"v_mfma_f32_16x16x32_bf16 {vr(ACC+4*(w+v),4)}, {vr(FA(s,w),4)}, {vr(FB(s,v),4)}, {vr(ACC+4*(w+v),4)}")
            if i < len(R): a(R[i])
    a("s_cbranch_scc1 KA_loop")
    stamp(a, 5)
    a(f"""
    v_lshlrev_b32 v20, 5, v10
    v_lshl_add_u32 v20, v11, 3, v20
    v_add_u32 v20, s49, v20
    s_lshl_b32 s50, s3, 10
    v_lshl_add_u32 v21, v2, 2, s50
    s_mov_b32 s56, 0x05040100
    s_mov_b32 s57, 0x07060302
    """)
    for n in range(8):
        a(f"v_cvt_pk_bf16_f32 v{32+2*n}, v{ACC+4*n}, v{ACC+4*n+1}")
        a(f"v_cvt_pk_bf16_f32 v{33+2*n}, v{ACC+4*n+2}, v{ACC+4*n+3}")
        a(f"ds_write_b64 v20, {vr(32+2*n,2)} offset:{512*n}")
    a("s_waitcnt lgkmcnt(0)")
    a("s_barrier")
    for j in range(4):
        a(f"ds_read2st64_b32 {vr(64+4*j,2)}, v21 offset0:{j} offset1:{65+j}")
        a(f"ds_read2st64_b32 {vr(66+4*j,2)}, v21 offset0:{130+j} offset1:{195+j}")
    for j in range(4):
        a(f"s_waitcnt lgkmcnt({6-2*j})")
        b = 64+4*j; o = 96+4*j
        a(f"v_perm_b32 v{o}, v{b+1}, v{b}, s56")
        a(f"v_perm_b32 v{o+1}, v{b+3}, v{b+2}, s56")
        a(f"v_perm_b32 v{o+2}, v{b+1}, v{b}, s57")
        a(f"v_perm_b32 v{o+3}, v{b+3}, v{b+2}, s57")
        a(f"buffer_store_dwordx4 {vr(o,4)}, v4, s[20:23], {['0','s60','s61','s62'][j]} offen {cfg.st_pol}")
    a(f"""
    s_or_b32 s59, s3, s45
    s_cmp_lg_u32 s59, 0
    s_cbranch_scc1 KA_noep
    s_mov_b64 exec, 1
    buffer_store_dword v28, v23, s[24:27], 0 offen offset:256 sc1
    KA_noep:
    """)
    fin(a, kidx)
    NB1 = cfg.nb1
    WR = 128
    a("KA_helper:")
    a(f"""
    s_mov_b32 s63, 12288
    s_cmp_lt_u32 s2, 192
    s_cbranch_scc1 KA_isgemv
    s_mov_b32 s36, s6
    s_mov_b32 s37, s7
    s_mov_b32 s38, {MB4 if cfg.qwarm else 0}
    """)
    if cfg.map == "8x1":
        a("""
        s_and_b32 s54, s2, 7
        s_lshl_b32 s54, s54, 3
        s_lshr_b32 s55, s2, 3
        s_sub_u32 s55, s55, 24
        s_add_u32 s54, s54, s55
        """)
    else:
        a("""
    s_bfe_u32 s54, s2, 0x20001
    s_lshl_b32 s54, s54, 3
    s_lshr_b32 s55, s2, 3
    s_sub_u32 s55, s55, 24
    s_add_u32 s54, s54, s55
    s_lshl_b32 s54, s54, 1
    s_and_b32 s55, s2, 1
    s_add_u32 s54, s54, s55
        """)
    a(f"""
    s_lshl_b32 s54, s54, 16
    s_lshl_b32 s55, s60, 14
    s_add_u32 s54, s54, s55
    v_lshl_add_u32 v108, v2, 4, s54
    s_mov_b32 s63, 1024
    KA_isgemv:
    s_mov_b32 s55, 0
    """)
    def wload(i):
        a(f"buffer_load_dwordx4 {vr(WR+4*i,4)}, v108, s[36:39], s55 offen {nt}")
        a("s_add_u32 s55, s55, s63")
    for i in range(NB1): wload(i)
    a(f"s_waitcnt vmcnt({2+NB1})")
    for q in range(8):
        a(f"v_lshlrev_b32 v{16+2*q}, 16, v{64+q}")
        a(f"v_and_b32 v{17+2*q}, 0xffff0000, v{64+q}")
    for i in range(16): a(f"v_mul_f32 v{32+i}, {f32(-LOG2E)}, v{16+i}")
    for i in range(16): a(f"v_exp_f32 v{32+i}, v{32+i}")
    a(f"""
    s_waitcnt vmcnt({NB1})
    s_barrier
    s_cmp_lg_u32 s60, 0
    s_cbranch_scc1 KA_nopost
    s_mov_b64 exec, 1
    buffer_store_dword v73, v72, s[64:67], 0 offen
    """)
    if not cfg.ul2: a("buffer_store_dword v74, v72, s[64:67], 0 offen offset:128 sc1")
    a("s_mov_b64 exec, -1")
    a("KA_nopost:")
    for i in range(16): a(f"v_add_f32 v{32+i}, 1.0, v{32+i}")
    for i in range(16): a(f"v_rcp_f32 v{32+i}, v{32+i}")
    for i in range(16): a(f"v_mul_f32 v{16+i}, v{16+i}, v{32+i}")
    for q in range(8): a(f"v_cvt_pk_bf16_f32 v{96+q}, v{16+2*q}, v{17+2*q}")
    for q in range(8):
        a(f"v_lshlrev_b32 v{16+2*q}, 16, v{96+q}")
        a(f"v_and_b32 v{17+2*q}, 0xffff0000, v{96+q}")
    a("s_barrier")
    stamp(a, 2)
    NB2 = min(16, NB1 + cfg.nb2)
    for i in range(NB1, NB2): wload(i)
    a("s_barrier")
    npf = 0
    if cfg.ka_code:
        a("""
        s_getpc_b64 s[68:69]
        KA_pcref:
        s_lshr_b32 s54, s2, 3
        s_lshl_b32 s54, s54, 2
        s_add_u32 s54, s54, s60
        s_lshl_b32 s54, s54, 6
        s_add_u32 s54, s54, km_kernel-KA_pcref
        s_load_dword s70, s[68:69], s54
        """)
    srd(a, 24, 8, 1024*3584*2)
    a(f"""
    s_mul_i32 s54, s2, 28672
    s_mul_i32 s56, s60, 7168
    s_add_u32 s54, s54, s56
    v_lshl_add_u32 v109, v2, 4, s54
    s_mov_b32 s54, 4096
    """)
    def pfload(i):
        a(f"buffer_load_dwordx4 {vr(192+4*i,4)}, v109, s[24:27], {'0' if i < 4 else 's54'} offen offset:{1024*(i%4)}")
    sg = [int(x) for x in cfg.sg.split(",")]; sp = [int(x) for x in cfg.sp.split(",")]
    assert NB2 + sum(sg) == 16 and len(sg) == 9 and len(sp) == 9
    order = list(range(NB2))
    when = {i: -9 for i in range(NB2)}
    done = 0; ng = NB2; npf = 0
    def fma(i):
        a(f"s_waitcnt vmcnt({len(order) - 1 - order.index(i)})")
        t = 48 + 8*(i & 1)
        for j in range(4):
            a(f"v_lshlrev_b32 v{t+2*j}, 16, v{WR+4*i+j}")
            a(f"v_and_b32 v{t+2*j+1}, 0xffff0000, v{WR+4*i+j}")
        for j in range(8):
            if i == 0: a(f"v_mul_f32 v{32+j}, v{t+j}, v16")
            else: a(f"v_fmac_f32 v{32+j}, v{t+j}, v{16+i}")
    for st_ in range(9):
        if st_: a("s_barrier")
        for _ in range(sg[st_]):
            wload(ng); order.append(ng); when[ng] = st_; ng += 1
        for _ in range(sp[st_]):
            pfload(npf); order.append(-1); npf += 1
        n = 0
        while done < ng and (st_ == 8 or (n < 3 and when[done] <= st_ - cfg.lag and st_ >= 1)):
            fma(done); done += 1; n += 1
    stamp(a, 3)
    a("s_nop 3")
    for j in range(4): a(f"v_permlane32_swap_b32 v{32+j}, v{36+j}")
    a("s_nop 1")
    for j in range(4): a(f"v_add_f32 v{32+j}, v{32+j}, v{36+j}")
    a("s_nop 1")
    for j in range(2): a(f"v_permlane16_swap_b32 v{32+j}, v{34+j}")
    a("s_nop 1")
    for j in range(2): a(f"v_add_f32 v{32+j}, v{32+j}, v{34+j}")
    a("s_nop 1")
    for j in range(2): a(f"v_add_f32_dpp v{32+j}, v{32+j}, v{32+j} row_ror:8 row_mask:0xf bank_mask:0xf")
    a(f"""
    v_lshrrev_b32 v40, 4, v2
    v_lshlrev_b32 v40, 3, v40
    v_lshl_add_u32 v40, v15, 5, v40
    s_lshl_b32 s56, s60, 8
    s_add_u32 s56, s56, {RED}
    v_add_u32 v40, s56, v40
    ds_write_b64 v40, v[32:33]
    v_lshlrev_b32 v41, 2, v2
    v_add_u32 v42, {RED}, v41
    s_lshr_b32 s56, s61, 4
    s_lshl_b32 s56, 1, s56
    s_and_b32 s56, s56, 0x12
    s_cselect_b32 s56, 1.0, 0
    s_cmp_eq_u32 s62, 0
    s_cselect_b32 s56, s56, 0
    s_waitcnt lgkmcnt(0)
    s_barrier
    s_cmp_lg_u32 s60, 0
    s_cbranch_scc1 KA_end
    s_cmp_lt_u32 s2, 192
    s_cbranch_scc0 KA_end
    """)
    for w in range(4): a(f"ds_read_b32 v{32+w}, v42 offset:{256*w}")
    a(f"""
    s_waitcnt lgkmcnt(0)
    v_add_f32 v32, v32, v33
    v_add_f32 v34, v34, v35
    v_add_f32 v32, v32, v34
    v_add_f32 v32, s56, v32
    buffer_atomic_add_f32 v32, v78, s[16:19], 0 offen
    """)
    fin(a, kidx, "KA_end")
    return dict(name="ka_kernel", body=a.text(), vgpr=224, sgpr=72, grid=256, block=512, lds=RED+1024)
```

```python
from asmlib import *
from gen import *
from gemm import interleave

FL_R  = WS_FL2
FL_HN = FL_R + 32768
FL_HF = FL_HN + 4096
FL_HA = FL_HF + 4096
FL_X  = FL_HA + 4096
WSZ = 0x4000000
SPIN_MAX = 1 << 16

def wave_stats2(a, s, t, mean_rs, rstd, inv):
    a(f"v_add_f32 v{s}, v{s}, v{s+1}")
    a(f"v_add_f32 v{s+2}, v{s+2}, v{s+3}")
    steps = ["quad_perm:[1,0,3,2] row_mask:0xf", "quad_perm:[2,3,0,1] row_mask:0xf", "row_half_mirror row_mask:0xf",
             "row_mirror row_mask:0xf", "row_bcast:15 row_mask:0xa", "row_bcast:31 row_mask:0xc"]
    a("s_nop 0")
    for st in steps:
        a(f"v_add_f32_dpp v{s}, v{s}, v{s} {st} bank_mask:0xf")
        a(f"v_add_f32_dpp v{s+2}, v{s+2}, v{s+2} {st} bank_mask:0xf")
        a("s_nop 0")
    a(f"""
    v_readlane_b32 s60, v{s}, 63
    v_readlane_b32 s61, v{s+2}, 63
    s_nop 0
    v_mul_f32 v{t}, s60, v{inv}
    v_mul_f32 v{rstd}, s61, v{inv}
    v_fma_f32 v{rstd}, -v{t}, v{t}, v{rstd}
    v_max_f32 v{rstd}, 0, v{rstd}
    v_add_f32 v{rstd}, {f32(1e-5)}, v{rstd}
    v_rsq_f32 v{rstd}, v{rstd}
    s_nop 0
    v_mul_f32_e64 v{mean_rs}, -v{t}, v{rstd}
    """)

def gen_km(kidx=3):
    a = Asm()
    SLOT, NS, NST = 45056, 3, 16
    BF, BH = 16384, 16384 + 24576
    S2, NS2, NST2, BB = 32768, 5, 28, 16384
    YL, MODL = 2*SLOT, 3*SLOT
    WS = "s[20:23]"
    head(a, 256, "KM_end")
    a(f"""
    s_load_dwordx2 s[16:17], s[0:1], {KQ}
    s_load_dwordx2 s[20:21], s[0:1], {KWS}
    s_load_dwordx4 s[4:7], s[0:1], {KW1}
    s_load_dwordx4 s[12:15], s[0:1], {KW2}
    s_load_dwordx2 s[8:9], s[0:1], {KOUT}
    v_lshrrev_b32 v1, 6, v0
    v_and_b32 v2, 63, v0
    v_readfirstlane_b32 s3, v1
    s_and_b32 s44, s2, 7
    s_lshr_b32 s45, s2, 3
    """)
    if cfg.map == "4x2":
        a("""
        s_lshr_b32 s46, s44, 1
        s_lshl_b32 s46, s46, 2
        s_lshr_b32 s47, s45, 3
        s_add_u32 s46, s46, s47          ; mt
        s_and_b32 s44, s44, 1            ; fh
        s_and_b32 s45, s45, 7            ; nt
        s_lshl_b32 s47, s44, 3
        s_add_u32 s47, s47, s45          ; nc
        """)
    elif cfg.map == "8x1":
        a("""
        s_lshl_b32 s46, s44, 1
        s_lshr_b32 s47, s45, 4
        s_add_u32 s46, s46, s47          ; mt
        s_and_b32 s47, s45, 15           ; nc
        s_lshr_b32 s44, s47, 3           ; fh
        s_and_b32 s45, s47, 7            ; nt
        """)
    else:
        a("""
        s_lshr_b32 s46, s44, 2
        s_lshl_b32 s46, s46, 3
        s_lshr_b32 s47, s45, 2
        s_add_u32 s46, s46, s47          ; mt
        s_and_b32 s47, s44, 3
        s_lshl_b32 s47, s47, 2
        s_and_b32 s45, s45, 3
        s_add_u32 s47, s47, s45          ; nc
        s_lshr_b32 s44, s47, 3           ; fh
        s_and_b32 s45, s47, 7            ; nt
        """)
    a(f"""
    s_lshr_b32 s52, s45, 2
    s_lshl_b32 s52, s52, 3
    s_lshl_b32 s53, s44, 2
    s_add_u32 s52, s52, s53
    s_and_b32 s53, s45, 3
    s_add_u32 s52, s52, s53
    s_lshl_b32 s53, s46, 4
    s_add_u32 s53, s52, s53
    s_lshl_b32 s53, s53, 3
    s_add_u32 s53, s53, s3           ; row
    s_lshl_b32 s53, s53, 11
    v_lshl_add_u32 v3, v2, 4, s53
    v_lshrrev_b32 v4, 2, v2
    v_and_b32 v5, 7, v4
    v_lshlrev_b32 v5, 1, v5
    v_lshrrev_b32 v4, 3, v4
    v_add_u32 v5, v5, v4             ; G (0..15)
    v_lshrrev_b32 v6, 3, v5
    v_and_b32 v7, 3, v2
    v_xor_b32 v6, v6, v7
    v_lshrrev_b32 v4, 2, v5
    v_and_b32 v7, 1, v4
    v_mad_u32_u24 v4, v4, 7, v7
    v_and_b32 v5, 3, v5
    v_add_lshl_u32 v5, v5, v4, 10
    s_lshl_b32 s54, s46, 3
    s_add_u32 s54, s54, s3
    s_mul_i32 s54, s54, {112*1024}
    s_lshl_b32 s55, s52, 6
    s_add_u32 s54, s54, s55
    s_add_u32 s54, s54, {WS_H}
    v_add_u32 v5, s54, v5
    v_lshl_add_u32 v8, v6, 4, v5
    v_xor_b32 v6, 2, v6
    v_lshl_add_u32 v9, v6, 4, v5
    v_lshlrev_b32 v10, 4, v0
    s_mov_b32 s49, 28672
    s_mov_b32 s18, {MB4}
    s_mov_b32 s19, 0x20000
    s_mov_b32 s22, {WSZ}
    s_mov_b32 s23, 0x20000
    s_lshl_b32 s55, s3, 11
    s_add_u32 s55, s55, {YL}
    s_lshl_b32 s56, s3, 10
    s_add_u32 s56, s56, {MODL}
    s_mov_b32 s57, {WS_MOD}
    s_mov_b32 s58, {WS_MOD+8192}
    s_mov_b32 s59, {WS_MOD+16384}
    s_mov_b32 m0, s55
    s_waitcnt lgkmcnt(0)
    buffer_load_dwordx4 v[40:43], v3, s[16:19], 0 offen
    buffer_load_dwordx4 v[44:47], v3, s[16:19], 0 offen offset:1024
    buffer_load_dwordx4 v8, {WS}, 0 offen lds
    s_add_u32 m0, s55, 1024
    s_mov_b32 s24, s4
    buffer_load_dwordx4 v9, {WS}, s49 offen lds
    s_mov_b32 m0, s56
    s_mov_b32 s25, s5
    buffer_load_dwordx4 v10, {WS}, s57 offen lds
    s_add_u32 m0, s56, 8192
    s_mov_b32 s26, {1024*3584*2}
    buffer_load_dwordx4 v10, {WS}, s58 offen lds
    s_add_u32 m0, s56, 16384
    s_mov_b32 s27, 0x20000
    s_cmp_ge_u32 s3, 4
    s_cbranch_scc1 KM_m3
    buffer_load_dwordx4 v10, {WS}, s59 offen lds
    KM_m3:
    s_and_b32 s48, s47, 1            ; parity
    s_mul_i32 s49, s47, 448
    s_lshl_b32 s50, s48, 6
    s_add_u32 s50, s50, s49
    s_cmp_eq_u32 s48, 0
    s_cselect_b32 s51, 384, 0
    s_add_u32 s51, s51, s49
    s_mul_i32 s55, s2, 28672
    v_add_u32 v11, s55, v10
    s_mov_b32 s55, 8192
    s_mov_b32 s56, 16384
    s_mov_b32 s57, 20480
    s_barrier
    """)
    NPF = 4 if cfg.km_pf == 1 else 0
    if cfg.km_pf == 1:
        for i, so in enumerate(["0", "s55", "s56", "s57"]):
            a(f"buffer_load_dwordx4 {vr(144+4*i,4)}, v11, s[24:27], {so} offen")
    Q, Y, T, M0, M1, M2, INV = 48, 64, 80, 16, 96, 128, 126
    a(f"""
    v_mov_b32 v{INV}, {f32(1.0/1024)}
    v_lshrrev_b32 v4, 3, v2
    v_lshlrev_b32 v4, 10, v4
    v_and_b32 v5, 7, v2
    v_lshl_add_u32 v4, v5, 6, v4
    v_bfe_u32 v5, v2, 2, 2
    s_lshr_b32 s56, s3, 1
    v_xor_b32 v5, s56, v5
    v_lshl_add_u32 v4, v5, 4, v4
    s_and_b32 s56, s3, 1
    s_lshl_b32 s56, s56, 3
    s_add_u32 s56, s56, {YL}
    v_add_u32 v4, s56, v4
    v_lshlrev_b32 v5, 4, v2
    v_add_u32 v5, {MODL}, v5
    s_mov_b32 s58, {WS_Y2}
    s_mov_b32 s59, {WS_X1}
    s_waitcnt vmcnt({4+NPF})
    """)
    def unpack(dst, src):
        for j in range(8):
            a(f"v_lshlrev_b32 v{dst+2*j}, 16, v{src+j}")
            a(f"v_and_b32 v{dst+2*j+1}, 0xffff0000, v{src+j}")
    def stats(X):
        a(f"v_pk_add_f32 v[6:7], {vr(X,2)}, {vr(X+2,2)}")
        a(f"v_pk_mul_f32 v[8:9], {vr(X,2)}, {vr(X,2)}")
        a(f"v_pk_fma_f32 v[8:9], {vr(X+2,2)}, {vr(X+2,2)}, v[8:9]")
        for j in range(4, 16, 2):
            a(f"v_pk_add_f32 v[6:7], v[6:7], {vr(X+j,2)}")
            a(f"v_pk_fma_f32 v[8:9], {vr(X+j,2)}, {vr(X+j,2)}, v[8:9]")
        wave_stats2(a, 6, 10, 13, 12, INV)
    def norm(D, X):
        for j in range(0, 16, 2): a(f"v_pk_fma_f32 {vr(D+j,2)}, {vr(X+j,2)}, v[12:13], v[12:13] op_sel:[0,0,1] op_sel_hi:[1,0,1]")
    def modread(vec, dst):
        for h in range(2):
            for half in range(2):
                a(f"ds_read_b128 {vr(dst+8*h+4*half,4)}, v5 offset:{4096*vec+2048*h+1024*half}")
    unpack(Q, 40)
    stats(Q)
    norm(T, Q)
    a(f"s_waitcnt vmcnt({NPF})")
    a("s_barrier")
    stamp(a, 0)
    modread(1, M0); modread(0, M1)
    for h in range(2):
        for e in range(2):
            a(f"ds_read_b64 {vr(40+4*h+2*e,2)}, v4 offset:{8192*h+512*e}")
    a("s_waitcnt lgkmcnt(4)")
    modread(2, M2)
    for j in range(0, 16, 2): a(f"v_pk_fma_f32 {vr(T+j,2)}, {vr(T+j,2)}, {vr(M0+j,2)}, {vr(M1+j,2)}")
    a("s_waitcnt lgkmcnt(4)")
    modread(4, M0); modread(3, M1)
    unpack(Y, 40)
    for j in range(0, 16, 2): a(f"v_pk_mul_f32 {vr(T+j,2)}, {vr(T+j,2)}, {vr(Y+j,2)}")
    a("s_waitcnt lgkmcnt(8)")
    for j in range(0, 16, 2): a(f"v_pk_fma_f32 {vr(Q+j,2)}, {vr(T+j,2)}, {vr(M2+j,2)}, {vr(Q+j,2)}")
    stats(Q)
    norm(T, Q)
    a("s_waitcnt lgkmcnt(0)")
    for j in range(0, 16, 2): a(f"v_pk_fma_f32 {vr(T+j,2)}, {vr(T+j,2)}, {vr(M0+j,2)}, {vr(M1+j,2)}")
    stats(T)
    norm(T, T)
    for h in range(2):
        for j in range(4*h, 4*h+4): a(f"v_cvt_pk_bf16_f32 v{Y+j}, v{T+2*j}, v{T+2*j+1}")
        a(f"buffer_store_dwordx4 {vr(Y+4*h,4)}, v3, {WS}, s58 offen offset:{1024*h} sc1")
    stamp(a, 1)
    for j in range(8): a(f"v_cvt_pk_bf16_f32 v{40+j}, v{Q+2*j}, v{Q+2*j+1}")
    a(f"v_add_u32 v39, {WS_X1}, v3")
    a("""
    s_cmp_ge_u32 s3, 4
    s_cbranch_scc0 KM_compute
    """)
    W1S, W2S = "s[24:27]", "s[28:31]"
    a(f"""
    s_sub_u32 s3, s3, 4
    v_lshrrev_b32 v3, 3, v2
    v_and_b32 v4, 7, v2              ; position
    v_bfe_u32 v5, v2, 4, 1
    v_lshlrev_b32 v5, 1, v5
    v_xor_b32 v5, v5, v4
    s_lshl_b32 s53, s3, 4
    v_add_u32 v6, s53, v3
    v_mul_u32_u24 v6, 7168, v6
    v_add_u32 v6, s50, v6
    v_lshl_add_u32 v12, v5, 4, v6    ; vB0
    v_xor_b32 v5, 4, v5
    v_lshl_add_u32 v13, v5, 4, v6
    v_add_u32 v13, {8*7168}, v13     ; vB1
    v_lshrrev_b32 v6, 2, v2
    v_add_u32 v6, s53, v6
    v_mul_u32_u24 v6, 7168, v6
    v_add_u32 v6, s51, v6
    v_lshrrev_b32 v5, 5, v2
    v_lshlrev_b32 v5, 1, v5
    v_and_b32 v7, 3, v2
    v_xor_b32 v5, v5, v7
    v_lshl_add_u32 v14, v5, 4, v6    ; vBH
    """)
    if "halflin" in cfg.exp:
        a("s_lshl_b32 s52, s47, 12\ns_lshl_b32 s64, s3, 10\ns_add_u32 s52, s52, s64\ns_add_u32 s52, s52, 229376\nv_lshl_add_u32 v14, v2, 4, s52")
    a(f"""
    s_lshl_b32 s54, s3, 12
    s_lshl_b32 s55, s3, 11
    s_add_u32 s55, s55, {BF}
    s_lshl_b32 s56, s3, 10
    s_add_u32 s56, s56, {BH}
    s_mov_b32 s57, 0
    s_mov_b32 s58, 0                 ; A soffset
    s_mov_b32 s59, 0                 ; B soffset
    """)
    PREP = ["s_add_u32 s60, s55, s57", "s_add_u32 s62, s59, 128", "s_add_u32 s63, s59, 256", "s_mov_b32 m0, s60"]
    def prep():
        for x in PREP: a(x)
    def fireB():
        fill = iter(["s_add_u32 s64, s54, s57", "s_add_u32 s52, s58, 32768", "s_nop 0", "s_nop 0", "s_nop 0", "s_nop 0"])
        for lc in range(3):
            for i2 in range(2):
                if lc or i2:
                    a(f"s_add_u32 m0, s60, {8192*lc+1024*i2}"); a(next(fill))
                a(f"buffer_load_dwordx4 v{12+i2}, {W1S}, {['s59','s62','s63'][lc]} offen lds")
        a(f"""
        s_add_u32 m0, s56, s57
        s_add_u32 s57, s57, {SLOT}
        buffer_load_dwordx4 v14, {W1S}, s59 offen lds
        s_cmp_eq_u32 s57, {NS*SLOT}
        s_cselect_b32 s57, 0, s57
        s_add_u32 s59, s59, {64*7168}
        """)
    def fireA():
        for i in range(4):
            a(f"s_add_u32 m0, s64, {1024*i}"); a("s_nop 0")
            a(f"buffer_load_dwordx4 v{10+(i&1)}, {WS}, {'s58' if i < 2 else 's52'} offen sc1 lds")
        a("s_add_u32 s58, s58, 128")
    NB0, NB1 = cfg.km_b0, cfg.km_b1
    X1ST = [f"buffer_store_dwordx4 {vr(40+4*h,4)}, v39, {WS}, 0 offen offset:{1024*h} sc1" for h in range(2)]
    for i in range(NB0):
        prep(); a("s_nop 0"); fireB()
    a(f"s_waitcnt vmcnt({7*NB0})")
    if cfg.stR: stamp(a, 3)
    a("s_barrier")
    if cfg.stR: stamp(a, 4)
    if cfg.x1at == 0:
        for x in X1ST: a(x)
    if cfg.pf_w2 == 4:
        srd(a, 28, 12, 3584*1024*2)
        a(f"""
        s_mul_i32 s52, s2, 28672
        s_mul_i32 s64, s3, 7168
        s_add_u32 s52, s52, s64
        v_lshl_add_u32 v15, v2, 4, s52
        s_mov_b32 s52, 4096
        """)
        for i in range(7): a(f"buffer_load_dwordx4 {vr(96+4*i,4)}, v15, {W2S}, {'0' if i < 4 else 's52'} offen offset:{1024*(i%4)}")
    if cfg.km_pf == 2:
        a(f"""
        s_mul_i32 s52, s2, 28672
        s_mul_i32 s64, s3, 7168
        s_add_u32 s52, s52, s64
        v_lshl_add_u32 v15, v2, 4, s52
        s_mov_b32 s52, 4096
        """)
        for i in range(7): a(f"buffer_load_dwordx4 {vr(144+4*i,4)}, v15, {W1S}, {'0' if i < 4 else 's52'} offen offset:{1024*(i%4)}")
    for i in range(NB0, NB1):
        prep(); a("s_nop 0"); fireB()
    a(f"""
    v_lshrrev_b32 v5, 4, v2
    v_xor_b32 v5, v5, v4
    s_lshl_b32 s52, s46, 7
    s_lshl_b32 s53, s3, 5
    s_add_u32 s52, s52, s53
    v_add_u32 v6, s52, v3
    v_lshlrev_b32 v6, 11, v6
    v_add_u32 v6, {WS_Y2}, v6
    v_lshl_add_u32 v10, v5, 4, v6    ; vA0
    v_xor_b32 v5, 4, v5
    v_lshl_add_u32 v11, v5, 4, v6
    v_add_u32 v11, 16384, v11
    s_lshl_b32 s52, s46, 11
    s_add_u32 s52, s52, {FL_R}
    v_and_b32 v5, 15, v2
    v_lshl_add_u32 v24, v5, 7, s52
    s_mov_b32 s72, 0
    """)
    if cfg.stR: stamp(a, 5)
    a(f"""
    KM_rpoll:
    buffer_load_dword v27, v24, {WS}, 0 offen sc1
    s_add_u32 s72, s72, 1
    s_cmp_gt_u32 s72, {SPIN_MAX}
    s_cbranch_scc1 KM_rpoll_x
    s_waitcnt vmcnt(0)
    v_cmp_ne_u32 vcc, 1, v27
    s_cbranch_vccnz KM_rpoll
    KM_rpoll_x:
    """)
    stamp(a, 2)
    q = []
    def A_(st_):
        a(f"s_add_u32 s64, s54, {st_*SLOT}")
        a("s_add_u32 s52, s58, 32768")
        fireA(); q.append((st_, 4))
    def B_(st_):
        prep(); a("s_nop 0"); fireB(); q.append((st_, 7))
    def younger(st_):
        last = max(i for i, (x, n) in enumerate(q) if x <= st_)
        return sum(n for x, n in q[last+1:])
    A_(0)
    if NB1 < 2: B_(1)
    A_(1)
    srd(a, 28, 12, 3584*1024*2)
    a(f"s_waitcnt vmcnt({younger(0)})")
    a("s_barrier")
    if NB1 < 3: B_(2)
    A_(2)
    if cfg.x1at == 1:
        for x in X1ST: a(x)
        q.append((9, 2))
    a(f"""
    s_mul_i32 s52, s2, 28672
    s_mul_i32 s64, s3, 7168
    s_add_u32 s52, s52, s64
    v_lshl_add_u32 v15, v2, 4, s52
    s_lshr_b32 s74, s2, 3
    s_and_b32 s74, s74, 3
    s_add_u32 s74, s74, {cfg.pfat}
    s_mov_b32 s73, 0
    """)
    prep()
    a(f"s_waitcnt vmcnt({younger(1)})")
    a("s_barrier")
    fireB(); fireA()
    a("s_mov_b32 s61, 1")
    a("KM_lloop:")
    prep()
    if cfg.pf_w2 == 1:
        a(f"""
        s_cmp_eq_u32 s73, 0
        s_cbranch_scc1 KM_w11
        s_sub_u32 s73, s73, 1
        s_waitcnt vmcnt(15)
        s_branch KM_w15
        KM_w11:
        s_waitcnt vmcnt(11)
        KM_w15:
        """)
    else:
        a("s_waitcnt vmcnt(11)")
    a("s_barrier")
    fireB(); fireA()
    if cfg.pf_w2 == 1:
        a(f"""
        s_sub_u32 s52, s61, s74
        s_and_b32 s52, s52, {~4 & 0xffffffff}
        s_cbranch_scc1 KM_nopf
        s_mov_b32 s73, 2
        """)
        for i in range(4):
            a(f"buffer_load_dwordx4 {vr(32+4*i,4)}, v15, {W2S}, 0 offen offset:{1024*i}")
        a("v_add_u32 v15, 3072, v15")
        a("KM_nopf:")
    if cfg.pf_code:
        a(f"""
        s_cmp_lg_u32 s61, 10
        s_cbranch_scc1 KM_nocp
        s_getpc_b64 s[70:71]
        KM_pcref:
        s_lshr_b32 s52, s2, 3
        s_lshl_b32 s52, s52, 2
        s_add_u32 s52, s52, s3
        s_lshl_b32 s52, s52, 6
        s_add_u32 s70, s70, s52
        s_addc_u32 s71, s71, 0
        s_load_dword s72, s[70:71], 0
        s_mov_b32 s52, KM_gelu-KM_pcref
        s_load_dword s72, s[70:71], s52
        KM_nocp:
        """)
    a(f"""
    s_add_u32 s61, s61, 1
    s_cmp_lt_u32 s61, {NST-NS}
    s_cbranch_scc1 KM_lloop
    s_waitcnt vmcnt(11)
    s_barrier
    """)
    NTL = 0
    if cfg.pf_w2 == 2:
        a("s_mov_b32 s52, 4096")
        for i in range(7): a(f"buffer_load_dwordx4 {vr(96+4*i,4)}, v15, {W2S}, {'0' if i < 4 else 's52'} offen offset:{1024*(i%4)}")
        NTL = 7
    a(f"s_waitcnt vmcnt({NTL})")
    a("s_barrier")
    def sentinel():
        if cfg.xmode == "sent":
            a(f"""
            s_lshl_b32 s52, s46, 3
            s_add_u32 s52, s52, s45
            s_lshl_b32 s52, s52, 1
            s_add_u32 s52, s52, s44
            s_lshl_b32 s52, s52, 2
            s_add_u32 s52, s52, s3
            s_lshl_b32 s52, s52, 12
            s_add_u32 s52, s52, {WS_EX}
            v_lshl_add_u32 v5, v2, 4, s52
            v_mov_b32 v48, -1
            v_mov_b32 v49, -1
            v_mov_b32 v50, -1
            v_mov_b32 v51, -1
            """)
            for i in range(4): a(f"buffer_store_dwordx4 v[48:51], v5, {WS}, 0 offen offset:{1024*i} sc1")
    if cfg.sentat == 0: sentinel()
    a(f"""
    s_lshl_b32 s52, s46, 3
    s_and_b32 s53, s3, 1
    s_lshl_b32 s64, s53, 2
    s_add_u32 s52, s52, s64
    s_mul_i32 s52, s52, 112
    s_mul_i32 s64, s44, 56
    s_add_u32 s52, s52, s64
    s_lshl_b32 s52, s52, 10
    s_add_u32 s52, s52, {WS_H}
    v_lshl_add_u32 v16, v2, 4, s52
    v_add_u32 v17, {112*1024}, v16
    v_add_u32 v18, {2*112*1024}, v16
    v_add_u32 v19, {3*112*1024}, v16
    v_lshrrev_b32 v5, 4, v2
    v_lshlrev_b32 v5, 1, v5
    v_xor_b32 v5, v5, v4
    s_mul_i32 s52, s44, 1792
    s_lshl_b32 s64, s53, 4
    s_add_u32 s52, s52, s64
    v_add_u32 v6, s52, v3
    v_lshlrev_b32 v6, 11, v6
    s_lshl_b32 s64, s45, 8
    v_add_u32 v6, s64, v6
    v_lshl_add_u32 v20, v5, 4, v6
    v_add_u32 v21, 16384, v20
    v_add_u32 v22, 128, v20
    v_add_u32 v23, 16384+128, v20
    s_lshr_b32 s65, s3, 1
    s_lshl_b32 s66, s53, 13
    s_lshl_b32 s64, s65, 10
    s_add_u32 s66, s66, s64
    s_lshl_b32 s67, s3, 11
    s_add_u32 s67, s67, {BB}
    s_lshl_b32 s52, s46, 1
    s_add_u32 s52, s52, s44
    s_lshl_b32 s52, s52, 7
    s_add_u32 s52, s52, {FL_HN}
    v_and_b32 v5, 31, v2
    v_lshl_add_u32 v24, v5, 2, s52
    v_and_b32 v5, 32, v2
    v_lshl_add_u32 v25, v5, 7, v24
    v_lshl_add_u32 v31, v5, 8, v24
    s_getreg_b32 s75, hwreg(HW_REG_XCC_ID, 0, 4)
    s_add_u32 s75, s75, 1
    s_lshl_b32 s75, s75, 4
    v_mov_b32 v29, s75
    v_cmp_gt_u32 vcc, 32, v2
    s_lshl_b32 s64, s45, 4
    s_add_u32 s52, s52, s64
    v_cndmask_b32 v30, 0, v29, vcc
    s_add_u32 s52, s52, 8192
    v_lshl_add_u32 v33, v2, 2, s52
    s_mov_b32 s75, 0
    buffer_load_dword v27, v24, {WS}, 0 offen sc1
    s_mul_i32 s52, s45, 7
    v_add_u32 v26, s52, v2
    """)
    skipown = """v_cmp_le_u32 vcc, s45, v6
    s_nop 1
    v_addc_co_u32 v6, vcc, 0, v6, vcc"""
    a(f"""
    v_subrev_u32 v5, 7, v2
    v_lshrrev_b32 v6, 2, v5
    {skipown}
    v_and_b32 v7, 3, v5
    v_and_b32 v8, 1, v6
    v_add_u32 v7, v7, v8
    v_mad_u32_u24 v28, v6, 7, v7
    v_cmp_le_u32 vcc, 7, v2
    s_nop 1
    v_cndmask_b32 v26, v26, v28, vcc
    """)
    a(f"""
    v_subrev_u32 v5, 35, v2
    v_mul_u32_u24 v6, 43, v5
    v_lshrrev_b32 v6, 7, v6          ; /3
    v_mul_u32_u24 v7, 3, v6
    v_sub_u32 v7, v5, v7
    {skipown}
    v_and_b32 v8, 1, v6
    v_add3_u32 v9, v7, 4, v8
    v_mul_u32_u24 v8, 6, v8
    v_sub_u32 v8, 6, v8
    v_cmp_eq_u32 vcc, 2, v7
    s_nop 1
    v_cndmask_b32 v9, v9, v8, vcc
    v_mad_u32_u24 v28, v6, 7, v9
    v_cmp_le_u32 vcc, 35, v2
    s_nop 1
    v_cndmask_b32 v26, v26, v28, vcc
    s_waitcnt lgkmcnt(0)
    s_barrier
    """)
    def blk():
        a("v_readlane_b32 s69, v26, s68")
        a("s_add_u32 s68, s68, 2")
    def issueA():
        a("s_lshl_b32 s70, s69, 10")
        a("s_add_u32 s60, s66, s57")
        for i in range(4):
            a(f"s_add_u32 m0, s60, {2048*i}")
            a("s_nop 0")
            a(f"buffer_load_dwordx4 v{16+i}, {WS}, s70 offen sc1 lds")
    def issueB():
        a("s_lshl_b32 s71, s69, 16")
        a("s_add_u32 s60, s67, s57")
        for lc in range(2):
            for i2 in range(2):
                a(f"s_add_u32 m0, s60, {8192*lc+1024*i2}")
                a("s_nop 0")
                a(f"buffer_load_dwordx4 v{20+2*lc+i2}, {W2S}, s71 offen lds")
    def nextslot():
        a(f"s_add_u32 s57, s57, {S2}")
        a(f"s_cmp_eq_u32 s57, {NS2*S2}")
        a("s_cselect_b32 s57, 0, s57")
    def prep2():
        blk()
        a("s_add_u32 s60, s67, s57")
        a("s_add_u32 s62, s66, s57")
        a("s_lshl_b32 s71, s69, 16")
        a("s_lshl_b32 s70, s69, 10")
        a("s_mov_b32 m0, s60")
        nextslot()
    def fire2():
        for lc in range(2):
            for i2 in range(2):
                if lc or i2:
                    a(f"s_add_u32 m0, s60, {8192*lc+1024*i2}")
                    a("s_nop 0")
                a(f"buffer_load_dwordx4 v{20+2*lc+i2}, {W2S}, s71 offen lds")
        for i in range(4):
            a(f"s_add_u32 m0, s62, {2048*i}")
            a("s_nop 0")
            a(f"buffer_load_dwordx4 v{16+i}, {WS}, s70 offen sc1 lds")
    def check(val, lbl):
        a(f"""
        s_mov_b32 s72, 0
        {lbl}:
        v_sub_u32 v28, v27, v29
        v_subrev_u32 v28, {val}, v28
        v_cmp_le_u32 vcc, 8, v28
        s_and_b32 s53, vcc_lo, vcc_hi
        s_cbranch_scc0 {lbl}_x
        s_add_u32 s72, s72, 1
        s_cmp_gt_u32 s72, {SPIN_MAX}
        s_cbranch_scc1 {lbl}_x
        """)
        if val == 1:
            a(f"""
            s_cmp_lg_u32 s72, {cfg.relpoll}
            s_cbranch_scc1 {lbl}_n
            s_mov_b32 s75, 1
            v_mov_b32 v24, v31
            v_mov_b32 v29, v30
            s_cmp_lg_u32 s3, 0
            s_cbranch_scc1 {lbl}_n
            buffer_wbl2 sc1
            v_mov_b32 v28, 1
            s_waitcnt vmcnt(0)
            s_mov_b64 exec, 15
            buffer_store_dword v28, v33, {WS}, 0 offen sc1
            s_mov_b64 exec, -1
            {lbl}_n:
            """)
        a(f"""
        buffer_load_dword v27, v24, {WS}, 0 offen sc1
        s_waitcnt vmcnt(0)
        s_branch {lbl}
        {lbl}_x:
        s_cmp_eq_u32 s75, 0
        s_cbranch_scc1 {lbl}_y
        v_mov_b32 v24, v25
        buffer_inv sc1
        s_waitcnt vmcnt(0)
        {lbl}_y:
        """)
    look = f"buffer_load_dword v27, v24, {WS}, 0 offen sc1"
    if cfg.pf_w2 == 3:
        a("s_mov_b32 s52, 4096")
        for i in range(7):
            if i == 5: a("s_waitcnt vmcnt(2)")
            a(f"buffer_load_dwordx4 {vr(96+4*i,4)}, v15, {W2S}, {'0' if i < 4 else 's52'} offen offset:{1024*(i%4)}")
    a("""
    s_mov_b32 s68, s65
    s_mov_b32 s57, 0
    s_mov_b32 s61, 0
    KM_l2pro:
    """)
    a(f"s_waitcnt vmcnt({cfg.bthr})")
    blk(); issueB(); nextslot()
    a(f"""
    s_add_u32 s61, s61, 1
    s_cmp_lt_u32 s61, {NS2}
    s_cbranch_scc1 KM_l2pro
    """)
    if cfg.sentat == 1: sentinel()
    a(f"s_waitcnt vmcnt({8 + (4 if cfg.sentat == 1 and cfg.xmode == 'sent' else 0)})")
    a("s_barrier")
    if not cfg.stR: stamp(a, 3)
    a(look)
    a("s_barrier")
    blk(); issueB()
    a("s_waitcnt vmcnt(4)")
    check(1, "KM_c1")
    if not cfg.stR: stamp(a, 4)
    a(f"""
    s_add_u32 s68, s65, 6
    s_mov_b32 s57, {3*S2}
    """)
    blk()
    a("s_cmp_eq_u32 s65, 0")
    a("s_cbranch_scc1 KM_skipA3")
    issueA()
    a("KM_skipA3:")
    nextslot(); blk(); issueA(); nextslot(); blk(); issueA(); nextslot()
    prep2()
    a("s_waitcnt vmcnt(8)")
    if not cfg.stR: stamp(a, 5)
    a("s_barrier")
    fire2()
    prep2()
    a("s_waitcnt vmcnt(12)")
    a("s_barrier")
    fire2()
    a(f"""
    s_mov_b32 s61, 4
    KM_l2loop:
    s_cmp_lg_u32 s61, 10
    s_cbranch_scc1 KM_nolook
    {look}
    KM_nolook:
    """)
    prep2()
    a("""
    s_cmp_lg_u32 s61, 12
    s_waitcnt vmcnt(16)
    s_cbranch_scc1 KM_c2_y
    """)
    check(2, "KM_c2")
    a("s_barrier")
    fire2()
    a(f"""
    s_add_u32 s61, s61, 1
    s_cmp_lt_u32 s61, {NST2-4}
    s_cbranch_scc1 KM_l2loop
    """)
    for left in (2, 1, 0):
        a(f"s_waitcnt vmcnt({8*left})")
        a("s_barrier")
    fin(a, kidx)
    import km_c
    km_c.compute(a, kidx)
    return dict(name="km_kernel", body=a.text(), vgpr=256, sgpr=76, grid=256, block=512, lds=NS2*S2)
```

```python
from asmlib import *
from gen import *
from gemm import interleave
from km import FL_R, FL_HN, FL_HF, FL_X, WSZ, SPIN_MAX

def compute(a, kidx):
    SLOT, NS, NST = 45056, 3, 16
    BF, BH = 16384, 16384 + 24576
    S2, NS2, NST2, BB = 32768, 5, 28, 16384
    WS = "s[20:23]"
    ACC = 32
    acc = lambda u, mi: ACC + (u*4+mi)*4 if u < 6 else ACC + 96 + ((u-6)*2+mi)*4
    FW = lambda s, u: 144 + 48*s + 4*u
    FX = lambda s, mi: 144 + 48*s + 32 + 4*mi
    AW = lambda j: 16 + j
    AX = lambda kk, h: 20 + 2*kk + h
    HG, HGH = 240, 241
    HL = lambda h: 242 + h
    HLH = 244
    AW2 = lambda u: 245 + u
    AX2 = lambda h: 249 + h
    VROW, VC2, VEXS, VEXR, VGB = 251, 252, 253, 254, 255
    VFL, VV = 14, 15
    a("KM_compute:")
    a(f"""
    s_lshr_b32 s52, s3, 1            ; wm
    s_and_b32 s53, s3, 1             ; wn
    v_lshrrev_b32 v3, 4, v2          ; g
    v_and_b32 v4, 15, v2             ; i
    s_lshl_b32 s54, s53, 6
    s_add_u32 s54, s54, s50
    v_lshl_add_u32 v5, v3, 3, s54
    v_lshl_add_u32 v6, v3, 3, s51
    """)
    srd(a, 28, 6, 3584*2)
    for u in range(6): a(f"buffer_load_dwordx2 {vr(160+2*u,2)}, v5, s[28:31], 0 offen offset:{128*(u>>1)+32*(u&1)}")
    for u in range(2): a(f"buffer_load_dwordx2 {vr(172+2*u,2)}, v6, s[28:31], 0 offen offset:{32*u}")
    a(f"""
    v_cmp_eq_u32 vcc, 0, v2
    v_mov_b32 v13, {WSZ}
    s_lshl_b32 s54, s46, 4
    s_add_u32 s54, s54, s47
    s_lshl_b32 s54, s54, 7
    s_add_u32 s54, s54, {FL_R}
    v_mov_b32 v12, s54
    v_cndmask_b32 v{VFL}, v13, v12, vcc
    v_mov_b32 v{VV}, 1
    s_waitcnt vmcnt(8)
    s_barrier
    s_cmp_lg_u32 s3, 0
    s_cbranch_scc1 KM_norp
    buffer_store_dword v{VV}, v{VFL}, {WS}, 0 offen sc1
    KM_norp:
    """)
    if cfg.x1at == 0:
        for h in range(2): a(f"buffer_store_dwordx4 {vr(40+4*h,4)}, v39, {WS}, 0 offen offset:{1024*h} sc1")
    srd(a, 16, 14, 2048); srd(a, 36, 8, MB4)
    a(f"""
    s_lshl_b32 s54, s46, 1
    s_add_u32 s54, s54, s44
    s_lshl_b32 s54, s54, 3
    s_add_u32 s54, s54, s45
    s_lshl_b32 s54, s54, 2
    s_add_u32 s54, s54, s3
    s_lshl_b32 s54, s54, 2
    s_add_u32 s54, s54, {FL_HN}
    v_mov_b32 v12, s54
    v_cndmask_b32 v{VFL}, v13, v12, vcc
    s_lshl_b32 s60, s52, 13          ; wm*8192
    s_lshl_b32 s61, s53, 12
    s_add_u32 s54, s60, s61
    s_xor_b32 s55, s54, 4096
    v_lshrrev_b32 v8, 1, v4
    v_xor_b32 v8, v8, v3
    v_lshlrev_b32 v8, 4, v8
    v_lshl_add_u32 v7, v4, 7, v8
    v_add_u32 v{AX(0,0)}, s54, v7
    v_add_u32 v{AX(0,1)}, s55, v7
    v_xor_b32 v7, 64, v7
    v_add_u32 v{AX(1,0)}, s54, v7
    v_add_u32 v{AX(1,1)}, s55, v7
    v_lshrrev_b32 v7, 2, v4
    v_lshl_add_u32 v7, v3, 3, v7     ; row
    v_and_b32 v8, 3, v4
    v_lshlrev_b32 v8, 3, v8          ; (i&3)*8
    v_lshl_add_u32 v9, v7, 7, v8
    v_add_u32 v9, {BF}, v9
    v_and_b32 v10, 1, v3
    v_lshrrev_b32 v11, 3, v4
    v_lshl_add_u32 v11, v10, 1, v11  ; phi
    s_lshl_b32 s56, s53, 1
    v_xor_b32 v12, s56, v11
    v_lshl_add_u32 v{AW(0)}, v12, 5, v9
    v_xor_b32 v{AW(1)}, 32, v{AW(0)}
    v_lshl_add_u32 v9, v7, 6, v8
    v_lshl_add_u32 v9, v10, 5, v9
    v_add_u32 v{AW(2)}, {BH}, v9
    v_xor_b32 v{AW(3)}, 32, v{AW(2)}
    s_lshl_b32 s56, s46, 3
    s_lshl_b32 s57, s52, 2
    s_add_u32 s56, s56, s57
    s_mul_i32 s56, s56, {112*1024}
    s_mul_i32 s57, s47, {7*1024}
    s_add_u32 s56, s56, s57
    s_add_u32 s56, s56, {WS_H}
    s_add_u32 s57, s53, s48
    s_lshl_b32 s58, s57, 10
    s_add_u32 s58, s58, s56
    v_lshl_add_u32 v{HG}, v2, 4, s58
    s_lshr_b32 s58, s57, 1
    s_lshl_b32 s58, s58, 15
    s_and_b32 s57, s57, 1
    s_lshl_b32 s57, s57, 10
    s_add_u32 s58, s58, s57
    s_add_u32 s57, s58, s54
    v_lshl_add_u32 v{HL(0)}, v2, 4, s57
    s_add_u32 s57, s58, s55
    v_lshl_add_u32 v{HL(1)}, v2, 4, s57
    s_cmp_eq_u32 s48, 0
    s_cselect_b32 s58, {6*1024}, 0
    s_cselect_b32 s59, {3*S2}, 0
    s_add_u32 s58, s58, s56
    v_lshl_add_u32 v{HGH}, v2, 4, s58
    s_add_u32 s59, s59, s54
    v_lshl_add_u32 v{HLH}, v2, 4, s59
    s_mul_i32 s70, s53, {2*112*1024}
    s_add_u32 s71, s70, {112*1024}
    s_sub_u32 s72, {2*112*1024}, s70
    s_add_u32 s73, s72, {112*1024}
    s_lshl_b32 s61, s44, 12
    s_add_u32 s62, s60, s61
    v_lshl_add_u32 v{AX2(0)}, v2, 4, s62
    s_xor_b32 s62, s62, 4096
    v_lshl_add_u32 v{AX2(1)}, v2, 4, s62
    v_lshrrev_b32 v7, 2, v4
    v_lshl_add_u32 v7, v3, 2, v7     ; row = 4g + (i>>2)
    v_lshl_add_u32 v9, v7, 7, v8
    s_lshl_b32 s54, s53, 13
    s_add_u32 s54, s54, {BB}
    v_add_u32 v9, s54, v9
    v_bfe_u32 v11, v7, 1, 2
    v_lshl_add_u32 v{AW2(0)}, v11, 5, v9
    v_xor_b32 v{AW2(1)}, 32, v{AW2(0)}
    v_xor_b32 v{AW2(2)}, 64, v{AW2(0)}
    v_xor_b32 v{AW2(3)}, 0x60, v{AW2(0)}
    v_lshrrev_b32 v8, 1, v3
    v_lshlrev_b32 v7, 4, v10
    v_lshl_add_u32 v7, v8, 3, v7
    s_lshl_b32 s54, s45, 7
    s_lshl_b32 s55, s53, 6
    s_add_u32 s54, s54, s55
    v_add_u32 v7, s54, v7
    v_lshlrev_b32 v{VC2}, 1, v7
    s_lshr_b32 s54, s45, 2
    s_lshl_b32 s54, s54, 10
    s_add_u32 s54, s54, {WS_MOD + 5*4096}
    v_add_u32 v{VGB}, s54, v{VC2}    ; (d>>9)*2048 + ((d>>3)&63)*16 = 2d + (d>>9)*1024
    s_lshl_b32 s54, s46, 7
    s_lshl_b32 s55, s52, 6
    s_add_u32 s54, s54, s55
    s_lshl_b32 s55, s44, 5
    s_add_u32 s54, s54, s55
    v_add_u32 v9, s54, v4
    v_lshl_add_u32 v{VROW}, v9, 11, v{VC2}
    s_lshl_b32 s54, s46, 3
    s_add_u32 s54, s54, s45
    s_lshl_b32 s54, s54, 1
    s_add_u32 s54, s54, s44
    s_lshl_b32 s54, s54, 2
    s_add_u32 s68, s54, s3
    s_xor_b32 s69, s68, 4
    s_lshl_b32 s54, s68, 12
    s_add_u32 s54, s54, {WS_EX}
    v_lshl_add_u32 v{VEXR}, v2, 4, s54
    s_lshl_b32 s54, s69, 12
    s_add_u32 s54, s54, {WS_EX}
    v_lshl_add_u32 v{VEXS}, v2, 4, s54
    s_lshl_b32 s68, s68, 6
    s_lshl_b32 s69, s69, 6
    s_add_u32 s68, s68, {FL_X}
    s_add_u32 s69, s69, {FL_X}
    v_mov_b32 v6, s68
    v_mov_b32 v7, s69
    """)
    if cfg.xmode == "sent":
        a(f"""
        v_readfirstlane_b32 s54, v{VFL}
        s_xor_b32 s54, s54, 128
        s_add_u32 s54, s54, 4096
        v_mov_b32 v6, s54
        """)
    a(f"""
    v_mov_b32 v4, {f32(-2*0.7978845608028654*LOG2E*0.044715)}
    v_mov_b32 v5, {f32(-2*0.7978845608028654*LOG2E)}
    s_getreg_b32 s64, hwreg(HW_REG_XCC_ID, 0, 4)
    s_add_u32 s64, s64, 1
    s_lshl_b32 s64, s64, 4
    s_add_u32 s64, s64, 1
    s_add_u32 s65, s64, 1
    s_mov_b32 s74, 32768
    s_mov_b32 s75, 4096
    s_mov_b32 s66, {WS_X1}
    s_mov_b32 s67, {WS_X1+32768}
    s_waitcnt vmcnt({1 + (2 if cfg.x1at == 0 else 0)})
    s_cmp_eq_u32 s3, 0
    s_cbranch_scc1 KM_bw
    s_waitcnt vmcnt({2 if cfg.x1at == 0 else 0})
    KM_bw:
    """)
    if cfg.x1at == 1:
        a("""
        v_mov_b32 v13, v39
        v_mov_b64 v[24:25], v[40:41]
        v_mov_b64 v[26:27], v[42:43]
        v_mov_b64 v[28:29], v[44:45]
        v_mov_b64 v[30:31], v[46:47]
        """)
    for u in range(8):
        a(f"v_lshlrev_b32 v{acc(u,0)}, 16, v{160+2*u}")
        a(f"v_and_b32 v{acc(u,0)+1}, 0xffff0000, v{160+2*u}")
        a(f"v_lshlrev_b32 v{acc(u,0)+2}, 16, v{161+2*u}")
        a(f"v_and_b32 v{acc(u,0)+3}, 0xffff0000, v{161+2*u}")
        for mi in range(1, 4 if u < 6 else 2):
            a(f"v_mov_b64 {vr(acc(u,mi),2)}, {vr(acc(u,0),2)}")
            a(f"v_mov_b64 {vr(acc(u,mi)+2,2)}, {vr(acc(u,0)+2,2)}")
    def reads(kk):
        xs = [f"ds_read_b128 {vr(FX(kk,mi),4)}, v{AX(kk,mi>>1)} offset:{2048*(mi&1)}" for mi in range(4)]
        ws = []
        for u in range(8):
            for rd in range(2):
                if u < 6: ws.append(f"ds_read_b64_tr_b16 {vr(FW(kk,u)+2*rd,2)}, v{AW(u&1)} offset:{8192*(u>>1)+(32*kk+4*rd)*128}")
                else: ws.append(f"ds_read_b64_tr_b16 {vr(FW(kk,u)+2*rd,2)}, v{AW(u-4)} offset:{(32*kk+4*rd)*64}")
        return ws[:2] + xs + ws[2:]
    def mfmas(kk):
        return [f"v_mfma_f32_16x16x32_bf16 {vr(acc(u,mi),4)}, {vr(FW(kk,u),4)}, {vr(FX(kk,mi),4)}, {vr(acc(u,mi),4)}"
                for u in range(8) for mi in range(4 if u < 6 else 2)]
    a(f"""
    s_mov_b32 s57, 1
    s_mov_b32 s59, {SLOT}
    s_mov_b32 s58, {SLOT}
    s_mov_b32 s61, 0
    s_barrier
    """)
    stamp(a, 2)
    for r in reads(0): a(r)
    if cfg.x1at == 1:
        for h in range(2): a(f"buffer_store_dwordx4 {vr(24+4*h,4)}, v13, {WS}, 0 offen offset:{1024*h} sc1")
    a("s_waitcnt lgkmcnt(0)")
    a("KM_cloop:")
    upd = [f"v_add_u32 v{r}, s58, v{r}" for r in range(16, 24)]
    M = mfmas(0)
    interleave(a, M[:20], reads(1))
    interleave(a, M[20:24], upd, per=2)
    interleave(a, M[24:27], [])
    a("s_waitcnt lgkmcnt(0)")
    a("s_barrier")
    a(M[27])
    M = mfmas(1)
    interleave(a, M[:20], reads(0))
    ctl = ["s_add_u32 s57, s57, 1", f"s_cmp_eq_u32 s57, {NS}", f"s_cselect_b32 s58, {(-(NS-1)*SLOT) & 0xffffffff}, s59",
           "s_cselect_b32 s57, 0, s57", "s_add_u32 s61, s61, 1", f"s_cmp_lt_u32 s61, {NST}"]
    interleave(a, M[20:26], ctl)
    a(M[26])
    a("s_waitcnt lgkmcnt(0)")
    a(M[27])
    a("s_cbranch_scc1 KM_cloop")
    stamp(a, 3)
    a("KM_gelu:")
    def post(val):
        if val == 1: return [f"v_mov_b32 v{VV}, s64", f"buffer_store_dword v{VV}, v{VFL}, {WS}, 0 offen"]
        return [f"v_mov_b32 v{VV}, s65", "v_mov_b32 v13, 2", f"buffer_store_dword v{VV}, v{VFL}, {WS}, 0 offen",
                f"buffer_store_dword v13, v{VFL}, {WS}, s75 offen sc1"]
    def gelu(x, n, t, out, mid1, mid2):
        for j in range(0, n, 2): a(f"v_pk_mul_f32 {vr(t+j,2)}, {vr(x[j],2)}, {vr(x[j],2)}")
        for j in range(0, n, 2): a(f"v_pk_fma_f32 {vr(t+j,2)}, {vr(t+j,2)}, v[4:5], v[4:5] op_sel:[0,0,1] op_sel_hi:[1,0,1]")
        for j in range(0, n, 2): a(f"v_pk_mul_f32 {vr(t+j,2)}, {vr(t+j,2)}, {vr(x[j],2)}")
        for j in range(n):
            a(f"v_exp_f32 v{t+j}, v{t+j}")
            if j == 1:
                for m in mid1: a(m)
        for j in range(0, n, 2): a(f"v_pk_add_f32 {vr(t+j,2)}, {vr(t+j,2)}, 1.0 op_sel_hi:[1,0]")
        for j in range(n):
            a(f"v_rcp_f32 v{t+j}, v{t+j}")
            if j == 1:
                for m in mid2: a(m)
        for j in range(0, n, 2): a(f"v_pk_mul_f32 {vr(t+j,2)}, {vr(t+j,2)}, {vr(x[j],2)}")
        for j in range(0, n, 2): a(f"v_cvt_pk_bf16_f32 v{out+j//2}, v{t+j}, v{t+j+1}")
    so = ["s70", "s71", "s72", "s73"]
    k = 0
    pend1, pend2 = [], []
    for b in range(4):
        for mi in range(4 if b < 3 else 2):
            x = [acc(2*b, mi)+r for r in range(4)] + [acc(2*b+1, mi)+r for r in range(4)]
            out = 168 + 4*(k % 6)
            gelu(x, 8, 160, out, pend1, pend2)
            if b < 3:
                pend1 = [f"buffer_store_dwordx4 {vr(out,4)}, v{HG}, {WS}, {so[mi]} offen offset:{2048*(b&1)} {'' if b < 2 else 'sc1'}"]
                pend2 = [f"ds_write_b128 v{HL(mi>>1)}, {vr(out,4)} offset:{S2*(b&1)+2048*(mi&1)}"]
                if b == 2 and mi == 0:
                    pend1 = [f"v_add_u32 v{HG}, 4096, v{HG}"] + pend1
                    pend2 = [f"v_add_u32 v{HL(0)}, {2*S2}, v{HL(0)}", f"v_add_u32 v{HL(1)}, {2*S2}, v{HL(1)}"] + pend2
            else:
                pend1 = [f"buffer_store_dwordx4 {vr(out,4)}, v{HGH}, {WS}, {so[mi]} offen sc1"]
                pend2 = [f"ds_write_b128 v{HLH}, {vr(out,4)} offset:{2048*mi}"]
            if k == cfg.post1: pend2 = pend2 + [f"s_waitcnt vmcnt({k-7})"] + post(1)
            k += 1
    for m in pend2 + pend1: a(m)
    acc2 = lambda u, mi: 32 + (mi*4+u)*4
    FW2 = lambda s, u: 96 + 32*s + 4*u
    FX2 = lambda s, mi: 96 + 32*s + 16 + 4*mi
    EB2, EG, EX1 = 192, 200, 216
    a(f"""
    s_mov_b32 s57, 1
    s_mov_b32 s59, {S2}
    s_mov_b32 s58, {S2}
    s_mov_b32 s61, 2
    s_waitcnt lgkmcnt(0)
    """)
    stamp(a, 4)
    a("s_barrier")
    def reads2(kk):
        xs = [f"ds_read_b128 {vr(FX2(kk,mi),4)}, v{AX2(mi>>1)} offset:{2048*(mi&1)+1024*kk}" for mi in range(4)]
        ws = []
        for u in range(4):
            for rd in range(2):
                ws.append(f"ds_read_b64_tr_b16 {vr(FW2(kk,u)+2*rd,2)}, v{AW2(u)} offset:{(32*kk+16*rd)*128}")
        return ws[:2] + xs + ws[2:]
    def mfmas2(kk, first=False):
        return [f"v_mfma_f32_16x16x32_bf16 {vr(acc2(u,mi),4)}, {vr(FW2(kk,u),4)}, {vr(FX2(kk,mi),4)}, {'0' if first else vr(acc2(u,mi),4)}"
                for u in range(4) for mi in range(4)]
    upd2 = [f"v_add_u32 v{r}, s58, v{r}" for r in range(245, 251)]
    ctl2 = ["s_add_u32 s57, s57, 1", f"s_cmp_eq_u32 s57, {NS2}", f"s_cselect_b32 s58, {(-(NS2-1)*S2) & 0xffffffff}, s59",
            "s_cselect_b32 s57, 0, s57"]
    def step(M, R, tail):
        a("s_waitcnt lgkmcnt(6)")
        interleave(a, M[:4], R[:4])
        a(f"s_waitcnt lgkmcnt({4 if R else 0})")
        interleave(a, M[4:12], R[4:])
        interleave(a, M[12:15], tail, per=2)
    def stage(bar, first=False, extra=[]):
        M = mfmas2(0, first)
        step(M, reads2(1), upd2)
        a(bar)
        a(M[15])
        M = mfmas2(1)
        step(M, reads2(0), ctl2 + extra)
        return M[15]
    for r in reads2(0): a(r)
    a(stage("s_waitcnt lgkmcnt(0)\ns_barrier", first=True))
    a(stage(""))
    a(f"s_mov_b32 s62, {cfg.post2}")
    a("KM_c2loop:")
    a(stage("s_barrier", extra=["s_add_u32 s61, s61, 1", f"s_cmp_lt_u32 s61, s62"]))
    a("s_cbranch_scc1 KM_c2loop")
    a(f"s_cmp_eq_u32 s61, {NST2-1}")
    a("s_cbranch_scc1 KM_c2done")
    a("s_waitcnt vmcnt(0)")
    for m in post(2): a(m)
    a(f"s_mov_b32 s62, {NST2-1}")
    a("s_branch KM_c2loop")
    a("KM_c2done:")
    ld = []
    if cfg.xmode == "sent": a(f"buffer_load_dword v9, v6, {WS}, 0 offen sc1")
    for k in range(2):
        for p in range(2):
            ld.append(f"buffer_load_dwordx4 {vr(EX1+8*k+4*p,4)}, v{VROW}, {WS}, {['s66','s67'][k]} offen offset:{64*p} sc1")
    for p in range(2):
        ld.append(f"buffer_load_dwordx4 {vr(EB2+4*p,4)}, v{VC2}, s[16:19], 0 offen offset:{64*p}")
        for h in range(2):
            ld.append(f"buffer_load_dwordx4 {vr(EG+8*p+4*h,4)}, v{VGB}, {WS}, 0 offen offset:{64*p+1024*h}")
    M = mfmas2(0)
    a("s_waitcnt lgkmcnt(6)")
    R = reads2(1)
    interleave(a, M[:4], R[:4])
    a("s_waitcnt lgkmcnt(4)")
    interleave(a, M[4:12], R[4:])
    interleave(a, M[12:16], ld[:4])
    order = [(u, mi) for u in range(4) for mi in (2, 3)] + [(u, mi) for u in range(4) for mi in (0, 1)]
    M = [f"v_mfma_f32_16x16x32_bf16 {vr(acc2(u,mi),4)}, {vr(FW2(1,u),4)}, {vr(FX2(1,mi),4)}, {vr(acc2(u,mi),4)}" for u, mi in order]
    a("s_waitcnt lgkmcnt(0)")
    interleave(a, M, ld[4:])
    stamp(a, 5)
    if cfg.xmode == "sent":
        a(f"""
        s_waitcnt vmcnt(10)
        s_mov_b32 s72, 0
        KM_ppoll:
        v_cmp_ne_u32 vcc, 2, v9
        s_cbranch_vccz KM_ppoll_x
        buffer_load_dword v9, v6, {WS}, 0 offen sc1
        s_add_u32 s72, s72, 1
        s_cmp_gt_u32 s72, {SPIN_MAX}
        s_waitcnt vmcnt(0)
        s_cbranch_scc0 KM_ppoll
        KM_ppoll_x:
        """)
    for j in range(4):
        for e in range(4):
            a(f"v_cvt_pk_bf16_f32 v{96+4*j+e}, v{64+8*j+2*e}, v{64+8*j+2*e+1}")
        if cfg.xmode == "sent":
            for e in range(4): a(f"v_min_u32 v{96+4*j+e}, -2, v{96+4*j+e}")
        a(f"buffer_store_dwordx4 {vr(96+4*j,4)}, v{VEXS}, {WS}, 0 offen offset:{1024*j} sc1")
    a("s_waitcnt vmcnt(4)")
    for j in range(8):
        a(f"v_lshlrev_b32 v{128+2*j}, 16, v{EB2+j}")
        a(f"v_and_b32 v{129+2*j}, 0xffff0000, v{EB2+j}")
    for j in range(16):
        a(f"v_lshlrev_b32 v{160+2*j}, 16, v{EX1+j}")
        a(f"v_and_b32 v{161+2*j}, 0xffff0000, v{EX1+j}")
    for k in range(2):
        for e in range(0, 16, 2): a(f"v_pk_fma_f32 {vr(160+16*k+e,2)}, {vr(128+e,2)}, {vr(EG+e,2)}, {vr(160+16*k+e,2)}")
    RX = 144
    if cfg.xmode == "sent":
        a(f"""
        s_mov_b32 s72, 0
        KM_xpoll:
        """)
        for j in range(4):
            a(f"buffer_load_dwordx4 {vr(RX+4*j,4)}, v{VEXR}, {WS}, 0 offen offset:{1024*j} sc1")
        a(f"""
        s_add_u32 s72, s72, 1
        s_cmp_gt_u32 s72, {SPIN_MAX}
        s_waitcnt vmcnt(0)
        s_cbranch_scc1 KM_xpoll_x
        v_max3_u32 v8, v{RX}, v{RX+1}, v{RX+2}
        v_max3_u32 v9, v{RX+3}, v{RX+4}, v{RX+5}
        v_max3_u32 v10, v{RX+6}, v{RX+7}, v{RX+8}
        v_max3_u32 v11, v{RX+9}, v{RX+10}, v{RX+11}
        v_max3_u32 v8, v8, v{RX+12}, v{RX+13}
        v_max3_u32 v9, v9, v{RX+14}, v{RX+15}
        v_max3_u32 v8, v8, v9, v10
        v_max_u32 v8, v8, v11
        v_cmp_eq_u32 vcc, -1, v8
        s_cbranch_vccnz KM_xpoll
        KM_xpoll_x:
        """)
    else:
        a(f"""
        v_mov_b32 v8, 1
        s_waitcnt vmcnt(0)
        s_mov_b64 exec, 1
        buffer_store_dword v8, v7, {WS}, 0 offen sc1
        s_mov_b32 s72, 0
        KM_xpoll:
        buffer_load_dword v9, v6, {WS}, 0 offen sc1
        s_add_u32 s72, s72, 1
        s_waitcnt vmcnt(0)
        v_cmp_ne_u32 vcc, 1, v9
        s_cmp_gt_u32 s72, {SPIN_MAX}
        s_cbranch_scc1 KM_xpoll_x
        s_cbranch_vccnz KM_xpoll
        KM_xpoll_x:
        s_mov_b64 exec, -1
        """)
        for j in range(4):
            a(f"buffer_load_dwordx4 {vr(RX+4*j,4)}, v{VEXR}, {WS}, 0 offen offset:{1024*j} sc1")
    for j in range(4):
        k, p = j >> 1, j & 1
        t0 = 32+8*j
        if cfg.xmode != "sent": a("s_waitcnt vmcnt(3)")
        for e in range(4):
            a(f"v_lshlrev_b32 v{64+2*e}, 16, v{RX+4*j+e}")
            a(f"v_and_b32 v{65+2*e}, 0xffff0000, v{RX+4*j+e}")
        for e in range(0, 8, 2): a(f"v_pk_add_f32 {vr(t0+e,2)}, {vr(t0+e,2)}, {vr(64+e,2)}")
        a("s_nop 1")
        for r in range(4): a(f"v_permlane16_swap_b32 v{t0+r}, v{t0+4+r}")
        a("s_nop 1")
        for e in range(0, 8, 2): a(f"v_pk_fma_f32 {vr(t0+e,2)}, {vr(t0+e,2)}, {vr(EG+8*p+e,2)}, {vr(160+8*j+e,2)}")
        for e in range(4): a(f"v_cvt_pk_bf16_f32 v{112+4*j+e}, v{t0+2*e}, v{t0+2*e+1}")
        a(f"buffer_store_dwordx4 {vr(112+4*j,4)}, v{VROW}, s[36:39], {['0','s74'][k]} offen offset:{64*p} {cfg.out_pol}")
    fin(a, kidx, "KM_end")
```

```python
import sys, math
from asmlib import *

NAME = "adaLN_cond__ssm_conv_h3__mixer_channel_mlp__prompt"
S, D, F = 2048, 1024, 3584
KQ, KK, KV, KSH, KSSM, KSD, KBX, KW1, KB1, KW2, KB2, KC_, KWM, KOUT, KDBG, KWS = [8*i for i in range(16)]
WS_U    = 0x0000000
WS_MODP = 0x0400000
WS_MOD  = 0x0440000
WS_FL2  = 0x3200000
FL2_BYTES = 32768 + 12288 + 65536
WS_GB   = 0x0480000
WS_Y    = 0x0800000
WS_X1   = 0x0C00000
WS_Y2   = 0x1000000
WS_H    = 0x1400000
WS_EX   = 0x2400000
MB4 = 0x400000
LOG2E = 1.4426950408889634

import struct
def f32(x):
    return "0x%08x" % struct.unpack("<I", struct.pack("<f", x))[0]

WS_ST   = 0x3800000
class Cfg:
    stamps = False
    extra = ""
    merged = True
    stR = False
    ka_code = True
    map = "4x2"
    km_pf = 1
    x1at = 0
    bthr = 2
    sentat = 1
    sg = "1,1,1,1,1,1,2,0,0"
    sp = "0,0,0,0,0,0,0,0,0"
    lag = 2
    ka_wb = 0
    km_b0 = 1
    km_b1 = 2
    post1 = 9
    post2 = 6
    xmode = "sent"
    idle_w1 = False
    fused = True
    fuseA = True
    kb_pf = 2
    qwarm = True
    pfat = 3
    pf_code = True
    ul2 = True
    relpoll = 32
    dep = 2
    npf1 = 7
    nb1 = 6
    nb2 = 2
    pf_w1 = True
    exp = ""
    trace = False
    absord = True
    a2_pol = "sc1"
    l2path = True
    wb_mid = False
    h_pol = ""
    early = True
    ex_bf16 = True
    pf_w2 = 2
    out_pol = ""
    rt = False
    diag = ""
    pf_pol = ""
    nt_in = ""
    w_pol = ""
    st_pol = "sc1"
cfg = Cfg()

def head(a, nwg, endlbl):
    a(f"s_cmp_ge_u32 s2, {nwg}")
    a(f"s_cbranch_scc1 {endlbl}_x" if cfg.stamps else f"s_cbranch_scc1 {endlbl}")
    if cfg.stamps:
        a("s_memrealtime s[76:77]")
        a("s_memtime s[78:79]")
        a(f"s_load_dwordx2 s[98:99], s[0:1], {KWS}")
        for i in range(80, 92, 2): a(f"s_mov_b64 s[{i}:{i+1}], 0")
        a("v_readfirstlane_b32 s97, v0")

def stamp(a, i):
    if cfg.stamps:
        a(f"{'s_memrealtime' if cfg.rt else 's_memtime'} s[{80+2*i}:{81+2*i}]")

def fin(a, kidx, lbl=None):
    if lbl: a(f"{lbl}:")
    if cfg.stamps:
        a(f"""
        s_waitcnt vmcnt(0)
        s_memrealtime s[92:93]
        s_memtime s[94:95]
        s_waitcnt lgkmcnt(0)
        s_mov_b64 exec, 1
        s_lshr_b32 s97, s97, 6
        s_add_u32 s96, s2, {kidx*256}
        s_lshl_b32 s96, s96, 4
        s_add_u32 s96, s96, s97
        s_lshl_b32 s96, s96, 6
        s_add_u32 s96, s96, {WS_ST}
        v_mov_b32 v0, s96
        v_mov_b32 v4, s76
        v_mov_b32 v5, s92
        v_mov_b32 v6, s78
        v_mov_b32 v7, s94
        global_store_dwordx4 v0, v[4:7], s[98:99]
        s_nop 1
        v_mov_b32 v4, s80
        v_mov_b32 v5, s82
        v_mov_b32 v6, s84
        v_mov_b32 v7, s86
        global_store_dwordx4 v0, v[4:7], s[98:99] offset:16
        s_nop 1
        v_mov_b32 v4, s88
        v_mov_b32 v5, s90
        global_store_dwordx2 v0, v[4:5], s[98:99] offset:32
        """)
        if lbl: a(f"{lbl}_x:")
    a("s_endpgm")

def gen_k0():
    a = Asm()
    head(a, 256, "K0_end")
    a(f"""
    s_load_dwordx4 s[4:7], s[0:1], {KK}
    s_load_dwordx2 s[8:9], s[0:1], {KSH}
    s_load_dwordx4 s[12:15], s[0:1], {KC_}
    s_load_dwordx2 s[10:11], s[0:1], {KWS}
    v_lshrrev_b32 v1, 6, v0
    v_and_b32 v2, 63, v0
    v_readfirstlane_b32 s3, v1
    s_and_b32 s44, s2, 7
    s_lshr_b32 s45, s2, 3
    s_lshr_b32 s46, s45, 4
    s_lshl_b32 s44, s44, 1
    s_add_u32 s44, s44, s46          ; cg
    s_and_b32 s45, s45, 15           ; rb
    s_lshl_b32 s46, s45, 7
    s_lshl_b32 s47, s3, 4
    s_add_u32 s46, s46, s47
    s_lshl_b32 s47, s46, 11
    s_lshl_b32 s48, s44, 7
    s_add_u32 s47, s47, s48
    v_lshrrev_b32 v7, 3, v2          ; l>>3
    v_and_b32 v15, 7, v2             ; l&7
    v_lshlrev_b32 v3, 11, v7
    v_lshl_add_u32 v3, v15, 4, v3
    v_add_u32 v3, s47, v3            ; vk
    v_add_u32 v4, 0xffffc000, v3
    s_mul_i32 s49, s3, 5120
    s_mov_b32 s50, 16384
    s_waitcnt lgkmcnt(0)
    """)
    srd(a, 16, 4, MB4); srd(a, 20, 6, MB4); srd(a, 24, 8, 8192)
    srd(a, 28, 10, MB4, WS_U); srd(a, 32, 12, 2048); srd(a, 36, 14, 1024*6144*2); srd(a, 40, 10, 2*6144*4, WS_MODP)
    nt = cfg.nt_in
    a(f"""
    s_add_u32 m0, s49, 1024
    s_nop 0
    buffer_load_dwordx4 v3, s[16:19], 0 offen {nt} lds
    s_add_u32 m0, s49, 2048
    s_nop 0
    buffer_load_dwordx4 v3, s[16:19], s50 offen {nt} lds
    s_add_u32 m0, s49, 3072
    s_nop 0
    buffer_load_dwordx4 v3, s[20:23], 0 offen {nt} lds
    s_add_u32 m0, s49, 4096
    s_nop 0
    buffer_load_dwordx4 v3, s[20:23], s50 offen {nt} lds
    s_mov_b32 m0, s49
    s_mov_b32 exec_lo, 0
    buffer_load_dwordx4 v4, s[16:19], 0 offen {nt} lds
    s_mov_b32 exec_lo, -1
    s_lshl_b32 s51, s44, 9
    v_lshl_add_u32 v5, v2, 3, s51
    buffer_load_dwordx2 v[8:9], v5, s[24:27], 0 offen
    s_cmp_ge_u32 s2, 192
    s_cbranch_scc1 K0_nogemv_ld
    s_lshr_b32 s52, s2, 1
    s_and_b32 s53, s2, 1             ; k half
    s_lshl_b32 s54, s53, 9
    s_lshl_b32 s55, s3, 6
    s_add_u32 s54, s54, s55
    v_lshl_add_u32 v60, v7, 3, s54
    v_lshlrev_b32 v61, 1, v60
    s_mov_b32 s55, 12288
    v_mul_lo_u32 v108, v60, s55
    s_lshl_b32 s55, s52, 7
    v_lshl_add_u32 v109, v15, 4, s55
    v_add_u32 v108, v108, v109
    buffer_load_dwordx4 v[60:63], v61, s[32:35], 0 offen
    s_mov_b32 s55, 0
    """)
    for i in range(8):
        a(f"buffer_load_dwordx4 {vr(64+4*i,4)}, v108, s[36:39], s55 offen {nt}")
        if i < 7: a("s_add_u32 s55, s55, 12288")
    a("""
    s_waitcnt vmcnt(9)
    s_branch K0_phaseA
    K0_nogemv_ld:
    s_waitcnt vmcnt(0)
    K0_phaseA:
    """)
    stamp(a, 0)
    a("""
    v_lshrrev_b32 v5, 4, v2          ; g
    v_and_b32 v6, 15, v2             ; i
    v_lshrrev_b32 v10, 2, v6
    v_and_b32 v11, 3, v6
    v_lshlrev_b32 v10, 7, v10
    v_lshl_add_u32 v10, v5, 5, v10
    v_lshl_add_u32 v10, v11, 3, v10
    v_add_u32 v5, s49, v10
    """)
    for p in range(5):
        a(f"ds_read_b64_tr_b16 {vr(16+2*p,2)}, v5 offset:{512+512*p}")
    for p in range(4):
        a(f"ds_read_b64_tr_b16 {vr(26+2*p,2)}, v5 offset:{3072+512*p}")
    a("""
    v_alignbit_b32 v10, v8, v8, 16   ; A=(w1,w0)
    v_alignbit_b32 v11, v9, v9, 16   ; B=(w3,w2)
    v_and_b32 v12, 0xffff, v8        ; C=(w0,0)
    s_mov_b32 s56, 0xffff
    v_bfi_b32 v13, s56, v9, v8       ; D=(w2,w1)
    v_and_b32 v14, 0xffff0000, v9    ; E=(0,w3)
    v_lshrrev_b32 v6, 2, v2
    v_lshlrev_b32 v6, 14, v6
    v_and_b32 v50, 3, v2
    v_lshl_add_u32 v6, v50, 4, v6
    s_lshl_b32 s56, s44, 18
    s_lshl_b32 s57, s46, 3           ; (row0/8)*64
    s_add_u32 s56, s56, s57
    v_add_u32 v6, s56, v6
    s_waitcnt lgkmcnt(0)
    """)
    P = lambda q: 16 + q + 2
    ks = lambda t: 34 + t
    for q in range(8):
        a(f"v_dot2_f32_bf16 v{ks(2*q)}, v{P(q)}, v12, 0")
        a(f"v_dot2_f32_bf16 v{ks(2*q+1)}, v{P(q)}, v10, 0")
    for q in range(8):
        a(f"v_dot2_f32_bf16 v{ks(2*q)}, v{P(q-1)}, v13, v{ks(2*q)}")
        a(f"v_dot2_f32_bf16 v{ks(2*q+1)}, v{P(q-1)}, v11, v{ks(2*q+1)}")
    for q in range(8):
        a(f"v_dot2_f32_bf16 v{ks(2*q)}, v{P(q-2)}, v14, v{ks(2*q)}")
    for q in range(8):
        a(f"v_lshlrev_b32 v{110+2*q}, 16, v{26+q}")
        a(f"v_and_b32 v{111+2*q}, 0xffff0000, v{26+q}")
    for t in range(16):
        a(f"v_mul_f32 v{ks(t)}, v{ks(t)}, v{110+t}")
    for h in range(2):
        for j in range(4):
            a(f"v_cvt_pk_bf16_f32 v{52+4*h+j}, v{ks(8*h+7-2*j)}, v{ks(8*h+6-2*j)}")
    a(f"buffer_store_dwordx4 v[52:55], v6, s[28:31], 0 offen {cfg.st_pol}")
    a(f"buffer_store_dwordx4 v[56:59], v6, s[28:31], 0 offen offset:64 {cfg.st_pol}")
    stamp(a, 1)
    a("""
    s_cmp_ge_u32 s2, 192
    s_cbranch_scc1 K0_end
    s_waitcnt vmcnt(10)
    """)
    for q in range(4):
        a(f"v_lshlrev_b32 v{110+2*q}, 16, v{60+q}")
        a(f"v_and_b32 v{111+2*q}, 0xffff0000, v{60+q}")
    for i in range(8): a(f"v_mul_f32 v{118+i}, {f32(-LOG2E)}, v{110+i}")
    for i in range(8): a(f"v_exp_f32 v{118+i}, v{118+i}")
    a("s_nop 0")
    for i in range(8): a(f"v_add_f32 v{118+i}, 1.0, v{118+i}")
    for i in range(8): a(f"v_rcp_f32 v{118+i}, v{118+i}")
    a("s_nop 0")
    for i in range(8): a(f"v_mul_f32 v{110+i}, v{110+i}, v{118+i}")
    for q in range(4): a(f"v_cvt_pk_bf16_f32 v{96+q}, v{110+2*q}, v{111+2*q}")
    a("s_mov_b32 s56, 0x05040100")
    a("s_mov_b32 s57, 0x07060302")
    for q in range(4):
        a(f"s_waitcnt vmcnt({2 + 6 - 2*q})")
        for j in range(4):
            w0 = 64 + 8*q + j; w1 = w0 + 4
            a(f"v_perm_b32 v{110+2*j}, v{w1}, v{w0}, s56")
            a(f"v_perm_b32 v{111+2*j}, v{w1}, v{w0}, s57")
        for j in range(8):
            src2 = "0" if q == 0 else f"v{100+j}"
            a(f"v_dot2_f32_bf16 v{100+j}, v{110+j}, v{96+q}, {src2}")
    stamp(a, 2)
    a("s_nop 3")
    for j in range(4): a(f"v_permlane32_swap_b32 v{100+j}, v{104+j}")
    a("s_nop 1")
    for j in range(4): a(f"v_add_f32 v{100+j}, v{100+j}, v{104+j}")
    a("s_nop 1")
    for j in range(2): a(f"v_permlane16_swap_b32 v{100+j}, v{102+j}")
    a("s_nop 1")
    for j in range(2): a(f"v_add_f32 v{100+j}, v{100+j}, v{102+j}")
    a("s_nop 1")
    for j in range(2): a(f"v_add_f32_dpp v{100+j}, v{100+j}, v{100+j} row_ror:8 row_mask:0xf bank_mask:0xf")
    a("""
    v_lshrrev_b32 v110, 4, v2
    v_lshlrev_b32 v110, 3, v110
    v_lshl_add_u32 v110, v15, 5, v110
    s_lshl_b32 s56, s3, 8
    s_add_u32 s56, s56, 40960
    v_add_u32 v110, s56, v110
    ds_write_b64 v110, v[100:101]
    s_waitcnt lgkmcnt(0)
    s_barrier
    s_cmp_lg_u32 s3, 0
    s_cbranch_scc1 K0_end
    v_lshlrev_b32 v110, 2, v2
    """)
    for w in range(8): a(f"ds_read_b32 v{100+w}, v110 offset:{40960+256*w}")
    a("""
    s_mul_i32 s56, s53, 24576
    s_lshl_b32 s57, s52, 8
    s_add_u32 s56, s56, s57
    s_waitcnt lgkmcnt(0)
    v_add_f32 v100, v100, v101
    v_add_f32 v102, v102, v103
    v_add_f32 v104, v104, v105
    v_add_f32 v106, v106, v107
    v_add_f32 v100, v100, v102
    v_add_f32 v104, v104, v106
    v_add_f32 v100, v100, v104
    buffer_store_dword v100, v110, s[40:43], s56 offen
    """)
    fin(a, 0, "K0_end")
    return dict(name="k0_kernel", body=a.text(), vgpr=128, sgpr=64, grid=256, block=512, lds=43008)

CP_STR, CH_STR = 4160, 16640
UR_BASE, UR_STR = 4*16640, 4640
def gen_k1():
    a = Asm()
    head(a, 256, "K1_end")
    a(f"""
    s_load_dwordx4 s[4:7], s[0:1], {KSSM}
    s_load_dwordx2 s[10:11], s[0:1], {KWS}
    v_lshrrev_b32 v1, 6, v0
    v_and_b32 v2, 63, v0
    v_readfirstlane_b32 s3, v1
    s_and_b32 s44, s2, 7
    s_lshr_b32 s45, s2, 3
    s_lshl_b32 s44, s44, 5
    s_add_u32 s44, s44, s45          ; cq
    s_lshl_b32 s45, s44, 2
    s_add_u32 s45, s45, s3           ; channel d
    s_lshl_b32 s46, s45, 12
    v_lshl_add_u32 v3, v2, 4, s46
    s_lshl_b32 s47, s44, 14          ; cq*16384
    s_lshl_b32 s48, s3, 12
    s_add_u32 s48, s48, s47
    v_lshl_add_u32 v4, v2, 4, s48    ; U offset
    s_mul_i32 s49, s3, {CH_STR}      ; chbase
    s_waitcnt lgkmcnt(0)
    """)
    srd(a, 16, 4, MB4); srd(a, 20, 6, 2048); srd(a, 24, 10, MB4, WS_U); srd(a, 28, 10, MB4, WS_Y)
    nt = cfg.nt_in
    for j in range(4):
        a(f"buffer_load_dwordx4 {vr(176+4*j,4)}, v4, s[24:27], 0 offen offset:{1024*j}")
    for j in range(4):
        for sft in range(3):
            a(f"buffer_load_dwordx4 {vr(32+12*j+4*sft,4)}, v3, s[16:19], 0 offen offset:{1024*j+4*sft} {nt}")
    a(f"""
    s_lshl_b32 s50, s45, 1
    v_mov_b32 v5, s50
    buffer_load_ushort v6, v5, s[20:23], 0 offen
    v_and_b32 v7, 3, v2
    v_mul_u32_u24 v7, {UR_STR}, v7
    v_lshrrev_b32 v8, 2, v2
    v_lshlrev_b32 v8, 4, v8
    v_sub_u32 v7, v7, v8
    s_lshl_b32 s50, s3, 10
    s_sub_u32 s50, {UR_BASE + 255*16 - 3*256}, s50
    v_add_u32 v7, s50, v7
    v_mov_b32 v12, 0
    v_mov_b32 v13, 0
    v_mov_b32 v14, 0
    v_mov_b32 v15, 0
    s_mul_i32 s51, s3, {UR_STR}
    s_add_u32 s51, s51, {UR_BASE}    ; URc
    v_lshl_add_u32 v8, v2, 4, s51
    s_mov_b64 exec, 0x3fffffff
    ds_write_b128 v8, v[12:15] offset:4096
    s_mov_b64 exec, -1
    v_lshl_add_u32 v9, v2, 4, s49
    v_and_b32 v10, 15, v2            ; i' / a'
    v_lshrrev_b32 v11, 4, v2         ; g
    v_add_u32 v16, 1, v10            ; o+16
    v_and_b32 v17, 3, v16            ; c'
    v_sub_u32 v16, v16, v17          ; o-c'+16
    v_lshlrev_b32 v16, 1, v16        ; 2(o-c')+32
    v_mul_u32_u24 v17, {CP_STR}, v17
    v_add_u32 v16, v16, v17
    v_lshl_add_u32 v16, v11, 4, v16
    v_add_u32 v16, s49, v16          ; vA
    v_lshlrev_b32 v17, 5, v10
    v_sub_u32 v17, 480, v17
    v_lshl_add_u32 v17, v11, 4, v17
    v_add_u32 v17, s51, v17          ; vB
    ; e = 15 - i' - 8g
    v_lshlrev_b32 v18, 3, v11
    v_add_u32 v18, v18, v10
    v_sub_u32 v18, 15, v18
    s_waitcnt vmcnt(13)
    """)
    stamp(a, 0)
    for j in range(4):
        a(f"ds_write_b128 v7, {vr(176+4*j,4)} offset:{256*(3-j)}")
    for j in range(4):
        A, B, C = 32+12*j, 36+12*j, 40+12*j
        a(f"s_waitcnt vmcnt({1+3*(3-j)})")
        o1, o3 = 80+8*j, 84+8*j
        for i in range(4): a(f"v_alignbit_b32 v{o1+i}, v{B+i}, v{A+i}, 16")
        for i in range(4): a(f"v_alignbit_b32 v{o3+i}, v{C+i}, v{B+i}, 16")
        a(f"ds_write_b128 v9, {vr(A,4)} offset:{32+1024*j}")
        a(f"ds_write_b128 v9, {vr(B,4)} offset:{2*CP_STR+32+1024*j}")
        a(f"ds_write_b128 v9, {vr(o1,4)} offset:{CP_STR+32+1024*j}")
        a(f"ds_write_b128 v9, {vr(o3,4)} offset:{3*CP_STR+32+1024*j}")
    a(f"""
    v_readfirstlane_b32 s52, v32
    v_readfirstlane_b32 s53, v33
    s_nop 1
    s_lshl_b32 s54, s52, 16
    s_lshr_b32 s55, s52, 16
    s_lshl_b32 s56, s53, 16
    s_or_b32 s55, s55, s56
    v_writelane_b32 v15, s54, 3
    v_writelane_b32 v15, s52, 5
    v_writelane_b32 v14, s54, 7
    v_writelane_b32 v15, s55, 7
    v_lshrrev_b32 v19, 1, v2
    v_mul_u32_u24 v19, {CP_STR}, v19
    v_and_b32 v20, 1, v2
    v_lshl_add_u32 v19, v20, 4, v19
    v_add_u32 v19, s49, v19
    s_mov_b64 exec, 0xff
    ds_write_b128 v19, v[12:15]
    s_mov_b64 exec, -1
    s_waitcnt vmcnt(0)
    v_lshlrev_b32 v21, 16, v6
    """)
    for j in range(4):
        a(f"v_cmp_eq_u32 vcc, {2*j}, v18")
        a("s_nop 1")
        a(f"v_cndmask_b32 v{24+j}, 0, v6, vcc")
        a(f"v_cmp_eq_u32 vcc, {2*j+1}, v18")
        a("s_nop 1")
        a(f"v_cndmask_b32 v{24+j}, v{24+j}, v21, vcc")
    a("s_waitcnt lgkmcnt(0)")
    a("s_barrier")
    stamp(a, 1)
    ACC = 192
    FA = lambda s, w: 32 + 64*s + 4*w
    FB = lambda s, v: 64 + 64*s + 4*v
    def reads(z0):
        s = z0 & 1
        R = []
        for i in range(8):
            R.append(f"ds_read_b128 {vr(FB(s,i),4)}, v17 offset:{512*(7-i)+64*z0}")
            R.append(f"ds_read_b64 {vr(FA(s,i),2)}, v16 offset:{512*i+64*z0}")
            R.append(f"ds_read_b64 {vr(FA(s,i)+2,2)}, v16 offset:{512*i+64*z0+8}")
        return R
    for r in reads(0): a(r)
    a("s_waitcnt lgkmcnt(0)")
    for n in range(8):
        a(f"v_mfma_f32_16x16x32_bf16 {vr(ACC+4*n,4)}, v[24:27], {vr(FB(0,n),4)}, 0")
    for z0 in range(8):
        s = z0 & 1
        R = reads(z0+1) if z0 < 7 else []
        M = [(w, v) for w in range(8) for v in range(8-w)]
        for i, (w, v) in enumerate(M):
            a(f"v_mfma_f32_16x16x32_bf16 {vr(ACC+4*(w+v),4)}, {vr(FA(s,w),4)}, {vr(FB(s,v),4)}, {vr(ACC+4*(w+v),4)}")
            if i < len(R): a(R[i])
        if z0 < 7: a("s_waitcnt lgkmcnt(0)")
    stamp(a, 2)
    a(f"""
    v_lshlrev_b32 v20, 5, v10
    v_lshl_add_u32 v20, v11, 3, v20
    v_add_u32 v20, s49, v20
    s_lshl_b32 s50, s3, 10
    v_lshl_add_u32 v21, v2, 2, s50
    s_mov_b32 s56, 0x05040100
    s_mov_b32 s57, 0x07060302
    s_nop 4
    """)
    for n in range(8):
        a(f"v_cvt_pk_bf16_f32 v{32+2*n}, v{ACC+4*n}, v{ACC+4*n+1}")
        a(f"v_cvt_pk_bf16_f32 v{33+2*n}, v{ACC+4*n+2}, v{ACC+4*n+3}")
        a(f"ds_write_b64 v20, {vr(32+2*n,2)} offset:{512*n}")
    a("s_waitcnt lgkmcnt(0)")
    a("s_barrier")
    for j in range(4):
        a(f"ds_read2st64_b32 {vr(64+4*j,2)}, v21 offset0:{j} offset1:{65+j}")
        a(f"ds_read2st64_b32 {vr(66+4*j,2)}, v21 offset0:{130+j} offset1:{195+j}")
    for j in range(4):
        a(f"s_waitcnt lgkmcnt({6-2*j})")
        b = 64+4*j; o = 96+4*j
        a(f"v_perm_b32 v{o}, v{b+1}, v{b}, s56")
        a(f"v_perm_b32 v{o+1}, v{b+3}, v{b+2}, s56")
        a(f"v_perm_b32 v{o+2}, v{b+1}, v{b}, s57")
        a(f"v_perm_b32 v{o+3}, v{b+3}, v{b+2}, s57")
        a(f"buffer_store_dwordx4 {vr(o,4)}, v4, s[28:31], 0 offen offset:{1024*j} {cfg.st_pol}")
    fin(a, 1, "K1_end")
    return dict(name="k1_kernel", body=a.text(), vgpr=224, sgpr=64, grid=256, block=256, lds=UR_BASE+4*UR_STR)

def wave_stats(a, s1, s2, t, mean_rs, rstd):
    steps = ["quad_perm:[1,0,3,2] row_mask:0xf", "quad_perm:[2,3,0,1] row_mask:0xf", "row_half_mirror row_mask:0xf",
             "row_mirror row_mask:0xf", "row_bcast:15 row_mask:0xa", "row_bcast:31 row_mask:0xc"]
    a("s_nop 1")
    for st in steps:
        a(f"v_add_f32_dpp v{s1}, v{s1}, v{s1} {st} bank_mask:0xf")
        a(f"v_add_f32_dpp v{s2}, v{s2}, v{s2} {st} bank_mask:0xf")
        a("s_nop 0")
    a(f"""
    v_readlane_b32 s60, v{s1}, 63
    v_readlane_b32 s61, v{s2}, 63
    s_nop 1
    v_mul_f32 v{t}, s60, v250             ; mean
    v_mul_f32 v{rstd}, s61, v250          ; E[x^2]
    v_fma_f32 v{rstd}, -v{t}, v{t}, v{rstd}
    v_max_f32 v{rstd}, 0, v{rstd}
    v_add_f32 v{rstd}, {f32(1e-5)}, v{rstd}
    v_rsq_f32 v{rstd}, v{rstd}
    s_nop 0
    v_mul_f32 v{mean_rs}, v{t}, v{rstd}
    v_sub_f32 v{mean_rs}, 0, v{mean_rs}
    """.replace("v250", "v126"))

def gen_kb():
    a = Asm()
    head(a, 256, "KB_end")
    MODL = 16384
    a(f"""
    s_load_dwordx2 s[4:5], s[0:1], {KQ}
    s_load_dwordx2 s[10:11], s[0:1], {KWS}
    s_load_dwordx2 s[6:7], s[0:1], {KW1}
    s_load_dwordx2 s[8:9], s[0:1], {KW2}
    v_lshrrev_b32 v1, 6, v0
    v_and_b32 v2, 63, v0
    v_readfirstlane_b32 s3, v1
    s_and_b32 s44, s2, 7
    s_lshr_b32 s45, s2, 3
    s_lshl_b32 s44, s44, 5
    s_add_u32 s44, s44, s45
    s_lshl_b32 s45, s44, 3
    s_add_u32 s45, s45, s3           ; row
    s_lshl_b32 s46, s45, 11
    v_lshl_add_u32 v3, v2, 4, s46
    v_lshrrev_b32 v4, 2, v2
    v_and_b32 v5, 7, v4
    v_lshlrev_b32 v5, 1, v5
    v_lshrrev_b32 v4, 3, v4
    v_add_u32 v5, v5, v4             ; G (0..15)
    v_lshrrev_b32 v6, 3, v5
    v_and_b32 v7, 3, v2
    v_xor_b32 v6, v6, v7
    v_lshlrev_b32 v5, 14, v5
    s_lshl_b32 s47, s3, 19           ; (2w*16)*16384
    s_lshl_b32 s48, s44, 6
    s_add_u32 s47, s47, s48
    v_add_u32 v5, s47, v5
    v_lshl_add_u32 v8, v6, 4, v5
    v_xor_b32 v6, 2, v6
    v_lshl_add_u32 v9, v6, 4, v5
    v_lshlrev_b32 v10, 4, v0
    s_mov_b32 s49, 0x40000
    s_mov_b32 s50, 8192
    s_mov_b32 s51, 16384
    s_mov_b32 s52, 24576
    s_mov_b32 s53, 32768
    s_mov_b32 s54, 40960
    s_waitcnt lgkmcnt(0)
    """)
    srd(a, 16, 4, MB4); srd(a, 20, 10, MB4, WS_Y); srd(a, 24, 10, 2*6144*4, WS_MODP)
    srd(a, 28, 10, MB4, WS_X1); srd(a, 32, 10, MB4, WS_Y2); srd(a, 36, 10, 8192+65536, 0x3000000)
    a("""
    s_mul_i32 s55, s2, 288
    v_lshl_add_u32 v11, v0, 2, s55
    v_mov_b32 v12, 0
    v_cmp_gt_u32 vcc, 72, v0
    s_and_saveexec_b64 s[56:57], vcc
    s_cbranch_execz KB_nz
    buffer_store_dword v12, v11, s[36:39], 0 offen
    KB_nz:
    s_mov_b64 exec, -1
    """)
    a(f"""
    s_lshl_b32 s55, s3, 11
    s_mov_b32 m0, s55
    buffer_load_dwordx4 v[16:19], v10, s[24:27], 0 offen
    buffer_load_dwordx4 v8, s[20:23], 0 offen lds
    s_add_u32 m0, s55, 1024
    buffer_load_dwordx4 v[20:23], v10, s[24:27], s52 offen
    buffer_load_dwordx4 v9, s[20:23], s49 offen lds
    buffer_load_dwordx4 v[24:27], v10, s[24:27], s50 offen
    buffer_load_dwordx4 v[28:31], v10, s[24:27], s53 offen
    buffer_load_dwordx4 v[32:35], v10, s[24:27], s51 offen
    buffer_load_dwordx4 v[36:39], v10, s[24:27], s54 offen
    buffer_load_dwordx4 v[40:43], v3, s[16:19], 0 offen {cfg.nt_in}
    buffer_load_dwordx4 v[44:47], v3, s[16:19], 0 offen offset:1024 {cfg.nt_in}
    v_lshrrev_b32 v11, 7, v0         ; (vec&1)*2 + h
    v_lshlrev_b32 v11, 11, v11
    v_and_b32 v12, 1, v0
    v_lshl_add_u32 v11, v12, 10, v11
    v_bfe_u32 v12, v0, 1, 6
    v_lshl_add_u32 v11, v12, 4, v11
    v_cmp_le_u32 vcc, 256, v0
    v_mov_b32 v126, {f32(1.0/1024)}
    s_nop 0
    v_cndmask_b32_e64 v13, 0, 1.0, vcc
    v_sub_f32 v14, 1.0, v13
    v_lshrrev_b32 v4, 3, v2
    v_lshlrev_b32 v4, 10, v4
    v_and_b32 v5, 7, v2
    v_lshl_add_u32 v4, v5, 6, v4
    v_bfe_u32 v5, v2, 2, 2
    s_lshr_b32 s56, s3, 1
    v_xor_b32 v5, s56, v5
    v_lshl_add_u32 v4, v5, 4, v4
    s_and_b32 s56, s3, 1
    s_lshl_b32 s56, s56, 3
    v_add_u32 v4, s56, v4
    v_lshlrev_b32 v5, 4, v2
    s_waitcnt vmcnt(2)
    """)
    stamp(a, 0)
    for i in range(3):
        for e in range(4):
            a(f"v_add_f32 v{16+8*i+e}, v{16+8*i+e}, v{20+8*i+e}")
        if i != 1:
            for e in range(4):
                a(f"v_add_f32 v{16+8*i+e}, v{16+8*i+e}, v{13 if i == 0 else 14}")
        a(f"ds_write_b128 v11, {vr(16+8*i,4)} offset:{MODL+8192*i}")
    srd(a, 40, 10, 2048, WS_GB)
    a("""
    s_cmp_lg_u32 s2, 0
    s_cbranch_scc1 KB_nogb
    s_cmp_lt_u32 s3, 4
    s_cbranch_scc1 KB_nogb
    v_cvt_pk_bf16_f32 v36, v32, v33
    v_cvt_pk_bf16_f32 v37, v34, v35
    v_lshlrev_b32 v38, 3, v0
    v_add_u32 v38, 0xfffff800, v38
    buffer_store_dwordx2 v[36:37], v38, s[40:43], 0 offen
    KB_nogb:
    """)
    a("s_waitcnt vmcnt(0)")
    Q, Y, T = 48, 64, 80
    for j in range(8):
        a(f"v_lshlrev_b32 v{Q+2*j}, 16, v{40+j}")
        a(f"v_and_b32 v{Q+2*j+1}, 0xffff0000, v{40+j}")
    a("s_waitcnt lgkmcnt(0)")
    a("s_barrier")
    stamp(a, 1)
    if cfg.kb_pf:
        a(f"""
        s_cmp_lt_u32 s3, 4
        s_cselect_b32 s64, s6, s8
        s_cselect_b32 s65, s7, s9
        s_mov_b32 s66, 7340032
        s_mov_b32 s67, 0x20000
        s_mul_i32 s55, s2, 28672
        s_and_b32 s56, s3, 3
        s_mul_i32 s56, s56, 7168
        s_add_u32 s55, s55, s56
        v_lshl_add_u32 v15, v2, 4, s55
        s_mov_b32 s55, 4096
        """)
        if cfg.kb_pf == 1:
            a("s_cmp_lt_u32 s3, 4")
            a("s_cbranch_scc0 KB_nopf")
        for i in range(7):
            a(f"buffer_load_dwordx4 {vr(144+4*i,4)}, v15, s[64:67], {'0' if i < 4 else 's55'} offen offset:{1024*(i%4)}")
        a("KB_nopf:")
    for h in range(2):
        for e in range(2):
            a(f"ds_read_b64 {vr(40+4*h+2*e,2)}, v4 offset:{8192*h+512*e}")
    def modread(vec, dst):
        for h in range(2):
            for half in range(2):
                a(f"ds_read_b128 {vr(dst+8*h+4*half,4)}, v5 offset:{MODL+4096*vec+2048*h+1024*half}")
    M0, M1, M2 = 16, 96, 112
    M2 = 128
    modread(1, M0); modread(0, M1); modread(2, M2)
    def stats(X):
        a(f"v_add_f32 v6, v{X}, v{X+1}")
        a(f"v_mul_f32 v7, v{X}, v{X}")
        a(f"v_fmac_f32 v7, v{X+1}, v{X+1}")
        for j in range(2, 16):
            a(f"v_add_f32 v6, v6, v{X+j}")
            a(f"v_fmac_f32 v7, v{X+j}, v{X+j}")
        wave_stats(a, 6, 7, 8, 9, 10)
    stats(Q)
    a("s_waitcnt lgkmcnt(0)")
    for j in range(8):
        a(f"v_lshlrev_b32 v{Y+2*j}, 16, v{40+j}")
        a(f"v_and_b32 v{Y+2*j+1}, 0xffff0000, v{40+j}")
    for j in range(16): a(f"v_fma_f32 v{T+j}, v{Q+j}, v10, v9")
    for j in range(16): a(f"v_fma_f32 v{T+j}, v{T+j}, v{M0+j}, v{M1+j}")
    modread(4, M0); modread(3, M1)
    for j in range(16): a(f"v_mul_f32 v{T+j}, v{T+j}, v{Y+j}")
    for j in range(16): a(f"v_fmac_f32 v{Q+j}, v{T+j}, v{M2+j}")
    for j in range(8): a(f"v_cvt_pk_bf16_f32 v{40+j}, v{Q+2*j}, v{Q+2*j+1}")
    a(f"buffer_store_dwordx4 v[40:43], v3, s[28:31], 0 offen {cfg.st_pol}")
    a(f"buffer_store_dwordx4 v[44:47], v3, s[28:31], 0 offen offset:1024 {cfg.st_pol}")
    stats(Q)
    a("s_waitcnt lgkmcnt(0)")
    for j in range(16): a(f"v_fma_f32 v{T+j}, v{Q+j}, v10, v9")
    for j in range(16): a(f"v_fma_f32 v{T+j}, v{T+j}, v{M0+j}, v{M1+j}")
    stats(T)
    for j in range(16): a(f"v_fma_f32 v{T+j}, v{T+j}, v10, v9")
    for j in range(8): a(f"v_cvt_pk_bf16_f32 v{Y+j}, v{T+2*j}, v{T+2*j+1}")
    stamp(a, 2)
    a(f"buffer_store_dwordx4 {vr(Y,4)}, v3, s[32:35], 0 offen {cfg.st_pol}")
    a(f"buffer_store_dwordx4 {vr(Y+4,4)}, v3, s[32:35], 0 offen offset:1024 {cfg.st_pol}")
    fin(a, 2, "KB_end")
    return dict(name="kb_kernel", body=a.text(), vgpr=176, sgpr=72, grid=256, block=512, lds=MODL+24576)

def gen_diag():
    ka, wa, fa, kb, wb, fb = [int(x) for x in cfg.diag.split(",")]
    off = lambda k, w, f: WS_ST + ((k*256)*16 + w)*64 + 4*f
    first = 6 if "pf" in cfg.extra else 0
    a = Asm()
    a(f"""
    s_cmp_lg_u32 s2, 0
    s_cbranch_scc1 DG_end
    s_load_dwordx2 s[4:5], s[0:1], {KWS}
    s_waitcnt lgkmcnt(0)
    s_add_u32 s6, s4, {off(first,0,0)}
    s_addc_u32 s7, s5, 0
    s_add_u32 s8, s4, {off(ka,wa,fa)}
    s_addc_u32 s9, s5, 0
    s_add_u32 s10, s4, {off(kb,wb,fb)}
    s_addc_u32 s11, s5, 0
    s_load_dword s12, s[6:7], 0
    s_load_dword s13, s[8:9], 0
    s_load_dword s14, s[10:11], 0
    s_waitcnt lgkmcnt(0)
    s_sub_u32 s14, s14, s13
    s_min_u32 s14, s14, 60000
    {"s_lshl_b32 s14, s14, 2" if (fa < 2 or cfg.rt) else "s_lshr_b32 s14, s14, 2"}
    s_add_u32 s14, s14, 20000
    s_mov_b32 s15, 0
    DG_loop:
    s_memrealtime s[16:17]
    s_waitcnt lgkmcnt(0)
    s_sub_u32 s16, s16, s12
    s_add_u32 s15, s15, 1
    s_cmp_gt_u32 s15, 200000
    s_cbranch_scc1 DG_end
    s_cmp_lt_u32 s16, s14
    s_cbranch_scc1 DG_loop
    DG_end:
    s_endpgm
    """)
    return dict(name="dg_kernel", body=a.text(), vgpr=8, sgpr=32, grid=8, block=64, lds=0)

def gen_nop():
    a = Asm()
    a("s_endpgm")
    return dict(name="nop_kernel", body=a.text(), vgpr=8, sgpr=16, grid=256, block=64, lds=0)

def gen_pf():
    a = Asm()
    head(a, 256, "PF_end")
    a(f"""
    s_load_dwordx2 s[4:5], s[0:1], {KW1}
    s_load_dwordx2 s[6:7], s[0:1], {KW2}
    s_mul_i32 s44, s2, 28672
    v_lshl_add_u32 v1, v0, 4, s44
    s_waitcnt lgkmcnt(0)
    """)
    srd(a, 16, 4, 7340032); srd(a, 20, 6, 7340032)
    a("s_mov_b32 s45, 0")
    for i in range(7):
        a(f"buffer_load_dwordx4 {vr(4+8*i,4)}, v1, s[16:19], s45 offen {cfg.pf_pol}")
        a(f"buffer_load_dwordx4 {vr(8+8*i,4)}, v1, s[20:23], s45 offen {cfg.pf_pol}")
        a("s_add_u32 s45, s45, 4096")
    a("s_waitcnt vmcnt(0)")
    fin(a, 6, "PF_end")
    return dict(name="pf_kernel", body=a.text(), vgpr=64, sgpr=64, grid=256, block=256, lds=0)

def emit(kernels):
    ref = open(f"cdna_kernels/{NAME}.s.ref").read().splitlines()
    hdr = [l for l in ref if l.startswith(";") and "@launch" not in l and "Override" not in l and "grid=ceil" not in l]
    out = list(hdr)
    for k in kernels:
        out.append(f"; @launch kernel={k['name']} grid=({k['grid']},1,1) block=({k['block']},1,1) lds={k['lds']}")
    out.append('.amdgcn_target "amdgcn-amd-amdhsa--gfx950"')
    out.append(".text")
    seen = []
    for k in kernels:
        if k['name'] in seen: continue
        seen.append(k['name'])
        out.append(kernel_text(k['name'], k['body']))
    out.append(".fill 128, 4, 0xbf800000")
    out.append('.section .rodata,"a"')
    seen = []
    for k in kernels:
        if k['name'] in seen: continue
        seen.append(k['name'])
        out.append(".p2align 6")
        out.append(kernel_desc(k['name'], k['vgpr'], 102 if cfg.stamps else k['sgpr'], k.get('accum')))
    return "\n".join(out) + "\n"

def main():
    import gemm
    for arg in sys.argv[2:]:
        k, v = arg.split("=")
        cur = getattr(cfg, k)
        setattr(cfg, k, (v == "1") if isinstance(cur, bool) else type(cur)(v.replace("+", " ")))
    import kg
    if cfg.fused: ks = [gen_k0(), gen_k1(), gen_kb(), kg.gen_kg()]
    else: ks = [gen_k0(), gen_k1(), gen_kb(), gemm.gen_kc(), gemm.gen_kd(), gemm.gen_ke()]
    if cfg.fuseA:
        import ka
        ks = [ka.gen_ka()] + ks[2:]
    if cfg.merged:
        import ka2, km
        ks = [ka2.gen_ka(), km.gen_km()]
    if "pf" in cfg.extra: ks = [gen_pf()] + ks
    if "nop" in cfg.extra: ks = ks + [gen_nop()]
    if "nop4" in cfg.extra: ks = ks + [gen_nop()]*3
    if cfg.diag: ks = ks + [gen_diag()]
    dst = sys.argv[1] if len(sys.argv) > 1 else f"cdna_kernels/{NAME}.s"
    open(dst, "w").write(emit(ks))
    print("wrote", dst)

if __name__ == "__main__":
    import gen
    gen.main()
```

```python
from asmlib import *
from gen import *

WS_FA = 0x3100000
SPIN_MAX = 1 << 16
STG = UR_BASE + 4*UR_STR
RED = STG + 8*5120

def gen_ka(kidx=0):
    a = Asm()
    head(a, 256, "KA_end")
    nt = cfg.nt_in
    a(f"""
    s_load_dwordx4 s[4:7], s[0:1], {KK}
    s_load_dwordx2 s[10:11], s[0:1], {KWS}
    s_load_dwordx4 s[12:15], s[0:1], {KSH}
    v_lshrrev_b32 v1, 6, v0
    v_and_b32 v2, 63, v0
    v_readfirstlane_b32 s3, v1
    s_and_b32 s44, s2, 7
    s_lshr_b32 s45, s2, 3
    s_lshl_b32 s43, s44, 5
    s_add_u32 s43, s43, s45          ; cq
    s_lshr_b32 s44, s43, 4           ; cg
    s_and_b32 s45, s45, 15
    s_lshl_b32 s46, s45, 7
    s_lshl_b32 s47, s3, 4
    s_add_u32 s46, s46, s47
    s_lshl_b32 s47, s46, 11
    s_lshl_b32 s48, s44, 7
    s_add_u32 s47, s47, s48
    v_lshrrev_b32 v7, 3, v2          ; l>>3
    v_and_b32 v15, 7, v2             ; l&7
    v_lshlrev_b32 v3, 11, v7
    v_lshl_add_u32 v3, v15, 4, v3
    v_add_u32 v3, s47, v3            ; vk
    v_add_u32 v4, 0xffffc000, v3
    s_mul_i32 s49, s3, 5120
    s_add_u32 s49, s49, {STG}
    s_mov_b32 s50, 16384
    s_mov_b32 s18, {MB4}
    s_mov_b32 s19, 0x20000
    s_mov_b32 s22, {MB4}
    s_mov_b32 s23, 0x20000
    s_mov_b32 s26, 8192
    s_mov_b32 s27, 0x20000
    s_lshl_b32 s51, s44, 9
    v_lshl_add_u32 v5, v2, 3, s51
    s_add_u32 m0, s49, 1024
    s_waitcnt lgkmcnt(0)
    s_mov_b32 s16, s4
    s_mov_b32 s17, s5
    s_mov_b32 s20, s6
    s_mov_b32 s21, s7
    buffer_load_dwordx4 v3, s[16:19], 0 offen {nt} lds
    s_add_u32 m0, s49, 3072
    s_mov_b32 s24, s12
    buffer_load_dwordx4 v3, s[20:23], 0 offen {nt} lds
    s_add_u32 m0, s49, 2048
    s_mov_b32 s25, s13
    buffer_load_dwordx4 v3, s[16:19], s50 offen {nt} lds
    s_add_u32 m0, s49, 4096
    buffer_load_dwordx2 v[8:9], v5, s[24:27], 0 offen
    buffer_load_dwordx4 v3, s[20:23], s50 offen {nt} lds
    s_mov_b32 m0, s49
    s_mov_b32 exec_lo, 0
    buffer_load_dwordx4 v4, s[16:19], 0 offen {nt} lds
    s_mov_b32 exec_lo, -1
    s_lshl_b32 s51, s44, 9
    s_add_u32 s52, s10, s51
    s_addc_u32 s53, s11, 0
    s_add_u32 s52, s52, {WS_FA}
    s_addc_u32 s53, s53, 0
    s_load_dword s42, s[52:53], 256
    s_load_dwordx2 s[4:5], s[0:1], {KSD}
    s_load_dwordx4 s[56:59], s[0:1], {KC_}
    s_load_dwordx2 s[6:7], s[0:1], {KQ}
    s_load_dwordx2 s[8:9], s[0:1], {KW1}
    """)
    HB, BS = 2048*3584*2, 8*112*1024
    srd(a, 28, 10, HB - 56*1024, WS_H + 56*1024)
    a(f"""
    s_lshr_b32 s55, s44, 1
    s_mul_i32 s55, s55, 112
    s_and_b32 s63, s44, 1
    s_mul_i32 s63, s63, 28
    s_add_u32 s55, s55, s63
    s_lshl_b32 s55, s55, 10
    s_mul_i32 s63, s45, {BS}
    s_add_u32 s55, s55, s63
    s_lshl_b32 s63, s3, 7
    s_add_u32 s55, s55, s63
    v_lshrrev_b32 v6, 4, v2          ; m>>2
    v_and_b32 v50, 1, v6
    v_mad_u32_u24 v6, v6, 7, v50
    v_bfe_u32 v50, v2, 2, 2
    v_add_lshl_u32 v6, v6, v50, 10
    v_and_b32 v50, 3, v2
    v_lshl_add_u32 v6, v50, 4, v6
    v_add_u32 v6, s55, v6
    v_lshrrev_b32 v51, 5, v2
    v_lshlrev_b32 v51, 3, v51
    v_and_b32 v50, 3, v7
    v_add_lshl_u32 v51, v51, v50, 10
    v_lshl_add_u32 v51, v15, 4, v51
    v_add_u32 v51, s55, v51
    s_mov_b32 s40, 14336
    s_getreg_b32 s41, hwreg(HW_REG_XCC_ID, 0, 4)
    s_barrier
    """)
    NT = 2 if (cfg.ul2 and "notouch" not in cfg.exp) else 0
    if NT:
        a("buffer_load_dwordx4 v[164:167], v51, s[28:31], 0 offen sc1")
        a("buffer_load_dwordx4 v[168:171], v51, s[28:31], s40 offen sc1")
    a(f"""
    s_cmp_ge_u32 s3, 4
    s_cbranch_scc1 KA_hpre
    """)
    srd(a, 32, 14, MB4)
    a(f"""
    s_lshl_b32 s54, s43, 2
    s_add_u32 s54, s54, s3           ; channel d
    s_lshl_b32 s55, s54, 12
    v_lshl_add_u32 v5, v2, 4, s55
    """)
    KR = 128
    a("s_waitcnt lgkmcnt(0)")
    a("s_add_u32 s42, s42, 0x9e3779b9")
    srd(a, 36, 4, 2048); srd(a, 24, 52, 512)
    a(f"""
    s_lshl_b32 s55, s54, 1
    v_mov_b32 v50, s55
    v_mov_b32 v108, 0
    v_mov_b32 v78, -1
    v_mov_b32 v72, 0
    s_mov_b32 s64, s52
    s_mov_b32 s65, s53
    s_mov_b32 s66, 512
    s_mov_b32 s67, 0x20000
    v_and_b32 v22, 15, v2
    v_lshlrev_b32 v22, 2, v22
    v_and_b32 v23, 16, v2
    v_lshl_add_u32 v127, v23, 3, v22
    s_waitcnt vmcnt({NT})
    """)
    for j in range(4):
        a(f"buffer_load_dwordx4 {vr(KR+6*j,4)}, v5, s[32:35], 0 offen offset:{1024*j} {nt}")
        a(f"buffer_load_dwordx2 {vr(KR+6*j+4,2)}, v5, s[32:35], 0 offen offset:{1024*j+16} {nt}")
    a(f"""
    buffer_load_ushort v126, v50, s[36:39], 0 offen
    buffer_load_dword v160, v127, s[24:27], 0 offen sc1
    s_branch KA_phaseA
    KA_hpre:
    s_waitcnt lgkmcnt(0)
    """)
    srd(a, 32, 56, 2048); srd(a, 36, 58, 1024*6144*2); srd(a, 64, 52, 512)
    a(f"""
    s_add_u32 s42, s42, 0x9e3779b9
    s_lshl_b32 s58, s45, 2
    v_mov_b32 v72, s58
    s_add_u32 s58, s42, s41
    v_mov_b32 v73, s58
    v_mov_b32 v74, s42
    v_and_b32 v75, 15, v2
    v_lshlrev_b32 v75, 2, v75
    """)
    a(f"""
    v_mov_b32 v127, 0
    s_sub_u32 s60, s3, 4             ; hw
    s_and_b32 s61, s2, 7
    s_mul_i32 s61, s61, 12
    s_lshr_b32 s62, s2, 4
    s_add_u32 s61, s61, s62
    s_bfe_u32 s62, s2, 0x10003       ; k half
    s_lshl_b32 s54, s62, 9
    s_lshl_b32 s55, s60, 7
    s_add_u32 s54, s54, s55
    v_lshl_add_u32 v60, v7, 4, s54
    v_lshlrev_b32 v61, 1, v60
    s_mov_b32 s55, 12288
    v_mul_lo_u32 v108, v60, s55
    s_lshl_b32 s55, s61, 7
    v_lshl_add_u32 v109, v15, 4, s55
    v_add_u32 v108, v108, v109
    s_mov_b32 s16, s10
    s_mov_b32 s17, s11
    s_mov_b32 s18, 0x4000000
    s_lshr_b32 s54, s61, 3
    s_lshl_b32 s54, s54, 11
    s_and_b32 s55, s61, 7
    s_lshl_b32 s55, s55, 7
    s_add_u32 s54, s54, s55
    s_add_u32 s54, s54, {WS_MOD}
    v_bfe_u32 v78, v2, 2, 1
    v_lshlrev_b32 v78, 10, v78
    v_lshl_add_u32 v78, v7, 4, v78
    v_and_b32 v79, 3, v2
    v_lshl_add_u32 v78, v79, 2, v78
    v_add_u32 v78, s54, v78
    v_mov_b32 v80, 0
    s_mul_i32 s54, s2, {FL2_BYTES//256}
    s_sub_u32 s55, s60, 1
    s_lshl_b32 s55, s55, 8
    s_add_u32 s54, s54, s55
    s_add_u32 s54, s54, {WS_FL2}
    v_lshl_add_u32 v79, v2, 2, s54
    s_lshl_b32 s55, s60, 6
    v_add_u32 v81, s55, v2
    v_cmp_gt_u32 vcc, {64 + FL2_BYTES//1024}, v81
    v_mov_b32 v81, 0x4000000
    s_cmp_lt_u32 s2, 192
    s_cselect_b32 s54, s62, 1
    v_cndmask_b32 v79, v81, v79, vcc
    s_cmp_lg_u32 s60, 0
    s_cbranch_scc1 KA_z1
    s_cmp_eq_u32 s54, 0
    s_cselect_b64 vcc, -1, 0
    v_cndmask_b32 v79, v81, v78, vcc
    KA_z1:
    buffer_store_dword v80, v79, s[16:19], 0 offen sc1
    buffer_load_dwordx4 v[64:67], v61, s[32:35], 0 offen
    buffer_load_dwordx4 v[68:71], v61, s[32:35], 0 offen offset:16
    s_waitcnt vmcnt({3+NT})
    KA_phaseA:
    """)
    stamp(a, 0)
    a("""
    v_lshrrev_b32 v5, 4, v2          ; g
    v_bfe_u32 v10, v2, 2, 2
    v_and_b32 v11, 3, v2
    v_lshlrev_b32 v10, 7, v10
    v_lshl_add_u32 v10, v5, 5, v10
    v_lshl_add_u32 v10, v11, 3, v10
    v_add_u32 v5, s49, v10
    """)
    for p in range(5):
        a(f"ds_read_b64_tr_b16 {vr(16+2*p,2)}, v5 offset:{512+512*p}")
    for p in range(4):
        a(f"ds_read_b64_tr_b16 {vr(26+2*p,2)}, v5 offset:{3072+512*p}")
    a("""
    v_alignbit_b32 v10, v8, v8, 16   ; A=(w1,w0)
    v_alignbit_b32 v11, v9, v9, 16   ; B=(w3,w2)
    v_and_b32 v12, 0xffff, v8        ; C=(w0,0)
    s_mov_b32 s55, 0xffff
    v_bfi_b32 v13, s55, v9, v8       ; D=(w2,w1)
    v_and_b32 v14, 0xffff0000, v9    ; E=(0,w3)
    s_waitcnt lgkmcnt(4)
    """)
    P = lambda q: 16 + q + 2
    ks = lambda t: 34 + t
    for q in range(8):
        a(f"v_dot2_f32_bf16 v{ks(2*q)}, v{P(q)}, v12, 0")
        a(f"v_dot2_f32_bf16 v{ks(2*q+1)}, v{P(q)}, v10, 0")
    for q in range(8):
        a(f"v_dot2_f32_bf16 v{ks(2*q)}, v{P(q-1)}, v13, v{ks(2*q)}")
        a(f"v_dot2_f32_bf16 v{ks(2*q+1)}, v{P(q-1)}, v11, v{ks(2*q+1)}")
    for q in range(8):
        a(f"v_dot2_f32_bf16 v{ks(2*q)}, v{P(q-2)}, v14, v{ks(2*q)}")
    a("s_waitcnt lgkmcnt(0)")
    for h in range(2):
        for q in range(4*h, 4*h+4):
            a(f"v_lshlrev_b32 v{110+2*q}, 16, v{26+q}")
            a(f"v_and_b32 v{111+2*q}, 0xffff0000, v{26+q}")
        for t in range(8*h, 8*h+8):
            a(f"v_mul_f32 v{ks(t)}, v{ks(t)}, v{110+t}")
        for j in range(4):
            a(f"v_cvt_pk_bf16_f32 v{52+4*h+j}, v{ks(8*h+7-2*j)}, v{ks(8*h+6-2*j)}")
        a(f"buffer_store_dwordx4 {vr(52+4*h,4)}, v6, s[28:31], 0 offen offset:{64*h} {'' if cfg.ul2 else 'sc1'}")
    stamp(a, 1)
    a("""
    s_cmp_ge_u32 s3, 4
    s_cbranch_scc1 KA_helper
    """)
    srd(a, 20, 10, HB, WS_H)
    a(f"""
    s_mul_i32 s49, s3, {CH_STR}      ; chbase
    s_lshr_b32 s47, s43, 5
    s_mul_i32 s47, s47, 112
    s_bfe_u32 s48, s43, 0x30002
    s_mul_i32 s60, s48, 7
    s_add_u32 s47, s47, s60
    s_and_b32 s48, s48, 1
    s_add_u32 s47, s47, s48
    s_and_b32 s48, s43, 3
    s_add_u32 s47, s47, s48
    s_lshl_b32 s47, s47, 10
    s_mul_i32 s48, s3, {4*BS}
    s_add_u32 s48, s48, s47
    v_lshl_add_u32 v4, v2, 4, s48    ; U / Y offset
    s_mov_b32 s60, {BS}
    s_mov_b32 s61, {2*BS}
    s_mov_b32 s62, {3*BS}
    v_and_b32 v7, 3, v2
    v_mul_u32_u24 v7, {UR_STR}, v7
    v_lshrrev_b32 v8, 2, v2
    v_lshlrev_b32 v8, 4, v8
    v_sub_u32 v7, v7, v8
    s_lshl_b32 s50, s3, 10
    s_sub_u32 s50, {UR_BASE + 255*16 - 3*256}, s50
    v_add_u32 v7, s50, v7
    v_mov_b32 v12, 0
    v_mov_b32 v13, 0
    v_mov_b32 v14, 0
    v_mov_b32 v15, 0
    s_mul_i32 s51, s3, {UR_STR}
    s_add_u32 s51, s51, {UR_BASE}    ; URc
    v_lshl_add_u32 v8, v2, 4, s51
    s_mov_b64 exec, 0x3fffffff
    ds_write_b128 v8, v[12:15] offset:4096
    s_mov_b64 exec, -1
    v_lshl_add_u32 v9, v2, 4, s49
    v_and_b32 v10, 15, v2            ; i' / a'
    v_lshrrev_b32 v11, 4, v2         ; g
    v_add_u32 v16, 1, v10
    v_and_b32 v17, 3, v16
    v_sub_u32 v16, v16, v17
    v_lshlrev_b32 v16, 1, v16
    v_mul_u32_u24 v17, {CP_STR}, v17
    v_add_u32 v16, v16, v17
    v_lshl_add_u32 v16, v11, 4, v16
    v_add_u32 v16, s49, v16          ; vA
    v_lshlrev_b32 v17, 5, v10
    v_sub_u32 v17, 480, v17
    v_lshl_add_u32 v17, v11, 4, v17
    v_add_u32 v17, s51, v17          ; vB
    v_lshlrev_b32 v18, 3, v11
    v_add_u32 v18, v18, v10
    v_sub_u32 v18, 15, v18
    v_mov_b32 v22, v127
    s_lshl_b32 s50, s45, 2
    v_mov_b32 v23, s50
    v_mov_b32 v28, s42
    s_add_u32 s50, s42, s41
    v_mov_b32 v30, s50
    v_cmp_le_u32 vcc, 128, v22
    s_nop 1
    v_cndmask_b32 v30, v30, v28, vcc
    """)
    for j in range(4):
        E = KR+6*j
        a(f"s_waitcnt vmcnt({4+2*(3-j)})")
        o1, o2, o3 = 64+12*j, 68+12*j, 72+12*j
        a(f"ds_write_b128 v9, {vr(E,4)} offset:{32+1024*j}")
        for i in range(4): a(f"v_alignbit_b32 v{o1+i}, v{E+i+1}, v{E+i}, 16")
        a(f"ds_write_b128 v9, {vr(o1,4)} offset:{CP_STR+32+1024*j}")
        for i in range(4): a(f"v_mov_b32 v{o2+i}, v{E+i+1}")
        a(f"ds_write_b128 v9, {vr(o2,4)} offset:{2*CP_STR+32+1024*j}")
        for i in range(4): a(f"v_alignbit_b32 v{o3+i}, v{E+i+2}, v{E+i+1}, 16")
        a(f"ds_write_b128 v9, {vr(o3,4)} offset:{3*CP_STR+32+1024*j}")
    a(f"""
    s_waitcnt vmcnt(0)
    s_barrier
    """)
    stamp(a, 2)
    a(f"""
    v_readfirstlane_b32 s54, v{KR}
    v_readfirstlane_b32 s55, v{KR+1}
    s_nop 1
    s_lshl_b32 s56, s54, 16
    s_lshr_b32 s57, s54, 16
    s_lshl_b32 s58, s55, 16
    s_or_b32 s57, s57, s58
    v_writelane_b32 v15, s56, 3
    v_writelane_b32 v15, s54, 5
    v_writelane_b32 v14, s56, 7
    v_writelane_b32 v15, s57, 7
    v_lshrrev_b32 v19, 1, v2
    v_mul_u32_u24 v19, {CP_STR}, v19
    v_and_b32 v20, 1, v2
    v_lshl_add_u32 v19, v20, 4, v19
    v_add_u32 v19, s49, v19
    s_mov_b64 exec, 0xff
    ds_write_b128 v19, v[12:15]
    s_mov_b64 exec, -1
    v_lshlrev_b32 v21, 16, v126
    """)
    for j in range(4):
        a(f"v_cmp_eq_u32 vcc, {2*j}, v18")
        a("s_nop 1")
        a(f"v_cndmask_b32 v{24+j}, 0, v126, vcc")
        a(f"v_cmp_eq_u32 vcc, {2*j+1}, v18")
        a("s_nop 1")
        a(f"v_cndmask_b32 v{24+j}, v{24+j}, v21, vcc")
    ACC = 192
    FA = lambda s, w: 32 + 64*s + 4*w
    FB = lambda s, v: 64 + 64*s + 4*v
    def readsA(z0):
        s = z0 & 1
        R = []
        for i in range(8):
            R.append(f"ds_read_b64 {vr(FA(s,i),2)}, v16 offset:{512*i+64*z0}")
            R.append(f"ds_read_b64 {vr(FA(s,i)+2,2)}, v16 offset:{512*i+64*z0+8}")
        return R
    def readsB(z0):
        s = z0 & 1
        return [f"ds_read_b128 {vr(FB(s,i),4)}, v17 offset:{512*(7-i)+64*z0}" for i in range(8)]
    a("s_waitcnt lgkmcnt(0)")
    for r in readsA(0): a(r)
    a(f"""
    s_mov_b32 s59, 0
    s_cmp_eq_u32 s3, 0
    s_cselect_b32 s58, {cfg.relpoll if cfg.ul2 else -1}, -1
    KA_poll:
    s_cmp_lg_u32 s59, s58
    s_cbranch_scc1 KA_norel
    buffer_wbl2 sc1
    s_waitcnt vmcnt(0)
    s_mov_b64 exec, 1
    buffer_store_dword v28, v23, s[24:27], 0 offen offset:128 sc1
    s_mov_b64 exec, -1
    KA_norel:
    buffer_load_dword v29, v22, s[24:27], 0 offen sc1
    s_add_u32 s59, s59, 1
    s_waitcnt vmcnt(0)
    v_cmp_eq_u32 vcc, v30, v29
    s_cmp_gt_u32 s59, {SPIN_MAX}
    s_cbranch_scc1 KA_poll_x
    s_lshr_b32 s57, vcc_lo, 16
    s_or_b32 s57, s57, vcc_lo
    s_and_b32 s57, s57, 0xffff
    s_cmp_lg_u32 s57, 0xffff
    s_cbranch_scc1 KA_poll
    KA_poll_x:
    s_and_b32 s57, vcc_lo, 0xffff
    s_cmp_eq_u32 s57, 0xffff
    s_cbranch_scc1 KA_near
    s_cmp_gt_u32 s59, s58
    s_cbranch_scc1 KA_acq
    s_cmp_lg_u32 s3, 0
    s_cbranch_scc1 KA_acq
    buffer_wbl2 sc1
    s_waitcnt vmcnt(0)
    s_mov_b64 exec, 1
    buffer_store_dword v28, v23, s[24:27], 0 offen offset:128 sc1
    s_mov_b64 exec, -1
    KA_acq:
    buffer_inv sc1
    s_waitcnt vmcnt(0)
    KA_near:
    """)
    for j in range(4):
        a(f"buffer_load_dwordx4 {vr(176+4*j,4)}, v4, s[28:31], {['0','s60','s61','s62'][j]} offen sc1")
    a("s_barrier")
    stamp(a, 3)
    for j in range(4):
        a(f"s_waitcnt vmcnt({3-j})" if j < 3 else "s_waitcnt vmcnt(0)")
        a(f"ds_write_b128 v7, {vr(176+4*j,4)} offset:{256*(3-j)}")
    a("s_waitcnt lgkmcnt(0)")
    a("s_barrier")
    stamp(a, 4)
    for r in readsB(0): a(r)
    a(f"""
    s_lshr_b32 s58, s2, 3
    s_lshl_b32 s58, s58, 2
    s_add_u32 s58, s58, s3
    s_cmp_eq_u32 s58, 124
    s_cselect_b32 s58, {cfg.ka_wb}, 99
    """)
    for n in range(8):
        a(f"s_waitcnt lgkmcnt({7-n})")
        a(f"v_mfma_f32_16x16x32_bf16 {vr(ACC+4*n,4)}, v[24:27], {vr(FB(0,n),4)}, 0")
    a("s_mov_b32 s59, 0")
    a("KA_loop:")
    if cfg.ka_wb:
        a("""
        s_cmp_lg_u32 s59, s58
        s_cbranch_scc1 KA_nowb
        buffer_wbl2 sc1
        KA_nowb:
        """)
    for z0 in range(2):
        s = z0 & 1
        ra, rb = readsA(z0+1), readsB(z0+1)
        R = ra[:2] + rb + ra[2:]
        if z0 == 1: R += ["v_add_u32 v16, 128, v16", "v_add_u32 v17, 128, v17", "s_add_u32 s59, s59, 1", "s_cmp_lt_u32 s59, 4"]
        M = [(w, v) for w in range(8) for v in range(8-w)]
        for i, (w, v) in enumerate(M):
            if i == 35: a("s_waitcnt lgkmcnt(0)")
            if i == 30: a("s_barrier")
            if "nomfA" in cfg.exp: a("s_nop 3")
            else: a(f"v_mfma_f32_16x16x32_bf16 {vr(ACC+4*(w+v),4)}, {vr(FA(s,w),4)}, {vr(FB(s,v),4)}, {vr(ACC+4*(w+v),4)}")
            if i < len(R): a(R[i])
    a("s_cbranch_scc1 KA_loop")
    stamp(a, 5)
    a(f"""
    v_lshlrev_b32 v20, 5, v10
    v_lshl_add_u32 v20, v11, 3, v20
    v_add_u32 v20, s49, v20
    s_lshl_b32 s50, s3, 10
    v_lshl_add_u32 v21, v2, 2, s50
    s_mov_b32 s56, 0x05040100
    s_mov_b32 s57, 0x07060302
    """)
    for n in range(8):
        a(f"v_cvt_pk_bf16_f32 v{32+2*n}, v{ACC+4*n}, v{ACC+4*n+1}")
        a(f"v_cvt_pk_bf16_f32 v{33+2*n}, v{ACC+4*n+2}, v{ACC+4*n+3}")
        a(f"ds_write_b64 v20, {vr(32+2*n,2)} offset:{512*n}")
    a("s_waitcnt lgkmcnt(0)")
    a("s_barrier")
    for j in range(4):
        a(f"ds_read2st64_b32 {vr(64+4*j,2)}, v21 offset0:{j} offset1:{65+j}")
        a(f"ds_read2st64_b32 {vr(66+4*j,2)}, v21 offset0:{130+j} offset1:{195+j}")
    for j in range(4):
        a(f"s_waitcnt lgkmcnt({6-2*j})")
        b = 64+4*j; o = 96+4*j
        a(f"v_perm_b32 v{o}, v{b+1}, v{b}, s56")
        a(f"v_perm_b32 v{o+1}, v{b+3}, v{b+2}, s56")
        a(f"v_perm_b32 v{o+2}, v{b+1}, v{b}, s57")
        a(f"v_perm_b32 v{o+3}, v{b+3}, v{b+2}, s57")
        a(f"buffer_store_dwordx4 {vr(o,4)}, v4, s[20:23], {['0','s60','s61','s62'][j]} offen {cfg.st_pol}")
    a(f"""
    s_or_b32 s59, s3, s45
    s_cmp_lg_u32 s59, 0
    s_cbranch_scc1 KA_noep
    s_mov_b64 exec, 1
    buffer_store_dword v28, v23, s[24:27], 0 offen offset:256 sc1
    KA_noep:
    """)
    fin(a, kidx)
    NB1 = cfg.nb1
    WR = 128
    a("KA_helper:")
    a(f"""
    s_mov_b32 s63, 12288
    s_cmp_lt_u32 s2, 192
    s_cbranch_scc1 KA_isgemv
    s_mov_b32 s36, s6
    s_mov_b32 s37, s7
    s_mov_b32 s38, {MB4 if cfg.qwarm else 0}
    """)
    if cfg.map == "8x1":
        a("""
        s_and_b32 s54, s2, 7
        s_lshl_b32 s54, s54, 3
        s_lshr_b32 s55, s2, 3
        s_sub_u32 s55, s55, 24
        s_add_u32 s54, s54, s55
        """)
    else:
        a("""
    s_bfe_u32 s54, s2, 0x20001
    s_lshl_b32 s54, s54, 3
    s_lshr_b32 s55, s2, 3
    s_sub_u32 s55, s55, 24
    s_add_u32 s54, s54, s55
    s_lshl_b32 s54, s54, 1
    s_and_b32 s55, s2, 1
    s_add_u32 s54, s54, s55
        """)
    a(f"""
    s_lshl_b32 s54, s54, 16
    s_lshl_b32 s55, s60, 14
    s_add_u32 s54, s54, s55
    v_lshl_add_u32 v108, v2, 4, s54
    s_mov_b32 s63, 1024
    KA_isgemv:
    s_mov_b32 s55, 0
    """)
    def wload(i):
        a(f"buffer_load_dwordx4 {vr(WR+4*i,4)}, v108, s[36:39], s55 offen {nt}")
        a("s_add_u32 s55, s55, s63")
    for i in range(NB1): wload(i)
    a(f"s_waitcnt vmcnt({2+NB1})")
    for q in range(8):
        a(f"v_lshlrev_b32 v{16+2*q}, 16, v{64+q}")
        a(f"v_and_b32 v{17+2*q}, 0xffff0000, v{64+q}")
    for i in range(16): a(f"v_mul_f32 v{32+i}, {f32(-LOG2E)}, v{16+i}")
    for i in range(16): a(f"v_exp_f32 v{32+i}, v{32+i}")
    a(f"""
    s_waitcnt vmcnt({NB1})
    s_barrier
    s_cmp_lg_u32 s60, 0
    s_cbranch_scc1 KA_nopost
    s_mov_b64 exec, 1
    buffer_store_dword v73, v72, s[64:67], 0 offen
    """)
    if not cfg.ul2: a("buffer_store_dword v74, v72, s[64:67], 0 offen offset:128 sc1")
    a("s_mov_b64 exec, -1")
    a("KA_nopost:")
    for i in range(16): a(f"v_add_f32 v{32+i}, 1.0, v{32+i}")
    for i in range(16): a(f"v_rcp_f32 v{32+i}, v{32+i}")
    for i in range(16): a(f"v_mul_f32 v{16+i}, v{16+i}, v{32+i}")
    for q in range(8): a(f"v_cvt_pk_bf16_f32 v{96+q}, v{16+2*q}, v{17+2*q}")
    for q in range(8):
        a(f"v_lshlrev_b32 v{16+2*q}, 16, v{96+q}")
        a(f"v_and_b32 v{17+2*q}, 0xffff0000, v{96+q}")
    a("s_barrier")
    stamp(a, 2)
    NB2 = min(16, NB1 + cfg.nb2)
    for i in range(NB1, NB2): wload(i)
    a("s_barrier")
    npf = 0
    if cfg.ka_code:
        a("""
        s_getpc_b64 s[68:69]
        KA_pcref:
        s_lshr_b32 s54, s2, 3
        s_lshl_b32 s54, s54, 2
        s_add_u32 s54, s54, s60
        s_lshl_b32 s54, s54, 6
        s_add_u32 s54, s54, km_kernel-KA_pcref
        s_load_dword s70, s[68:69], s54
        """)
    if cfg.spq:
        srd(a, 24, 6, MB4)
        a(f"""
        s_bfe_u32 s54, s2, 0x20001
        s_lshl_b32 s54, s54, 2
        s_lshr_b32 s56, s2, 6
        s_add_u32 s54, s54, s56          ; mt
        s_lshl_b32 s54, s54, 1
        s_bfe_u32 s56, s2, 0x10005
        s_add_u32 s54, s54, s56
        s_lshl_b32 s54, s54, 1
        s_and_b32 s56, s2, 1
        s_add_u32 s54, s54, s56
        s_lshl_b32 s54, s54, 2
        s_bfe_u32 s56, s2, 0x20003
        s_add_u32 s54, s54, s56
        s_lshl_b32 s54, s54, 14
        s_lshl_b32 s56, s60, 12
        s_add_u32 s54, s54, s56
        v_lshl_add_u32 v109, v2, 4, s54
        """)
    else:
        srd(a, 24, 8, 1024*3584*2)
        a(f"""
        s_mul_i32 s54, s2, 28672
        s_mul_i32 s56, s60, 7168
        s_add_u32 s54, s54, s56
        v_lshl_add_u32 v109, v2, 4, s54
        s_mov_b32 s54, 4096
        """)
    def pfload(i):
        a(f"buffer_load_dwordx4 {vr(192+4*i,4)}, v109, s[24:27], {'0' if i < 4 else 's54'} offen offset:{1024*(i%4)}")
    sg = [int(x) for x in cfg.sg.split(",")]; sp = [int(x) for x in cfg.sp.split(",")]
    assert NB2 + sum(sg) == 16 and len(sg) == 9 and len(sp) == 9
    def sentinel():
        a(f"""
        s_lshl_b32 s56, s2, 14
        s_lshl_b32 s57, s60, 12
        s_add_u32 s56, s56, s57
        s_add_u32 s56, s56, {WS_EX}
        v_lshl_add_u32 v82, v2, 4, s56
        v_mov_b32 v84, -1
        v_mov_b32 v85, -1
        v_mov_b32 v86, -1
        v_mov_b32 v87, -1
        """)
        for i in range(4):
            a(f"buffer_store_dwordx4 v[84:87], v82, s[16:19], 0 offen offset:{1024*i} sc1"); order.append(-1)
    order = list(range(NB2))
    when = {i: -9 for i in range(NB2)}
    done = 0; ng = NB2; npf = 0
    def fma(i):
        a(f"s_waitcnt vmcnt({len(order) - 1 - order.index(i)})")
        t = 48 + 8*(i & 1)
        for j in range(4):
            a(f"v_lshlrev_b32 v{t+2*j}, 16, v{WR+4*i+j}")
            a(f"v_and_b32 v{t+2*j+1}, 0xffff0000, v{WR+4*i+j}")
        for j in range(8):
            if i == 0: a(f"v_mul_f32 v{32+j}, v{t+j}, v16")
            else: a(f"v_fmac_f32 v{32+j}, v{t+j}, v{16+i}")
    for st_ in range(9):
        if st_: a("s_barrier")
        if cfg.sentat == 10 + st_: sentinel()
        for _ in range(sg[st_]):
            wload(ng); order.append(ng); when[ng] = st_; ng += 1
        for _ in range(sp[st_]):
            pfload(npf); order.append(-1); npf += 1
        n = 0
        while done < ng and (st_ == 8 or (n < 3 and when[done] <= st_ - cfg.lag and st_ >= 1)):
            fma(done); done += 1; n += 1
    stamp(a, 3)
    a("s_nop 3")
    for j in range(4): a(f"v_permlane32_swap_b32 v{32+j}, v{36+j}")
    a("s_nop 1")
    for j in range(4): a(f"v_add_f32 v{32+j}, v{32+j}, v{36+j}")
    a("s_nop 1")
    for j in range(2): a(f"v_permlane16_swap_b32 v{32+j}, v{34+j}")
    a("s_nop 1")
    for j in range(2): a(f"v_add_f32 v{32+j}, v{32+j}, v{34+j}")
    a("s_nop 1")
    for j in range(2): a(f"v_add_f32_dpp v{32+j}, v{32+j}, v{32+j} row_ror:8 row_mask:0xf bank_mask:0xf")
    a(f"""
    v_lshrrev_b32 v40, 4, v2
    v_lshlrev_b32 v40, 3, v40
    v_lshl_add_u32 v40, v15, 5, v40
    s_lshl_b32 s56, s60, 8
    s_add_u32 s56, s56, {RED}
    v_add_u32 v40, s56, v40
    ds_write_b64 v40, v[32:33]
    v_lshlrev_b32 v41, 2, v2
    v_add_u32 v42, {RED}, v41
    s_lshr_b32 s56, s61, 4
    s_lshl_b32 s56, 1, s56
    s_and_b32 s56, s56, 0x12
    s_cselect_b32 s56, 1.0, 0
    s_cmp_eq_u32 s62, 0
    s_cselect_b32 s56, s56, 0
    s_waitcnt lgkmcnt(0)
    s_barrier
    s_cmp_lg_u32 s60, 0
    s_cbranch_scc1 KA_end
    s_cmp_lt_u32 s2, 192
    s_cbranch_scc0 KA_end
    """)
    for w in range(4): a(f"ds_read_b32 v{32+w}, v42 offset:{256*w}")
    a(f"""
    s_waitcnt lgkmcnt(0)
    v_add_f32 v32, v32, v33
    v_add_f32 v34, v34, v35
    v_add_f32 v32, v32, v34
    v_add_f32 v32, s56, v32
    buffer_atomic_add_f32 v32, v78, s[16:19], 0 offen
    """)
    fin(a, kidx, "KA_end")
    return dict(name="ka_kernel", body=a.text(), vgpr=224, sgpr=72, grid=256, block=512, lds=RED+1024)
```

```python
from asmlib import *
from gen import *
from gemm import interleave

FL_R  = WS_FL2
FL_HN = FL_R + 32768
FL_HF = FL_HN + 4096
FL_HA = FL_HF + 4096
FL_X  = FL_HA + 4096
WSZ = 0x4000000
SPIN_MAX = 1 << 16

def wave_stats2(a, s, t, mean_rs, rstd, inv):
    a(f"v_add_f32 v{s}, v{s}, v{s+1}")
    a(f"v_add_f32 v{s+2}, v{s+2}, v{s+3}")
    steps = ["quad_perm:[1,0,3,2] row_mask:0xf", "quad_perm:[2,3,0,1] row_mask:0xf", "row_half_mirror row_mask:0xf",
             "row_mirror row_mask:0xf", "row_bcast:15 row_mask:0xa", "row_bcast:31 row_mask:0xc"]
    a("s_nop 0")
    for st in steps:
        a(f"v_add_f32_dpp v{s}, v{s}, v{s} {st} bank_mask:0xf")
        a(f"v_add_f32_dpp v{s+2}, v{s+2}, v{s+2} {st} bank_mask:0xf")
        a("s_nop 0")
    a(f"""
    v_readlane_b32 s60, v{s}, 63
    v_readlane_b32 s61, v{s+2}, 63
    s_nop 0
    v_mul_f32 v{t}, s60, v{inv}
    v_mul_f32 v{rstd}, s61, v{inv}
    v_fma_f32 v{rstd}, -v{t}, v{t}, v{rstd}
    v_max_f32 v{rstd}, 0, v{rstd}
    v_add_f32 v{rstd}, {f32(1e-5)}, v{rstd}
    v_rsq_f32 v{rstd}, v{rstd}
    s_nop 0
    v_mul_f32_e64 v{mean_rs}, -v{t}, v{rstd}
    """)

def gen_km(kidx=3):
    a = Asm()
    SLOT, NS, NST = 45056, 3, 16
    BF, BH = 16384, 16384 + 24576
    S2, NS2, NST2, BB = 32768, 5, 28, 16384
    YL, MODL = 2*SLOT, 3*SLOT
    YP = cfg.yp
    WS = "s[20:23]"
    head(a, 256, "KM_end")
    a(f"""
    s_load_dwordx2 s[16:17], s[0:1], {KQ}
    s_load_dwordx2 s[20:21], s[0:1], {KWS}
    s_load_dwordx4 s[4:7], s[0:1], {KW1}
    s_load_dwordx4 s[12:15], s[0:1], {KW2}
    s_load_dwordx2 s[8:9], s[0:1], {KOUT}
    v_lshrrev_b32 v1, 6, v0
    v_and_b32 v2, 63, v0
    v_readfirstlane_b32 s3, v1
    s_and_b32 s44, s2, 7
    s_lshr_b32 s45, s2, 3
    """)
    if cfg.map == "4x2":
        a("""
        s_lshr_b32 s46, s44, 1
        s_lshl_b32 s46, s46, 2
        s_lshr_b32 s47, s45, 3
        s_add_u32 s46, s46, s47          ; mt
        s_and_b32 s44, s44, 1            ; fh
        s_and_b32 s45, s45, 7            ; nt
        s_lshl_b32 s47, s44, 3
        s_add_u32 s47, s47, s45          ; nc
        """)
    elif cfg.map == "4x2b":
        a("""
        s_lshr_b32 s46, s44, 1
        s_lshl_b32 s46, s46, 2
        s_and_b32 s47, s45, 3
        s_add_u32 s46, s46, s47          ; mt
        s_and_b32 s44, s44, 1            ; fh
        s_lshr_b32 s45, s45, 2           ; nt
        s_lshl_b32 s47, s44, 3
        s_add_u32 s47, s47, s45          ; nc
        """)
    elif cfg.map == "8x1":
        a("""
        s_lshl_b32 s46, s44, 1
        s_lshr_b32 s47, s45, 4
        s_add_u32 s46, s46, s47          ; mt
        s_and_b32 s47, s45, 15           ; nc
        s_lshr_b32 s44, s47, 3           ; fh
        s_and_b32 s45, s47, 7            ; nt
        """)
    else:
        a("""
        s_lshr_b32 s46, s44, 2
        s_lshl_b32 s46, s46, 3
        s_lshr_b32 s47, s45, 2
        s_add_u32 s46, s46, s47          ; mt
        s_and_b32 s47, s44, 3
        s_lshl_b32 s47, s47, 2
        s_and_b32 s45, s45, 3
        s_add_u32 s47, s47, s45          ; nc
        s_lshr_b32 s44, s47, 3           ; fh
        s_and_b32 s45, s47, 7            ; nt
        """)
    a(f"""
    s_lshr_b32 s52, s45, 2
    s_lshl_b32 s52, s52, 3
    s_lshl_b32 s53, s44, 2
    s_add_u32 s52, s52, s53
    s_and_b32 s53, s45, 3
    s_add_u32 s52, s52, s53
    s_lshl_b32 s53, s46, 4
    s_add_u32 s53, s52, s53
    s_lshl_b32 s53, s53, 3
    s_add_u32 s53, s53, s3           ; row
    s_mul_i32 s54, s53, {YP}
    v_lshl_add_u32 v38, v2, 4, s54
    s_lshl_b32 s53, s53, 11
    v_lshl_add_u32 v3, v2, 4, s53
    v_lshrrev_b32 v4, 2, v2
    v_and_b32 v5, 7, v4
    v_lshlrev_b32 v5, 1, v5
    v_lshrrev_b32 v4, 3, v4
    v_add_u32 v5, v5, v4             ; G (0..15)
    v_lshrrev_b32 v6, 3, v5
    v_and_b32 v7, 3, v2
    v_xor_b32 v6, v6, v7
    v_lshrrev_b32 v4, 2, v5
    v_and_b32 v7, 1, v4
    v_mad_u32_u24 v4, v4, 7, v7
    v_and_b32 v5, 3, v5
    v_add_lshl_u32 v5, v5, v4, 10
    s_lshl_b32 s54, s46, 3
    s_add_u32 s54, s54, s3
    s_mul_i32 s54, s54, {112*1024}
    s_lshl_b32 s55, s52, 6
    s_add_u32 s54, s54, s55
    s_add_u32 s54, s54, {WS_H}
    v_add_u32 v5, s54, v5
    v_lshl_add_u32 v8, v6, 4, v5
    v_xor_b32 v6, 2, v6
    v_lshl_add_u32 v9, v6, 4, v5
    v_lshlrev_b32 v10, 4, v0
    s_mov_b32 s49, 28672
    s_mov_b32 s18, {MB4}
    s_mov_b32 s19, 0x20000
    s_mov_b32 s22, {WSZ}
    s_mov_b32 s23, 0x20000
    s_lshl_b32 s55, s3, 11
    s_add_u32 s55, s55, {YL}
    s_lshl_b32 s56, s3, 10
    s_add_u32 s56, s56, {MODL}
    s_mov_b32 s57, {WS_MOD}
    s_mov_b32 s58, {WS_MOD+8192}
    s_mov_b32 s59, {WS_MOD+16384}
    s_mov_b32 m0, s55
    s_waitcnt lgkmcnt(0)
    buffer_load_dwordx4 v[40:43], v3, s[16:19], 0 offen
    buffer_load_dwordx4 v[44:47], v3, s[16:19], 0 offen offset:1024
    buffer_load_dwordx4 v8, {WS}, 0 offen lds
    s_add_u32 m0, s55, 1024
    s_mov_b32 s24, s4
    buffer_load_dwordx4 v9, {WS}, s49 offen lds
    s_mov_b32 m0, s56
    s_mov_b32 s25, s5
    buffer_load_dwordx4 v10, {WS}, s57 offen lds
    s_add_u32 m0, s56, 8192
    s_mov_b32 s26, {1024*3584*2}
    buffer_load_dwordx4 v10, {WS}, s58 offen lds
    s_add_u32 m0, s56, 16384
    s_mov_b32 s27, 0x20000
    s_cmp_ge_u32 s3, 4
    s_cbranch_scc1 KM_m3
    buffer_load_dwordx4 v10, {WS}, s59 offen lds
    KM_m3:
    s_and_b32 s48, s47, 1            ; parity
    s_mul_i32 s49, s47, 448
    s_lshl_b32 s50, s48, 6
    s_add_u32 s50, s50, s49
    s_cmp_eq_u32 s48, 0
    s_cselect_b32 s51, 384, 0
    s_add_u32 s51, s51, s49
    s_mul_i32 s55, s2, 28672
    v_add_u32 v11, s55, v10
    s_mov_b32 s55, 8192
    s_mov_b32 s56, 16384
    s_mov_b32 s57, 20480
    s_barrier
    """)
    NPF = 4 if cfg.km_pf == 1 else 0
    if cfg.km_pf == 1:
        for i, so in enumerate(["0", "s55", "s56", "s57"]):
            a(f"buffer_load_dwordx4 {vr(144+4*i,4)}, v11, s[24:27], {so} offen")
    Q, Y, T, M0, M1, M2, INV = 48, 64, 80, 16, 96, 128, 126
    a(f"""
    v_mov_b32 v{INV}, {f32(1.0/1024)}
    v_lshrrev_b32 v4, 3, v2
    v_lshlrev_b32 v4, 10, v4
    v_and_b32 v5, 7, v2
    v_lshl_add_u32 v4, v5, 6, v4
    v_bfe_u32 v5, v2, 2, 2
    s_lshr_b32 s56, s3, 1
    v_xor_b32 v5, s56, v5
    v_lshl_add_u32 v4, v5, 4, v4
    s_and_b32 s56, s3, 1
    s_lshl_b32 s56, s56, 3
    s_add_u32 s56, s56, {YL}
    v_add_u32 v4, s56, v4
    v_lshlrev_b32 v5, 4, v2
    v_add_u32 v5, {MODL}, v5
    s_mov_b32 s58, {WS_Y2}
    s_mov_b32 s59, {WS_X1}
    s_waitcnt vmcnt({4+NPF})
    """)
    def unpack(dst, src):
        for j in range(8):
            a(f"v_lshlrev_b32 v{dst+2*j}, 16, v{src+j}")
            a(f"v_and_b32 v{dst+2*j+1}, 0xffff0000, v{src+j}")
    def stats(X):
        a(f"v_pk_add_f32 v[6:7], {vr(X,2)}, {vr(X+2,2)}")
        a(f"v_pk_mul_f32 v[8:9], {vr(X,2)}, {vr(X,2)}")
        a(f"v_pk_fma_f32 v[8:9], {vr(X+2,2)}, {vr(X+2,2)}, v[8:9]")
        for j in range(4, 16, 2):
            a(f"v_pk_add_f32 v[6:7], v[6:7], {vr(X+j,2)}")
            a(f"v_pk_fma_f32 v[8:9], {vr(X+j,2)}, {vr(X+j,2)}, v[8:9]")
        wave_stats2(a, 6, 10, 13, 12, INV)
    def norm(D, X):
        for j in range(0, 16, 2): a(f"v_pk_fma_f32 {vr(D+j,2)}, {vr(X+j,2)}, v[12:13], v[12:13] op_sel:[0,0,1] op_sel_hi:[1,0,1]")
    def modread(vec, dst):
        for h in range(2):
            for half in range(2):
                a(f"ds_read_b128 {vr(dst+8*h+4*half,4)}, v5 offset:{4096*vec+2048*h+1024*half}")
    unpack(Q, 40)
    stats(Q)
    norm(T, Q)
    a(f"s_waitcnt vmcnt({NPF})")
    a("s_barrier")
    stamp(a, 0)
    modread(1, M0); modread(0, M1)
    for h in range(2):
        for e in range(2):
            a(f"ds_read_b64 {vr(40+4*h+2*e,2)}, v4 offset:{8192*h+512*e}")
    a("s_waitcnt lgkmcnt(4)")
    modread(2, M2)
    for j in range(0, 16, 2): a(f"v_pk_fma_f32 {vr(T+j,2)}, {vr(T+j,2)}, {vr(M0+j,2)}, {vr(M1+j,2)}")
    a("s_waitcnt lgkmcnt(4)")
    modread(4, M0); modread(3, M1)
    unpack(Y, 40)
    for j in range(0, 16, 2): a(f"v_pk_mul_f32 {vr(T+j,2)}, {vr(T+j,2)}, {vr(Y+j,2)}")
    a("s_waitcnt lgkmcnt(8)")
    for j in range(0, 16, 2): a(f"v_pk_fma_f32 {vr(Q+j,2)}, {vr(T+j,2)}, {vr(M2+j,2)}, {vr(Q+j,2)}")
    stats(Q)
    norm(T, Q)
    a("s_waitcnt lgkmcnt(0)")
    for j in range(0, 16, 2): a(f"v_pk_fma_f32 {vr(T+j,2)}, {vr(T+j,2)}, {vr(M0+j,2)}, {vr(M1+j,2)}")
    stats(T)
    norm(T, T)
    for h in range(2):
        for j in range(4*h, 4*h+4): a(f"v_cvt_pk_bf16_f32 v{Y+j}, v{T+2*j}, v{T+2*j+1}")
        a(f"buffer_store_dwordx4 {vr(Y+4*h,4)}, v38, {WS}, s58 offen offset:{1024*h} sc1")
    stamp(a, 1)
    for j in range(8): a(f"v_cvt_pk_bf16_f32 v{40+j}, v{Q+2*j}, v{Q+2*j+1}")
    a(f"v_add_u32 v39, {WS_X1}, v3")
    a("""
    s_cmp_ge_u32 s3, 4
    s_cbranch_scc0 KM_compute
    """)
    W1S, W2S = "s[24:27]", "s[28:31]"
    a(f"""
    s_sub_u32 s3, s3, 4
    v_lshrrev_b32 v3, 3, v2
    v_and_b32 v4, 7, v2              ; position
    v_bfe_u32 v5, v2, 4, 1
    v_lshlrev_b32 v5, 1, v5
    v_xor_b32 v5, v5, v4
    s_lshl_b32 s53, s3, 4
    v_add_u32 v6, s53, v3
    v_mul_u32_u24 v6, 7168, v6
    v_add_u32 v6, s50, v6
    v_lshl_add_u32 v12, v5, 4, v6    ; vB0
    v_xor_b32 v5, 4, v5
    v_lshl_add_u32 v13, v5, 4, v6
    v_add_u32 v13, {8*7168}, v13     ; vB1
    v_lshrrev_b32 v6, 2, v2
    v_add_u32 v6, s53, v6
    v_mul_u32_u24 v6, 7168, v6
    v_add_u32 v6, s51, v6
    v_lshrrev_b32 v5, 5, v2
    v_lshlrev_b32 v5, 1, v5
    v_and_b32 v7, 3, v2
    v_xor_b32 v5, v5, v7
    v_lshl_add_u32 v14, v5, 4, v6    ; vBH
    """)
    if "halflin" in cfg.exp:
        a("s_lshl_b32 s52, s47, 12\ns_lshl_b32 s64, s3, 10\ns_add_u32 s52, s52, s64\ns_add_u32 s52, s52, 229376\nv_lshl_add_u32 v14, v2, 4, s52")
    a(f"""
    s_lshl_b32 s54, s3, 12
    s_lshl_b32 s55, s3, 11
    s_add_u32 s55, s55, {BF}
    s_lshl_b32 s56, s3, 10
    s_add_u32 s56, s56, {BH}
    s_mov_b32 s57, 0
    s_mov_b32 s58, 0                 ; A soffset
    s_mov_b32 s59, 0                 ; B soffset
    """)
    PREP = ["s_add_u32 s60, s55, s57", "s_add_u32 s62, s59, 128", "s_add_u32 s63, s59, 256", "s_mov_b32 m0, s60"]
    def prep():
        for x in PREP: a(x)
    def fireB():
        fill = iter(["s_add_u32 s64, s54, s57", f"s_add_u32 s52, s58, {16*YP}", "s_nop 0", "s_nop 0", "s_nop 0", "s_nop 0"])
        for lc in range(3):
            for i2 in range(2):
                if lc or i2:
                    a(f"s_add_u32 m0, s60, {8192*lc+1024*i2}"); a(next(fill))
                a(f"buffer_load_dwordx4 v{12+i2}, {W1S}, {['s59','s62','s63'][lc]} offen lds")
        a(f"""
        s_add_u32 m0, s56, s57
        s_add_u32 s57, s57, {SLOT}
        buffer_load_dwordx4 v14, {W1S}, s59 offen lds
        s_cmp_eq_u32 s57, {NS*SLOT}
        s_cselect_b32 s57, 0, s57
        s_add_u32 s59, s59, {64*7168}
        """)
    def fireA():
        for i in range(4):
            a(f"s_add_u32 m0, s64, {1024*i}"); a("s_nop 0")
            a(f"buffer_load_dwordx4 v{10+(i&1)}, {WS}, {'s58' if i < 2 else 's52'} offen sc1 lds")
        a("s_add_u32 s58, s58, 128")
    NB0, NB1 = cfg.km_b0, cfg.km_b1
    X1ST = [f"buffer_store_dwordx4 {vr(40+4*h,4)}, v39, {WS}, 0 offen offset:{1024*h} sc1" for h in range(2)]
    for i in range(NB0):
        prep(); a("s_nop 0"); fireB()
    a(f"s_waitcnt vmcnt({7*NB0})")
    if cfg.stR: stamp(a, 3)
    a("s_barrier")
    if cfg.stR: stamp(a, 4)
    if cfg.x1at == 0:
        for x in X1ST: a(x)
    if cfg.pf_w2 == 4:
        srd(a, 28, 12, 3584*1024*2)
        a(f"""
        s_mul_i32 s52, s2, 28672
        s_mul_i32 s64, s3, 7168
        s_add_u32 s52, s52, s64
        v_lshl_add_u32 v15, v2, 4, s52
        s_mov_b32 s52, 4096
        """)
        for i in range(7): a(f"buffer_load_dwordx4 {vr(96+4*i,4)}, v15, {W2S}, {'0' if i < 4 else 's52'} offen offset:{1024*(i%4)}")
    if cfg.km_pf == 2:
        a(f"""
        s_mul_i32 s52, s2, 28672
        s_mul_i32 s64, s3, 7168
        s_add_u32 s52, s52, s64
        v_lshl_add_u32 v15, v2, 4, s52
        s_mov_b32 s52, 4096
        """)
        for i in range(7): a(f"buffer_load_dwordx4 {vr(144+4*i,4)}, v15, {W1S}, {'0' if i < 4 else 's52'} offen offset:{1024*(i%4)}")
    for i in range(NB0, NB1):
        prep(); a("s_nop 0"); fireB()
    a(f"""
    v_lshrrev_b32 v5, 4, v2
    v_xor_b32 v5, v5, v4
    s_lshl_b32 s52, s46, 7
    s_lshl_b32 s53, s3, 5
    s_add_u32 s52, s52, s53
    v_add_u32 v6, s52, v3
    v_mul_u32_u24 v6, {YP}, v6
    v_add_u32 v6, {WS_Y2}, v6
    v_lshl_add_u32 v10, v5, 4, v6    ; vA0
    v_xor_b32 v5, 4, v5
    v_lshl_add_u32 v11, v5, 4, v6
    v_add_u32 v11, {8*YP}, v11
    s_lshl_b32 s52, s46, 11
    s_add_u32 s52, s52, {FL_R}
    v_and_b32 v5, 15, v2
    v_lshl_add_u32 v24, v5, 7, s52
    s_mov_b32 s72, 0
    """)
    if cfg.stR: stamp(a, 5)
    a(f"""
    KM_rpoll:
    buffer_load_dword v27, v24, {WS}, 0 offen sc1
    s_add_u32 s72, s72, 1
    s_cmp_gt_u32 s72, {SPIN_MAX}
    s_cbranch_scc1 KM_rpoll_x
    s_waitcnt vmcnt(0)
    v_cmp_ne_u32 vcc, 1, v27
    s_cbranch_vccnz KM_rpoll
    KM_rpoll_x:
    """)
    stamp(a, 2)
    q = []
    def A_(st_):
        a(f"s_add_u32 s64, s54, {st_*SLOT}")
        a(f"s_add_u32 s52, s58, {16*YP}")
        fireA(); q.append((st_, 4))
    def B_(st_):
        prep(); a("s_nop 0"); fireB(); q.append((st_, 7))
    def younger(st_):
        last = max(i for i, (x, n) in enumerate(q) if x <= st_)
        return sum(n for x, n in q[last+1:])
    A_(0)
    if NB1 < 2: B_(1)
    A_(1)
    srd(a, 28, 12, 3584*1024*2)
    a(f"s_waitcnt vmcnt({younger(0)})")
    a("s_barrier")
    if NB1 < 3: B_(2)
    A_(2)
    if cfg.x1at == 1:
        for x in X1ST: a(x)
        q.append((9, 2))
    a(f"""
    s_mul_i32 s52, s2, 28672
    s_mul_i32 s64, s3, 7168
    s_add_u32 s52, s52, s64
    v_lshl_add_u32 v15, v2, 4, s52
    s_lshr_b32 s74, s2, 3
    s_and_b32 s74, s74, 3
    s_add_u32 s74, s74, {cfg.pfat}
    s_mov_b32 s73, 0
    """)
    prep()
    a(f"s_waitcnt vmcnt({younger(1)})")
    a("s_barrier")
    fireB(); fireA()
    a("s_mov_b32 s61, 1")
    a("KM_lloop:")
    prep()
    if cfg.pf_w2 == 1:
        a(f"""
        s_cmp_eq_u32 s73, 0
        s_cbranch_scc1 KM_w11
        s_sub_u32 s73, s73, 1
        s_waitcnt vmcnt(15)
        s_branch KM_w15
        KM_w11:
        s_waitcnt vmcnt(11)
        KM_w15:
        """)
    else:
        a("s_waitcnt vmcnt(11)")
    a("s_barrier")
    fireB(); fireA()
    if cfg.pf_w2 == 1:
        a(f"""
        s_sub_u32 s52, s61, s74
        s_and_b32 s52, s52, {~4 & 0xffffffff}
        s_cbranch_scc1 KM_nopf
        s_mov_b32 s73, 2
        """)
        for i in range(4):
            a(f"buffer_load_dwordx4 {vr(32+4*i,4)}, v15, {W2S}, 0 offen offset:{1024*i}")
        a("v_add_u32 v15, 3072, v15")
        a("KM_nopf:")
    if cfg.pf_code:
        a(f"""
        s_cmp_lg_u32 s61, 10
        s_cbranch_scc1 KM_nocp
        s_getpc_b64 s[70:71]
        KM_pcref:
        s_lshr_b32 s52, s2, 3
        s_lshl_b32 s52, s52, 2
        s_add_u32 s52, s52, s3
        s_lshl_b32 s52, s52, 6
        s_add_u32 s70, s70, s52
        s_addc_u32 s71, s71, 0
        s_load_dword s72, s[70:71], 0
        s_mov_b32 s52, KM_gelu-KM_pcref
        s_load_dword s72, s[70:71], s52
        KM_nocp:
        """)
    a(f"""
    s_add_u32 s61, s61, 1
    s_cmp_lt_u32 s61, {NST-NS}
    s_cbranch_scc1 KM_lloop
    s_waitcnt vmcnt(11)
    s_barrier
    """)
    NTL = 0
    if cfg.pf_w2 == 2:
        a("s_mov_b32 s52, 4096")
        for i in range(7): a(f"buffer_load_dwordx4 {vr(96+4*i,4)}, v15, {W2S}, {'0' if i < 4 else 's52'} offen offset:{1024*(i%4)}")
        NTL = 7
    a(f"s_waitcnt vmcnt({NTL})")
    a("s_barrier")
    def sentinel():
        if cfg.xmode == "sent":
            a(f"""
            s_lshl_b32 s52, s46, 3
            s_add_u32 s52, s52, s45
            s_lshl_b32 s52, s52, 1
            s_add_u32 s52, s52, s44
            s_lshl_b32 s52, s52, 2
            s_add_u32 s52, s52, s3
            s_lshl_b32 s52, s52, 12
            s_add_u32 s52, s52, {WS_EX}
            v_lshl_add_u32 v5, v2, 4, s52
            v_mov_b32 v48, -1
            v_mov_b32 v49, -1
            v_mov_b32 v50, -1
            v_mov_b32 v51, -1
            """)
            for i in range(4): a(f"buffer_store_dwordx4 v[48:51], v5, {WS}, 0 offen offset:{1024*i} sc1")
    if cfg.sentat == 0: sentinel()
    a(f"""
    s_lshl_b32 s52, s46, 3
    s_and_b32 s53, s3, 1
    s_lshl_b32 s64, s53, 2
    s_add_u32 s52, s52, s64
    s_mul_i32 s52, s52, 112
    s_mul_i32 s64, s44, 56
    s_add_u32 s52, s52, s64
    s_lshl_b32 s52, s52, 10
    s_add_u32 s52, s52, {WS_H}
    v_lshl_add_u32 v16, v2, 4, s52
    v_add_u32 v17, {112*1024}, v16
    v_add_u32 v18, {2*112*1024}, v16
    v_add_u32 v19, {3*112*1024}, v16
    v_lshrrev_b32 v5, 4, v2
    v_lshlrev_b32 v5, 1, v5
    v_xor_b32 v5, v5, v4
    s_mul_i32 s52, s44, 1792
    s_lshl_b32 s64, s53, 4
    s_add_u32 s52, s52, s64
    v_add_u32 v6, s52, v3
    v_lshlrev_b32 v6, 11, v6
    s_lshl_b32 s64, s45, 8
    v_add_u32 v6, s64, v6
    v_lshl_add_u32 v20, v5, 4, v6
    v_add_u32 v21, 16384, v20
    v_add_u32 v22, 128, v20
    v_add_u32 v23, 16384+128, v20
    s_lshr_b32 s65, s3, 1
    s_lshl_b32 s66, s53, 13
    s_lshl_b32 s64, s65, 10
    s_add_u32 s66, s66, s64
    s_lshl_b32 s67, s3, 11
    s_add_u32 s67, s67, {BB}
    s_lshl_b32 s52, s46, 1
    s_add_u32 s52, s52, s44
    s_lshl_b32 s52, s52, 7
    s_add_u32 s52, s52, {FL_HN}
    v_and_b32 v5, 31, v2
    v_lshl_add_u32 v24, v5, 2, s52
    v_and_b32 v5, 32, v2
    v_lshl_add_u32 v25, v5, 7, v24
    v_lshl_add_u32 v31, v5, 8, v24
    s_getreg_b32 s75, hwreg(HW_REG_XCC_ID, 0, 4)
    s_add_u32 s75, s75, 1
    s_lshl_b32 s75, s75, 4
    v_mov_b32 v29, s75
    v_cmp_gt_u32 vcc, 32, v2
    s_lshl_b32 s64, s45, 4
    s_add_u32 s52, s52, s64
    v_cndmask_b32 v30, 0, v29, vcc
    s_add_u32 s52, s52, 8192
    v_lshl_add_u32 v33, v2, 2, s52
    s_mov_b32 s75, 0
    s_xor_b32 s52, s52, 128
    s_sub_u32 s52, s52, 4096
    v_and_b32 v5, 3, v2
    v_lshl_add_u32 v34, v5, 2, s52
    buffer_load_dword v27, v24, {WS}, 0 offen sc1
    """)
    def table(dst, nts):
        skipown = f"""v_cmp_le_u32 vcc, {nts}, v6
        s_nop 1
        v_addc_co_u32 v6, vcc, 0, v6, vcc"""
        a(f"""
        s_mul_i32 s52, {nts}, 7
        v_add_u32 v{dst}, s52, v2
        v_subrev_u32 v5, 7, v2
        v_lshrrev_b32 v6, 2, v5
        {skipown}
        v_and_b32 v7, 3, v5
        v_and_b32 v8, 1, v6
        v_add_u32 v7, v7, v8
        v_mad_u32_u24 v28, v6, 7, v7
        v_cmp_le_u32 vcc, 7, v2
        v_subrev_u32 v5, 35, v2
        v_mul_u32_u24 v6, 43, v5
        v_cndmask_b32 v{dst}, v{dst}, v28, vcc
        v_lshrrev_b32 v6, 7, v6
        v_mul_u32_u24 v7, 3, v6
        v_sub_u32 v7, v5, v7
        {skipown}
        v_and_b32 v8, 1, v6
        v_cmp_eq_u32 vcc, 2, v7
        v_add3_u32 v9, v7, 4, v8
        v_mul_u32_u24 v8, 6, v8
        v_sub_u32 v8, 6, v8
        v_cndmask_b32 v9, v9, v8, vcc
        v_cmp_le_u32 vcc, 35, v2
        v_mad_u32_u24 v28, v6, 7, v9
        s_nop 0
        v_cndmask_b32 v{dst}, v{dst}, v28, vcc
        """)
    table(26, "s45")
    a("""
    s_waitcnt lgkmcnt(0)
    s_barrier
    """)
    def blk():
        a("v_readlane_b32 s69, v26, s68")
        a("s_add_u32 s68, s68, 2")
    def issueA():
        a("s_lshl_b32 s70, s69, 10")
        a("s_add_u32 s60, s66, s57")
        for i in range(4):
            a(f"s_add_u32 m0, s60, {2048*i}")
            a("s_nop 0")
            a(f"buffer_load_dwordx4 v{16+i}, {WS}, s70 offen sc1 lds")
    def issueB():
        a("s_lshl_b32 s71, s69, 16")
        a("s_add_u32 s60, s67, s57")
        for lc in range(2):
            for i2 in range(2):
                a(f"s_add_u32 m0, s60, {8192*lc+1024*i2}")
                a("s_nop 0")
                a(f"buffer_load_dwordx4 v{20+2*lc+i2}, {W2S}, s71 offen lds")
    def nextslot():
        a(f"s_add_u32 s57, s57, {S2}")
        a(f"s_cmp_eq_u32 s57, {NS2*S2}")
        a("s_cselect_b32 s57, 0, s57")
    def prep2():
        blk()
        a("s_add_u32 s60, s67, s57")
        a("s_add_u32 s62, s66, s57")
        a("s_lshl_b32 s71, s69, 16")
        a("s_lshl_b32 s70, s69, 10")
        a("s_mov_b32 m0, s60")
        nextslot()
    def fire2():
        for lc in range(2):
            for i2 in range(2):
                if lc or i2:
                    a(f"s_add_u32 m0, s60, {8192*lc+1024*i2}")
                    a("s_nop 0")
                a(f"buffer_load_dwordx4 v{20+2*lc+i2}, {W2S}, s71 offen lds")
        for i in range(4):
            a(f"s_add_u32 m0, s62, {2048*i}")
            a("s_nop 0")
            a(f"buffer_load_dwordx4 v{16+i}, {WS}, s70 offen sc1 lds")
    def check(val, lbl):
        a(f"""
        s_mov_b32 s72, 0
        {lbl}:
        v_sub_u32 v28, v27, v29
        v_subrev_u32 v28, {val}, v28
        v_cmp_le_u32 vcc, 8, v28
        s_and_b32 s53, vcc_lo, vcc_hi
        s_cbranch_scc0 {lbl}_x
        s_add_u32 s72, s72, 1
        s_cmp_gt_u32 s72, {SPIN_MAX}
        s_cbranch_scc1 {lbl}_x
        """)
        if val == 1:
            a(f"""
            s_cmp_lg_u32 s72, {cfg.relpoll}
            s_cbranch_scc1 {lbl}_n
            s_mov_b32 s75, 1
            v_mov_b32 v24, v31
            v_mov_b32 v29, v30
            s_cmp_lg_u32 s3, 0
            s_cbranch_scc1 {lbl}_n
            buffer_wbl2 sc1
            v_mov_b32 v28, 1
            s_waitcnt vmcnt(0)
            s_mov_b64 exec, 15
            buffer_store_dword v28, v33, {WS}, 0 offen sc1
            s_mov_b64 exec, -1
            {lbl}_n:
            """)
        a(f"""
        buffer_load_dword v27, v24, {WS}, 0 offen sc1
        s_waitcnt vmcnt(0)
        s_branch {lbl}
        {lbl}_x:
        s_cmp_eq_u32 s75, 0
        s_cbranch_scc1 {lbl}_y
        v_mov_b32 v24, v25
        buffer_inv sc1
        s_waitcnt vmcnt(0)
        {lbl}_y:
        """)
    look = f"buffer_load_dword v27, v24, {WS}, 0 offen sc1"
    if cfg.pf_w2 == 3:
        a("s_mov_b32 s52, 4096")
        for i in range(7):
            if i == 5: a("s_waitcnt vmcnt(2)")
            a(f"buffer_load_dwordx4 {vr(96+4*i,4)}, v15, {W2S}, {'0' if i < 4 else 's52'} offen offset:{1024*(i%4)}")
    a("""
    s_mov_b32 s68, s65
    s_mov_b32 s57, 0
    s_mov_b32 s61, 0
    KM_l2pro:
    """)
    a(f"s_waitcnt vmcnt({cfg.bthr})")
    blk(); issueB(); nextslot()
    a(f"""
    s_add_u32 s61, s61, 1
    s_cmp_lt_u32 s61, {NS2}
    s_cbranch_scc1 KM_l2pro
    """)
    if cfg.c3:
        a(f"""
        s_and_b32 s53, s3, 1
        s_lshl_b32 s64, s53, 2
        s_add_u32 s64, s64, 1
        """)
        table(36, "s64")
        a(f"""
        s_mul_i32 s52, s44, 1792
        s_lshr_b32 s64, s2, 3
        s_add_u32 s52, s52, s64
        s_lshl_b32 s52, s52, 11
        s_lshl_b32 s53, s53, 10
        s_add_u32 s52, s52, s53
        s_add_u32 s52, s52, 384
        v_lshl_add_u32 v5, v4, 4, s52
        v_lshl_add_u32 v6, v3, 1, s65
        """)
        for i in range(3):
            a(f"""
            v_add_u32 v7, {2*(cfg.c3 + 8*i)}, v6
            v_min_u32 v7, 55, v7
            v_lshlrev_b32 v7, 2, v7
            ds_bpermute_b32 v{37+i}, v7, v36
            """)
        a("s_waitcnt lgkmcnt(0)")
        for i in range(3): a(f"v_lshl_add_u32 v{37+i}, v{37+i}, 16, v5")
        a(f"buffer_load_dwordx4 v[40:43], v37, {W2S}, 0 offen")
    if cfg.sentat == 1: sentinel()
    a(f"s_waitcnt vmcnt({8 + (4 if cfg.sentat == 1 and cfg.xmode == 'sent' else 0) + (1 if cfg.c3 else 0)})")
    a("s_barrier")
    if not cfg.stR: stamp(a, 3)
    a(look)
    a("s_barrier")
    blk(); issueB()
    a("s_waitcnt vmcnt(4)")
    check(1, "KM_c1")
    if not cfg.stR: stamp(a, 4)
    a(f"""
    s_add_u32 s68, s65, 6
    s_mov_b32 s57, {3*S2}
    """)
    blk()
    a("s_cmp_eq_u32 s65, 0")
    a("s_cbranch_scc1 KM_skipA3")
    issueA()
    a("KM_skipA3:")
    nextslot(); blk(); issueA(); nextslot(); blk(); issueA(); nextslot()
    prep2()
    a("s_waitcnt vmcnt(8)")
    if not cfg.stR: stamp(a, 5)
    a("s_barrier")
    fire2()
    prep2()
    a("s_waitcnt vmcnt(12)")
    a("s_barrier")
    fire2()
    a(f"""
    s_mov_b32 s61, 4
    KM_l2loop:
    s_cmp_lg_u32 s61, 10
    s_cbranch_scc1 KM_nolook
    {look}
    KM_nolook:
    s_cmp_lg_u32 s61, 18
    s_cbranch_scc1 KM_nolook2
    buffer_load_dword v35, v34, {WS}, 0 offen sc1
    KM_nolook2:
    """)
    if cfg.c3:
        a(f"""
        s_and_b32 s53, s61, 7
        s_cmp_lg_u32 s53, {cfg.c3at}
        s_cbranch_scc1 KM_noc3
        buffer_load_dwordx4 v[40:43], v38, {W2S}, 0 offen
        v_mov_b32 v38, v39
        KM_noc3:
        """)
    prep2()
    a("""
    s_cmp_lg_u32 s61, 12
    s_waitcnt vmcnt(16)
    s_cbranch_scc1 KM_c2_y
    """)
    check(2, "KM_c2")
    a("s_barrier")
    fire2()
    a(f"""
    s_add_u32 s61, s61, 1
    s_cmp_lt_u32 s61, {NST2-4}
    s_cbranch_scc1 KM_l2loop
    """)
    a(f"""
    s_mov_b32 s72, 0
    KM_ppoll:
    v_cmp_ne_u32 vcc, 2, v35
    s_cbranch_vccz KM_ppoll_x
    buffer_load_dword v35, v34, {WS}, 0 offen sc1
    s_add_u32 s72, s72, 1
    s_cmp_gt_u32 s72, {SPIN_MAX}
    s_waitcnt vmcnt(0)
    s_cbranch_scc0 KM_ppoll
    KM_ppoll_x:
    """)
    for left in (2, 1, 0):
        a(f"s_waitcnt vmcnt({8*left})")
        a("s_barrier")
    fin(a, kidx)
    import km_c
    km_c.compute(a, kidx)
    return dict(name="km_kernel", body=a.text(), vgpr=256, sgpr=76, grid=256, block=512, lds=NS2*S2)
```

```python
from asmlib import *
from gen import *
from gemm import interleave
from km import FL_R, FL_HN, FL_HF, FL_X, WSZ, SPIN_MAX

def compute(a, kidx):
    SLOT, NS, NST = 45056, 3, 16
    BF, BH = 16384, 16384 + 24576
    S2, NS2, NST2, BB = 32768, 5, 28, 16384
    WS = "s[20:23]"
    ACC = 32
    acc = lambda u, mi: ACC + (u*4+mi)*4 if u < 6 else ACC + 96 + ((u-6)*2+mi)*4
    FW = lambda s, u: 144 + 48*s + 4*u
    FX = lambda s, mi: 144 + 48*s + 32 + 4*mi
    AW = lambda j: 16 + j
    AX = lambda kk, h: 20 + 2*kk + h
    HG, HGH = 240, 241
    HL = lambda h: 242 + h
    HLH = 244
    AW2 = lambda u: 245 + u
    AX2 = lambda h: 249 + h
    VROW, VC2, VEXS, VEXR, VGB = 251, 252, 253, 254, 255
    VFL, VV = 14, 15
    a("KM_compute:")
    a(f"""
    s_lshr_b32 s52, s3, 1            ; wm
    s_and_b32 s53, s3, 1             ; wn
    v_lshrrev_b32 v3, 4, v2          ; g
    v_and_b32 v4, 15, v2             ; i
    s_lshl_b32 s54, s53, 6
    s_add_u32 s54, s54, s50
    v_lshl_add_u32 v5, v3, 3, s54
    v_lshl_add_u32 v6, v3, 3, s51
    """)
    srd(a, 28, 6, 3584*2)
    for u in range(6): a(f"buffer_load_dwordx2 {vr(160+2*u,2)}, v5, s[28:31], 0 offen offset:{128*(u>>1)+32*(u&1)}")
    for u in range(2): a(f"buffer_load_dwordx2 {vr(172+2*u,2)}, v6, s[28:31], 0 offen offset:{32*u}")
    a(f"""
    v_cmp_eq_u32 vcc, 0, v2
    v_mov_b32 v13, {WSZ}
    s_lshl_b32 s54, s46, 4
    s_add_u32 s54, s54, s47
    s_lshl_b32 s54, s54, 7
    s_add_u32 s54, s54, {FL_R}
    v_mov_b32 v12, s54
    v_cndmask_b32 v{VFL}, v13, v12, vcc
    v_mov_b32 v{VV}, 1
    s_waitcnt vmcnt(8)
    s_barrier
    s_cmp_lg_u32 s3, 0
    s_cbranch_scc1 KM_norp
    buffer_store_dword v{VV}, v{VFL}, {WS}, 0 offen sc1
    KM_norp:
    """)
    if cfg.x1at == 0:
        for h in range(2): a(f"buffer_store_dwordx4 {vr(40+4*h,4)}, v39, {WS}, 0 offen offset:{1024*h} sc1")
    srd(a, 16, 14, 2048); srd(a, 36, 8, MB4)
    a(f"""
    s_lshl_b32 s54, s46, 1
    s_add_u32 s54, s54, s44
    s_lshl_b32 s54, s54, 3
    s_add_u32 s54, s54, s45
    s_lshl_b32 s54, s54, 2
    s_add_u32 s54, s54, s3
    s_lshl_b32 s54, s54, 2
    s_add_u32 s54, s54, {FL_HN}
    v_mov_b32 v12, s54
    v_cndmask_b32 v{VFL}, v13, v12, vcc
    s_lshl_b32 s60, s52, 13          ; wm*8192
    s_lshl_b32 s61, s53, 12
    s_add_u32 s54, s60, s61
    s_xor_b32 s55, s54, 4096
    v_lshrrev_b32 v8, 1, v4
    v_xor_b32 v8, v8, v3
    v_lshlrev_b32 v8, 4, v8
    v_lshl_add_u32 v7, v4, 7, v8
    v_add_u32 v{AX(0,0)}, s54, v7
    v_add_u32 v{AX(0,1)}, s55, v7
    v_xor_b32 v7, 64, v7
    v_add_u32 v{AX(1,0)}, s54, v7
    v_add_u32 v{AX(1,1)}, s55, v7
    v_lshrrev_b32 v7, 2, v4
    v_lshl_add_u32 v7, v3, 3, v7     ; row
    v_and_b32 v8, 3, v4
    v_lshlrev_b32 v8, 3, v8          ; (i&3)*8
    v_lshl_add_u32 v9, v7, 7, v8
    v_add_u32 v9, {BF}, v9
    v_and_b32 v10, 1, v3
    v_lshrrev_b32 v11, 3, v4
    v_lshl_add_u32 v11, v10, 1, v11  ; phi
    s_lshl_b32 s56, s53, 1
    v_xor_b32 v12, s56, v11
    v_lshl_add_u32 v{AW(0)}, v12, 5, v9
    v_xor_b32 v{AW(1)}, 32, v{AW(0)}
    v_lshl_add_u32 v9, v7, 6, v8
    v_lshl_add_u32 v9, v10, 5, v9
    v_add_u32 v{AW(2)}, {BH}, v9
    v_xor_b32 v{AW(3)}, 32, v{AW(2)}
    s_lshl_b32 s56, s46, 3
    s_lshl_b32 s57, s52, 2
    s_add_u32 s56, s56, s57
    s_mul_i32 s56, s56, {112*1024}
    s_mul_i32 s57, s47, {7*1024}
    s_add_u32 s56, s56, s57
    s_add_u32 s56, s56, {WS_H}
    s_add_u32 s57, s53, s48
    s_lshl_b32 s58, s57, 10
    s_add_u32 s58, s58, s56
    v_lshl_add_u32 v{HG}, v2, 4, s58
    s_lshr_b32 s58, s57, 1
    s_lshl_b32 s58, s58, 15
    s_and_b32 s57, s57, 1
    s_lshl_b32 s57, s57, 10
    s_add_u32 s58, s58, s57
    s_add_u32 s57, s58, s54
    v_lshl_add_u32 v{HL(0)}, v2, 4, s57
    s_add_u32 s57, s58, s55
    v_lshl_add_u32 v{HL(1)}, v2, 4, s57
    s_cmp_eq_u32 s48, 0
    s_cselect_b32 s58, {6*1024}, 0
    s_cselect_b32 s59, {3*S2}, 0
    s_add_u32 s58, s58, s56
    v_lshl_add_u32 v{HGH}, v2, 4, s58
    s_add_u32 s59, s59, s54
    v_lshl_add_u32 v{HLH}, v2, 4, s59
    s_mul_i32 s70, s53, {2*112*1024}
    s_add_u32 s71, s70, {112*1024}
    s_sub_u32 s72, {2*112*1024}, s70
    s_add_u32 s73, s72, {112*1024}
    s_lshl_b32 s61, s44, 12
    s_add_u32 s62, s60, s61
    v_lshl_add_u32 v{AX2(0)}, v2, 4, s62
    s_xor_b32 s62, s62, 4096
    v_lshl_add_u32 v{AX2(1)}, v2, 4, s62
    v_lshrrev_b32 v7, 2, v4
    v_lshl_add_u32 v7, v3, 2, v7     ; row = 4g + (i>>2)
    v_lshl_add_u32 v9, v7, 7, v8
    s_lshl_b32 s54, s53, 13
    s_add_u32 s54, s54, {BB}
    v_add_u32 v9, s54, v9
    v_bfe_u32 v11, v7, 1, 2
    v_lshl_add_u32 v{AW2(0)}, v11, 5, v9
    v_xor_b32 v{AW2(1)}, 32, v{AW2(0)}
    v_xor_b32 v{AW2(2)}, 64, v{AW2(0)}
    v_xor_b32 v{AW2(3)}, 0x60, v{AW2(0)}
    v_lshrrev_b32 v8, 1, v3
    v_lshlrev_b32 v7, 4, v10
    v_lshl_add_u32 v7, v8, 3, v7
    s_lshl_b32 s54, s45, 7
    s_lshl_b32 s55, s53, 6
    s_add_u32 s54, s54, s55
    v_add_u32 v7, s54, v7
    v_lshlrev_b32 v{VC2}, 1, v7
    s_lshr_b32 s54, s45, 2
    s_lshl_b32 s54, s54, 10
    s_add_u32 s54, s54, {WS_MOD + 5*4096}
    v_add_u32 v{VGB}, s54, v{VC2}    ; (d>>9)*2048 + ((d>>3)&63)*16 = 2d + (d>>9)*1024
    s_lshl_b32 s54, s46, 7
    s_lshl_b32 s55, s52, 6
    s_add_u32 s54, s54, s55
    s_lshl_b32 s55, s44, 5
    s_add_u32 s54, s54, s55
    v_add_u32 v9, s54, v4
    v_lshl_add_u32 v{VROW}, v9, 11, v{VC2}
    s_lshl_b32 s54, s46, 3
    s_add_u32 s54, s54, s45
    s_lshl_b32 s54, s54, 1
    s_add_u32 s54, s54, s44
    s_lshl_b32 s54, s54, 2
    s_add_u32 s68, s54, s3
    s_xor_b32 s69, s68, 4
    s_lshl_b32 s54, s68, 12
    s_add_u32 s54, s54, {WS_EX}
    v_lshl_add_u32 v{VEXR}, v2, 4, s54
    s_lshl_b32 s54, s69, 12
    s_add_u32 s54, s54, {WS_EX}
    v_lshl_add_u32 v{VEXS}, v2, 4, s54
    v_mov_b32 v4, {f32(-2*0.7978845608028654*LOG2E*0.044715)}
    v_mov_b32 v5, {f32(-2*0.7978845608028654*LOG2E)}
    s_getreg_b32 s64, hwreg(HW_REG_XCC_ID, 0, 4)
    s_add_u32 s64, s64, 1
    s_lshl_b32 s64, s64, 4
    s_add_u32 s64, s64, 1
    s_add_u32 s65, s64, 1
    s_mov_b32 s74, 32768
    s_mov_b32 s75, 4096
    s_mov_b32 s66, {WS_X1}
    s_mov_b32 s67, {WS_X1+32768}
    """)
    if cfg.sentat == 3:
        for r in range(8, 12): a(f"v_mov_b32 v{r}, -1")
        for j in range(4): a(f"buffer_store_dwordx4 v[8:11], v{VEXR}, {WS}, 0 offen offset:{1024*j} sc1")
    NS3 = 4 if cfg.sentat == 3 else 0
    a(f"""
    buffer_load_dwordx4 v[24:27], v{VC2}, s[16:19], 0 offen
    buffer_load_dwordx4 v[28:31], v{VC2}, s[16:19], 0 offen offset:64
    s_waitcnt vmcnt({5+NS3})
    s_cmp_eq_u32 s3, 0
    s_cbranch_scc1 KM_bw
    s_waitcnt vmcnt({4+NS3})
    KM_bw:
    """)
    assert cfg.x1at == 0
    if cfg.x1at == 1:
        a("""
        v_mov_b32 v13, v39
        v_mov_b64 v[24:25], v[40:41]
        v_mov_b64 v[26:27], v[42:43]
        v_mov_b64 v[28:29], v[44:45]
        v_mov_b64 v[30:31], v[46:47]
        """)
    for u in range(8):
        a(f"v_lshlrev_b32 v{acc(u,0)}, 16, v{160+2*u}")
        a(f"v_and_b32 v{acc(u,0)+1}, 0xffff0000, v{160+2*u}")
        a(f"v_lshlrev_b32 v{acc(u,0)+2}, 16, v{161+2*u}")
        a(f"v_and_b32 v{acc(u,0)+3}, 0xffff0000, v{161+2*u}")
        for mi in range(1, 4 if u < 6 else 2):
            a(f"v_mov_b64 {vr(acc(u,mi),2)}, {vr(acc(u,0),2)}")
            a(f"v_mov_b64 {vr(acc(u,mi)+2,2)}, {vr(acc(u,0)+2,2)}")
    def reads(kk):
        xs = [f"ds_read_b128 {vr(FX(kk,mi),4)}, v{AX(kk,mi>>1)} offset:{2048*(mi&1)}" for mi in range(4)]
        ws = []
        for u in range(8):
            for rd in range(2):
                if u < 6: ws.append(f"ds_read_b64_tr_b16 {vr(FW(kk,u)+2*rd,2)}, v{AW(u&1)} offset:{8192*(u>>1)+(32*kk+4*rd)*128}")
                else: ws.append(f"ds_read_b64_tr_b16 {vr(FW(kk,u)+2*rd,2)}, v{AW(u-4)} offset:{(32*kk+4*rd)*64}")
        return ws[:2] + xs + ws[2:]
    def mfmas(kk):
        return [f"v_mfma_f32_16x16x32_bf16 {vr(acc(u,mi),4)}, {vr(FW(kk,u),4)}, {vr(FX(kk,mi),4)}, {vr(acc(u,mi),4)}"
                for u in range(8) for mi in range(4 if u < 6 else 2)]
    a(f"""
    s_mov_b32 s57, 1
    s_mov_b32 s59, {SLOT}
    s_mov_b32 s58, {SLOT}
    s_mov_b32 s61, 0
    s_barrier
    """)
    stamp(a, 2)
    for r in reads(0): a(r)
    if cfg.x1at == 1:
        for h in range(2): a(f"buffer_store_dwordx4 {vr(24+4*h,4)}, v13, {WS}, 0 offen offset:{1024*h} sc1")
    a("s_waitcnt lgkmcnt(0)")
    a("KM_cloop:")
    upd = [f"v_add_u32 v{r}, s58, v{r}" for r in range(16, 24)]
    M = mfmas(0)
    interleave(a, M[:20], reads(1))
    interleave(a, M[20:24], upd, per=2)
    interleave(a, M[24:27], [])
    a("s_waitcnt lgkmcnt(0)")
    a("s_barrier")
    a(M[27])
    M = mfmas(1)
    interleave(a, M[:20], reads(0))
    ctl = ["s_add_u32 s57, s57, 1", f"s_cmp_eq_u32 s57, {NS}", f"s_cselect_b32 s58, {(-(NS-1)*SLOT) & 0xffffffff}, s59",
           "s_cselect_b32 s57, 0, s57", "s_add_u32 s61, s61, 1", f"s_cmp_lt_u32 s61, {NST}"]
    interleave(a, M[20:26], ctl)
    a(M[26])
    a("s_waitcnt lgkmcnt(0)")
    a(M[27])
    a("s_cbranch_scc1 KM_cloop")
    stamp(a, 3)
    a("KM_gelu:")
    def post(val):
        if val == 1: return [f"v_mov_b32 v{VV}, s64", f"buffer_store_dword v{VV}, v{VFL}, {WS}, 0 offen"]
        return [f"v_mov_b32 v{VV}, s65", "v_mov_b32 v13, 2", f"buffer_store_dword v{VV}, v{VFL}, {WS}, 0 offen",
                f"buffer_store_dword v13, v{VFL}, {WS}, s75 offen sc1"]
    def gelu(x, n, t, out, mid1, mid2):
        for j in range(0, n, 2): a(f"v_pk_mul_f32 {vr(t+j,2)}, {vr(x[j],2)}, {vr(x[j],2)}")
        for j in range(0, n, 2): a(f"v_pk_fma_f32 {vr(t+j,2)}, {vr(t+j,2)}, v[4:5], v[4:5] op_sel:[0,0,1] op_sel_hi:[1,0,1]")
        for j in range(0, n, 2): a(f"v_pk_mul_f32 {vr(t+j,2)}, {vr(t+j,2)}, {vr(x[j],2)}")
        for j in range(n):
            a(f"v_exp_f32 v{t+j}, v{t+j}")
            if j == 1:
                for m in mid1: a(m)
        for j in range(0, n, 2): a(f"v_pk_add_f32 {vr(t+j,2)}, {vr(t+j,2)}, 1.0 op_sel_hi:[1,0]")
        for j in range(n):
            a(f"v_rcp_f32 v{t+j}, v{t+j}")
            if j == 1:
                for m in mid2: a(m)
        for j in range(0, n, 2): a(f"v_pk_mul_f32 {vr(t+j,2)}, {vr(t+j,2)}, {vr(x[j],2)}")
        for j in range(0, n, 2): a(f"v_cvt_pk_bf16_f32 v{out+j//2}, v{t+j}, v{t+j+1}")
    so = ["s70", "s71", "s72", "s73"]
    k = 0
    pend1, pend2 = [], []
    for b in range(4):
        for mi in range(4 if b < 3 else 2):
            x = [acc(2*b, mi)+r for r in range(4)] + [acc(2*b+1, mi)+r for r in range(4)]
            out = 168 + 4*(k % 6)
            gelu(x, 8, 160, out, pend1, pend2)
            if b < 3:
                pend1 = [f"buffer_store_dwordx4 {vr(out,4)}, v{HG}, {WS}, {so[mi]} offen offset:{2048*(b&1)} {'' if b < 2 else 'sc1'}"]
                pend2 = [f"ds_write_b128 v{HL(mi>>1)}, {vr(out,4)} offset:{S2*(b&1)+2048*(mi&1)}"]
                if b == 2 and mi == 0:
                    pend1 = [f"v_add_u32 v{HG}, 4096, v{HG}"] + pend1
                    pend2 = [f"v_add_u32 v{HL(0)}, {2*S2}, v{HL(0)}", f"v_add_u32 v{HL(1)}, {2*S2}, v{HL(1)}"] + pend2
            else:
                pend1 = [f"buffer_store_dwordx4 {vr(out,4)}, v{HGH}, {WS}, {so[mi]} offen sc1"]
                pend2 = [f"ds_write_b128 v{HLH}, {vr(out,4)} offset:{2048*mi}"]
            if k == cfg.post1: pend2 = pend2 + [f"s_waitcnt vmcnt({k-7})"] + post(1)
            k += 1
    for m in pend2 + pend1: a(m)
    if cfg.sentat == 2:
        for r in range(8, 12): a(f"v_mov_b32 v{r}, -1")
        for j in range(4): a(f"buffer_store_dwordx4 v[8:11], v{VEXR}, {WS}, 0 offen offset:{1024*j} sc1")
    acc2 = lambda u, mi: 32 + (mi*4+u)*4
    FW2 = lambda s, u: 96 + 32*s + 4*u
    FX2 = lambda s, mi: 96 + 32*s + 16 + 4*mi
    EB2, EG, EX1 = 192, 200, 216
    a(f"""
    s_mov_b32 s57, 1
    s_mov_b32 s59, {S2}
    s_mov_b32 s58, {S2}
    s_mov_b32 s61, 2
    s_waitcnt lgkmcnt(0)
    """)
    stamp(a, 4)
    a("s_barrier")
    def reads2(kk):
        xs = [f"ds_read_b128 {vr(FX2(kk,mi),4)}, v{AX2(mi>>1)} offset:{2048*(mi&1)+1024*kk}" for mi in range(4)]
        ws = []
        for u in range(4):
            for rd in range(2):
                ws.append(f"ds_read_b64_tr_b16 {vr(FW2(kk,u)+2*rd,2)}, v{AW2(u)} offset:{(32*kk+16*rd)*128}")
        return ws[:2] + xs + ws[2:]
    def mfmas2(kk, first=False):
        return [f"v_mfma_f32_16x16x32_bf16 {vr(acc2(u,mi),4)}, {vr(FW2(kk,u),4)}, {vr(FX2(kk,mi),4)}, {'0' if first else vr(acc2(u,mi),4)}"
                for u in range(4) for mi in range(4)]
    upd2 = [f"v_add_u32 v{r}, s58, v{r}" for r in range(245, 251)]
    ctl2 = ["s_add_u32 s57, s57, 1", f"s_cmp_eq_u32 s57, {NS2}", f"s_cselect_b32 s58, {(-(NS2-1)*S2) & 0xffffffff}, s59",
            "s_cselect_b32 s57, 0, s57"]
    def step(M, R, tail):
        a("s_waitcnt lgkmcnt(6)")
        interleave(a, M[:4], R[:4])
        a(f"s_waitcnt lgkmcnt({4 if R else 0})")
        interleave(a, M[4:12], R[4:])
        interleave(a, M[12:15], tail, per=2)
    def stage(bar, first=False, extra=[]):
        M = mfmas2(0, first)
        step(M, reads2(1), upd2)
        a(bar)
        a(M[15])
        M = mfmas2(1)
        step(M, reads2(0), ctl2 + extra)
        return M[15]
    for r in reads2(0): a(r)
    a(stage("s_waitcnt lgkmcnt(0)\ns_barrier", first=True))
    a(stage(""))
    NL = NST2 - 2
    a(f"s_mov_b32 s62, {cfg.post2}")
    a("KM_c2loop:")
    a(stage("s_barrier", extra=["s_add_u32 s61, s61, 1", f"s_cmp_lt_u32 s61, s62"]))
    a("s_cbranch_scc1 KM_c2loop")
    a(f"s_cmp_eq_u32 s61, {NL}")
    a("s_cbranch_scc1 KM_c2done")
    a("s_waitcnt vmcnt(0)")
    for m in post(2): a(m)
    a(f"s_mov_b32 s62, {NL}")
    a("s_branch KM_c2loop")
    a("KM_c2done:")
    WQ = [FW2(0,0), FW2(1,0), 160, 176]
    def mm(step, xs, mis):
        return [f"v_mfma_f32_16x16x32_bf16 {vr(acc2(u,mi),4)}, {vr(WQ[step]+4*u,4)}, {vr(xs[i],4)}, {vr(acc2(u,mi),4)}"
                for u in range(4) for i, mi in enumerate(mis)]
    def wr(step):
        return [f"ds_read_b64_tr_b16 {vr(WQ[step]+4*u+2*rd,2)}, v{AW2(u)} offset:{(32*(step&1)+16*rd)*128}" for u in range(4) for rd in range(2)]
    def xr(dst, mi, kk):
        return f"ds_read_b128 {vr(dst,4)}, v{AX2(mi>>1)} offset:{2048*(mi&1)+1024*kk}"
    def spread(M, R):
        k = 0
        for i, m in enumerate(M):
            a(m)
            n = -(-(len(R) - k) // (len(M) - i))
            for _ in range(n):
                a(R[k]); k += 1
    EB2, EG, RX = 24, 200, 144
    EX1 = [192, 232]
    ld = []
    for k in range(2):
        for p in range(2):
            ld.append(f"buffer_load_dwordx4 {vr(EX1[k]+4*p,4)}, v{VROW}, {WS}, {['s66','s67'][k]} offen offset:{64*p} sc1")
    for p in range(2):
        for h in range(2):
            ld.append(f"buffer_load_dwordx4 {vr(EG+8*p+4*h,4)}, v{VGB}, {WS}, 0 offen offset:{64*p+1024*h}")
    XS = lambda s: [FX2(s,2), FX2(s,3)]
    XK = lambda s: [FX2(s,0), FX2(s,1)]
    a("s_waitcnt lgkmcnt(0)")
    w = wr(1)
    spread(mm(0, XS(0), (2,3))[:7], w[:2] + [xr(FX2(1,2),2,1), xr(FX2(1,3),3,1)] + w[2:] + [xr(FX2(1,0),0,1), xr(FX2(1,1),1,1)])
    for x in upd2: a(x)
    a("s_barrier")
    a(mm(0, XS(0), (2,3))[7])
    for st_ in (1, 2):
        w = wr(st_+1); kk = (st_+1) & 1
        M = mm(st_, XS(st_ & 1), (2,3))
        R = w[:2] + [xr(FX2(kk,2),2,kk), xr(FX2(kk,3),3,kk)] + w[2:]
        a(f"s_waitcnt lgkmcnt({8 if st_ == 1 else 6})")
        spread(M[:2], R[:3])
        a("s_waitcnt lgkmcnt(3)")
        spread(M[2:7], R[3:])
        a(M[7])
        a(ld[st_-1])
    M = mm(3, XS(1), (2,3))
    a("s_waitcnt lgkmcnt(6)")
    spread(M[:2], [xr(FX2(0,2),0,0), xr(FX2(0,3),1,0)])
    a("s_waitcnt lgkmcnt(2)")
    interleave(a, M[2:], ld[2:])
    SD = 232 - 16
    cv = lambda j: [f"v_cvt_pk_bf16_f32 v{SD+4*j+e}, v{64+8*j+2*e}, v{64+8*j+2*e+1}" for e in range(4)]
    snd = lambda j: [f"v_permlane16_swap_b32 v{SD+4*j}, v{SD+4*j+2}", f"v_permlane16_swap_b32 v{SD+4*j+1}, v{SD+4*j+3}",
                     f"buffer_store_dwordx4 {vr(SD+4*j,4)}, v{VEXS}, {WS}, 0 offen offset:{1024*j} sc1"]
    S = cv(0) + cv(2) + snd(0) + cv(1) + snd(2) + cv(3) + snd(1) + snd(3)
    K = mm(0, XK(0), (0,1)) + mm(1, XK(1), (0,1)) + mm(2, XS(0), (0,1)) + mm(3, XS(1), (0,1))
    spread(K[:2], [xr(FX2(1,2),0,1), xr(FX2(1,3),1,1)])
    interleave(a, K[2:2+-(-28//cfg.sper)], S, per=cfg.sper)
    for m in K[2+-(-28//cfg.sper):16]: a(m)
    a("s_waitcnt lgkmcnt(0)")
    for m in K[16:]: a(m)
    stamp(a, 5)
    for j in range(4):
        a(f"buffer_load_dwordx4 {vr(RX+4*j,4)}, v{VEXR}, {WS}, 0 offen offset:{1024*j} sc1")
    a("s_nop 3")
    for j in range(4):
        for r in range(4): a(f"v_permlane16_swap_b32 v{32+8*j+r}, v{36+8*j+r}")
    a("s_waitcnt vmcnt(8)")
    for j in range(8):
        a(f"v_lshlrev_b32 v{64+2*j}, 16, v{EB2+j}")
        a(f"v_and_b32 v{65+2*j}, 0xffff0000, v{EB2+j}")
    for j in range(16):
        a(f"v_lshlrev_b32 v{160+2*j}, 16, v{EX1[j>>3]+(j&7)}")
        a(f"v_and_b32 v{161+2*j}, 0xffff0000, v{EX1[j>>3]+(j&7)}")
    for k in range(2):
        for e in range(0, 16, 2): a(f"v_pk_add_f32 {vr(32+16*k+e,2)}, {vr(32+16*k+e,2)}, {vr(64+e,2)}")
        for e in range(0, 16, 2): a(f"v_pk_fma_f32 {vr(160+16*k+e,2)}, {vr(32+16*k+e,2)}, {vr(EG+e,2)}, {vr(160+16*k+e,2)}")
    a(f"""
    s_mov_b32 s72, 0
    KM_xpoll:
    s_waitcnt vmcnt(0)
    v_max3_u32 v8, v{RX}, v{RX+1}, v{RX+2}
    v_max3_u32 v9, v{RX+3}, v{RX+4}, v{RX+5}
    v_max3_u32 v10, v{RX+6}, v{RX+7}, v{RX+8}
    v_max3_u32 v11, v{RX+9}, v{RX+10}, v{RX+11}
    v_max3_u32 v8, v8, v{RX+12}, v{RX+13}
    v_max3_u32 v9, v9, v{RX+14}, v{RX+15}
    v_max3_u32 v8, v8, v9, v10
    v_max_u32 v8, v8, v11
    v_cmp_eq_u32 vcc, -1, v8
    s_cbranch_vccz KM_xpoll_x
    s_add_u32 s72, s72, 1
    s_cmp_gt_u32 s72, {SPIN_MAX}
    s_cbranch_scc1 KM_xpoll_x
    """)
    for j in range(4):
        a(f"buffer_load_dwordx4 {vr(RX+4*j,4)}, v{VEXR}, {WS}, 0 offen offset:{1024*j} sc1")
    a("s_branch KM_xpoll")
    a("KM_xpoll_x:")
    for j in range(4):
        k, p = j >> 1, j & 1
        t = 64 + 8*(j & 1)
        for e in range(4):
            a(f"v_lshlrev_b32 v{t+2*e}, 16, v{RX+4*j+e}")
            a(f"v_and_b32 v{t+2*e+1}, 0xffff0000, v{RX+4*j+e}")
        for e in range(0, 8, 2): a(f"v_pk_fma_f32 {vr(t+e,2)}, {vr(t+e,2)}, {vr(EG+8*p+e,2)}, {vr(160+8*j+e,2)}")
        for e in range(4): a(f"v_cvt_pk_bf16_f32 v{112+4*j+e}, v{t+2*e}, v{t+2*e+1}")
        a(f"buffer_store_dwordx4 {vr(112+4*j,4)}, v{VROW}, s[36:39], {['0','s74'][k]} offen offset:{64*p} {cfg.out_pol}")
    fin(a, kidx, "KM_end")
```

```python
import sys, math
from asmlib import *

NAME = "adaLN_cond__ssm_conv_h3__mixer_channel_mlp__prompt"
S, D, F = 2048, 1024, 3584
KQ, KK, KV, KSH, KSSM, KSD, KBX, KW1, KB1, KW2, KB2, KC_, KWM, KOUT, KDBG, KWS = [8*i for i in range(16)]
WS_U    = 0x0000000
WS_MODP = 0x0400000
WS_MOD  = 0x0440000
WS_FL2  = 0x3200000
FL2_BYTES = 32768 + 12288 + 65536
WS_GB   = 0x0480000
WS_Y    = 0x0800000
WS_X1   = 0x0C00000
WS_Y2   = 0x0500000
WS_H    = 0x1400000
WS_EX   = 0x2400000
MB4 = 0x400000
LOG2E = 1.4426950408889634

import struct
def f32(x):
    return "0x%08x" % struct.unpack("<I", struct.pack("<f", x))[0]

WS_ST   = 0x3800000
class Cfg:
    stamps = False
    extra = ""
    merged = True
    stR = False
    ka_code = True
    map = "4x2"
    km_pf = 1
    x1at = 0
    sper = 4
    ldst = 2
    lookat = 0
    c3 = 5
    c3at = 5
    yp = 2176
    bthr = 2
    sentat = 1
    sg = "0,0,1,1,2,2,2,0,0"
    sp = "0,0,0,0,0,0,0,0,0"
    lag = 2
    spq = True
    ka_wb = 0
    km_b0 = 1
    km_b1 = 2
    post1 = 9
    post2 = 6
    xmode = "sent"
    idle_w1 = False
    fused = True
    fuseA = True
    kb_pf = 2
    qwarm = True
    pfat = 3
    pf_code = True
    ul2 = True
    relpoll = 32
    dep = 2
    npf1 = 7
    nb1 = 8
    nb2 = 0
    pf_w1 = True
    exp = ""
    trace = False
    absord = True
    a2_pol = "sc1"
    l2path = True
    wb_mid = False
    h_pol = ""
    early = True
    ex_bf16 = True
    pf_w2 = 2
    out_pol = ""
    rt = False
    diag = ""
    pf_pol = ""
    nt_in = ""
    w_pol = ""
    st_pol = "sc1"
cfg = Cfg()

def head(a, nwg, endlbl):
    a(f"s_cmp_ge_u32 s2, {nwg}")
    a(f"s_cbranch_scc1 {endlbl}_x" if cfg.stamps else f"s_cbranch_scc1 {endlbl}")
    if cfg.stamps:
        a("s_memrealtime s[76:77]")
        a("s_memtime s[78:79]")
        a(f"s_load_dwordx2 s[98:99], s[0:1], {KWS}")
        for i in range(80, 92, 2): a(f"s_mov_b64 s[{i}:{i+1}], 0")
        a("v_readfirstlane_b32 s97, v0")

def stamp(a, i):
    if cfg.stamps:
        a(f"{'s_memrealtime' if cfg.rt else 's_memtime'} s[{80+2*i}:{81+2*i}]")

def fin(a, kidx, lbl=None):
    if lbl: a(f"{lbl}:")
    if cfg.stamps:
        a(f"""
        s_waitcnt vmcnt(0)
        s_memrealtime s[92:93]
        s_memtime s[94:95]
        s_waitcnt lgkmcnt(0)
        s_mov_b64 exec, 1
        s_lshr_b32 s97, s97, 6
        s_add_u32 s96, s2, {kidx*256}
        s_lshl_b32 s96, s96, 4
        s_add_u32 s96, s96, s97
        s_lshl_b32 s96, s96, 6
        s_add_u32 s96, s96, {WS_ST}
        v_mov_b32 v0, s96
        v_mov_b32 v4, s76
        v_mov_b32 v5, s92
        v_mov_b32 v6, s78
        v_mov_b32 v7, s94
        global_store_dwordx4 v0, v[4:7], s[98:99]
        s_nop 1
        v_mov_b32 v4, s80
        v_mov_b32 v5, s82
        v_mov_b32 v6, s84
        v_mov_b32 v7, s86
        global_store_dwordx4 v0, v[4:7], s[98:99] offset:16
        s_nop 1
        v_mov_b32 v4, s88
        v_mov_b32 v5, s90
        global_store_dwordx2 v0, v[4:5], s[98:99] offset:32
        """)
        if lbl: a(f"{lbl}_x:")
    a("s_endpgm")

def gen_k0():
    a = Asm()
    head(a, 256, "K0_end")
    a(f"""
    s_load_dwordx4 s[4:7], s[0:1], {KK}
    s_load_dwordx2 s[8:9], s[0:1], {KSH}
    s_load_dwordx4 s[12:15], s[0:1], {KC_}
    s_load_dwordx2 s[10:11], s[0:1], {KWS}
    v_lshrrev_b32 v1, 6, v0
    v_and_b32 v2, 63, v0
    v_readfirstlane_b32 s3, v1
    s_and_b32 s44, s2, 7
    s_lshr_b32 s45, s2, 3
    s_lshr_b32 s46, s45, 4
    s_lshl_b32 s44, s44, 1
    s_add_u32 s44, s44, s46          ; cg
    s_and_b32 s45, s45, 15           ; rb
    s_lshl_b32 s46, s45, 7
    s_lshl_b32 s47, s3, 4
    s_add_u32 s46, s46, s47
    s_lshl_b32 s47, s46, 11
    s_lshl_b32 s48, s44, 7
    s_add_u32 s47, s47, s48
    v_lshrrev_b32 v7, 3, v2          ; l>>3
    v_and_b32 v15, 7, v2             ; l&7
    v_lshlrev_b32 v3, 11, v7
    v_lshl_add_u32 v3, v15, 4, v3
    v_add_u32 v3, s47, v3            ; vk
    v_add_u32 v4, 0xffffc000, v3
    s_mul_i32 s49, s3, 5120
    s_mov_b32 s50, 16384
    s_waitcnt lgkmcnt(0)
    """)
    srd(a, 16, 4, MB4); srd(a, 20, 6, MB4); srd(a, 24, 8, 8192)
    srd(a, 28, 10, MB4, WS_U); srd(a, 32, 12, 2048); srd(a, 36, 14, 1024*6144*2); srd(a, 40, 10, 2*6144*4, WS_MODP)
    nt = cfg.nt_in
    a(f"""
    s_add_u32 m0, s49, 1024
    s_nop 0
    buffer_load_dwordx4 v3, s[16:19], 0 offen {nt} lds
    s_add_u32 m0, s49, 2048
    s_nop 0
    buffer_load_dwordx4 v3, s[16:19], s50 offen {nt} lds
    s_add_u32 m0, s49, 3072
    s_nop 0
    buffer_load_dwordx4 v3, s[20:23], 0 offen {nt} lds
    s_add_u32 m0, s49, 4096
    s_nop 0
    buffer_load_dwordx4 v3, s[20:23], s50 offen {nt} lds
    s_mov_b32 m0, s49
    s_mov_b32 exec_lo, 0
    buffer_load_dwordx4 v4, s[16:19], 0 offen {nt} lds
    s_mov_b32 exec_lo, -1
    s_lshl_b32 s51, s44, 9
    v_lshl_add_u32 v5, v2, 3, s51
    buffer_load_dwordx2 v[8:9], v5, s[24:27], 0 offen
    s_cmp_ge_u32 s2, 192
    s_cbranch_scc1 K0_nogemv_ld
    s_lshr_b32 s52, s2, 1
    s_and_b32 s53, s2, 1             ; k half
    s_lshl_b32 s54, s53, 9
    s_lshl_b32 s55, s3, 6
    s_add_u32 s54, s54, s55
    v_lshl_add_u32 v60, v7, 3, s54
    v_lshlrev_b32 v61, 1, v60
    s_mov_b32 s55, 12288
    v_mul_lo_u32 v108, v60, s55
    s_lshl_b32 s55, s52, 7
    v_lshl_add_u32 v109, v15, 4, s55
    v_add_u32 v108, v108, v109
    buffer_load_dwordx4 v[60:63], v61, s[32:35], 0 offen
    s_mov_b32 s55, 0
    """)
    for i in range(8):
        a(f"buffer_load_dwordx4 {vr(64+4*i,4)}, v108, s[36:39], s55 offen {nt}")
        if i < 7: a("s_add_u32 s55, s55, 12288")
    a("""
    s_waitcnt vmcnt(9)
    s_branch K0_phaseA
    K0_nogemv_ld:
    s_waitcnt vmcnt(0)
    K0_phaseA:
    """)
    stamp(a, 0)
    a("""
    v_lshrrev_b32 v5, 4, v2          ; g
    v_and_b32 v6, 15, v2             ; i
    v_lshrrev_b32 v10, 2, v6
    v_and_b32 v11, 3, v6
    v_lshlrev_b32 v10, 7, v10
    v_lshl_add_u32 v10, v5, 5, v10
    v_lshl_add_u32 v10, v11, 3, v10
    v_add_u32 v5, s49, v10
    """)
    for p in range(5):
        a(f"ds_read_b64_tr_b16 {vr(16+2*p,2)}, v5 offset:{512+512*p}")
    for p in range(4):
        a(f"ds_read_b64_tr_b16 {vr(26+2*p,2)}, v5 offset:{3072+512*p}")
    a("""
    v_alignbit_b32 v10, v8, v8, 16   ; A=(w1,w0)
    v_alignbit_b32 v11, v9, v9, 16   ; B=(w3,w2)
    v_and_b32 v12, 0xffff, v8        ; C=(w0,0)
    s_mov_b32 s56, 0xffff
    v_bfi_b32 v13, s56, v9, v8       ; D=(w2,w1)
    v_and_b32 v14, 0xffff0000, v9    ; E=(0,w3)
    v_lshrrev_b32 v6, 2, v2
    v_lshlrev_b32 v6, 14, v6
    v_and_b32 v50, 3, v2
    v_lshl_add_u32 v6, v50, 4, v6
    s_lshl_b32 s56, s44, 18
    s_lshl_b32 s57, s46, 3           ; (row0/8)*64
    s_add_u32 s56, s56, s57
    v_add_u32 v6, s56, v6
    s_waitcnt lgkmcnt(0)
    """)
    P = lambda q: 16 + q + 2
    ks = lambda t: 34 + t
    for q in range(8):
        a(f"v_dot2_f32_bf16 v{ks(2*q)}, v{P(q)}, v12, 0")
        a(f"v_dot2_f32_bf16 v{ks(2*q+1)}, v{P(q)}, v10, 0")
    for q in range(8):
        a(f"v_dot2_f32_bf16 v{ks(2*q)}, v{P(q-1)}, v13, v{ks(2*q)}")
        a(f"v_dot2_f32_bf16 v{ks(2*q+1)}, v{P(q-1)}, v11, v{ks(2*q+1)}")
    for q in range(8):
        a(f"v_dot2_f32_bf16 v{ks(2*q)}, v{P(q-2)}, v14, v{ks(2*q)}")
    for q in range(8):
        a(f"v_lshlrev_b32 v{110+2*q}, 16, v{26+q}")
        a(f"v_and_b32 v{111+2*q}, 0xffff0000, v{26+q}")
    for t in range(16):
        a(f"v_mul_f32 v{ks(t)}, v{ks(t)}, v{110+t}")
    for h in range(2):
        for j in range(4):
            a(f"v_cvt_pk_bf16_f32 v{52+4*h+j}, v{ks(8*h+7-2*j)}, v{ks(8*h+6-2*j)}")
    a(f"buffer_store_dwordx4 v[52:55], v6, s[28:31], 0 offen {cfg.st_pol}")
    a(f"buffer_store_dwordx4 v[56:59], v6, s[28:31], 0 offen offset:64 {cfg.st_pol}")
    stamp(a, 1)
    a("""
    s_cmp_ge_u32 s2, 192
    s_cbranch_scc1 K0_end
    s_waitcnt vmcnt(10)
    """)
    for q in range(4):
        a(f"v_lshlrev_b32 v{110+2*q}, 16, v{60+q}")
        a(f"v_and_b32 v{111+2*q}, 0xffff0000, v{60+q}")
    for i in range(8): a(f"v_mul_f32 v{118+i}, {f32(-LOG2E)}, v{110+i}")
    for i in range(8): a(f"v_exp_f32 v{118+i}, v{118+i}")
    a("s_nop 0")
    for i in range(8): a(f"v_add_f32 v{118+i}, 1.0, v{118+i}")
    for i in range(8): a(f"v_rcp_f32 v{118+i}, v{118+i}")
    a("s_nop 0")
    for i in range(8): a(f"v_mul_f32 v{110+i}, v{110+i}, v{118+i}")
    for q in range(4): a(f"v_cvt_pk_bf16_f32 v{96+q}, v{110+2*q}, v{111+2*q}")
    a("s_mov_b32 s56, 0x05040100")
    a("s_mov_b32 s57, 0x07060302")
    for q in range(4):
        a(f"s_waitcnt vmcnt({2 + 6 - 2*q})")
        for j in range(4):
            w0 = 64 + 8*q + j; w1 = w0 + 4
            a(f"v_perm_b32 v{110+2*j}, v{w1}, v{w0}, s56")
            a(f"v_perm_b32 v{111+2*j}, v{w1}, v{w0}, s57")
        for j in range(8):
            src2 = "0" if q == 0 else f"v{100+j}"
            a(f"v_dot2_f32_bf16 v{100+j}, v{110+j}, v{96+q}, {src2}")
    stamp(a, 2)
    a("s_nop 3")
    for j in range(4): a(f"v_permlane32_swap_b32 v{100+j}, v{104+j}")
    a("s_nop 1")
    for j in range(4): a(f"v_add_f32 v{100+j}, v{100+j}, v{104+j}")
    a("s_nop 1")
    for j in range(2): a(f"v_permlane16_swap_b32 v{100+j}, v{102+j}")
    a("s_nop 1")
    for j in range(2): a(f"v_add_f32 v{100+j}, v{100+j}, v{102+j}")
    a("s_nop 1")
    for j in range(2): a(f"v_add_f32_dpp v{100+j}, v{100+j}, v{100+j} row_ror:8 row_mask:0xf bank_mask:0xf")
    a("""
    v_lshrrev_b32 v110, 4, v2
    v_lshlrev_b32 v110, 3, v110
    v_lshl_add_u32 v110, v15, 5, v110
    s_lshl_b32 s56, s3, 8
    s_add_u32 s56, s56, 40960
    v_add_u32 v110, s56, v110
    ds_write_b64 v110, v[100:101]
    s_waitcnt lgkmcnt(0)
    s_barrier
    s_cmp_lg_u32 s3, 0
    s_cbranch_scc1 K0_end
    v_lshlrev_b32 v110, 2, v2
    """)
    for w in range(8): a(f"ds_read_b32 v{100+w}, v110 offset:{40960+256*w}")
    a("""
    s_mul_i32 s56, s53, 24576
    s_lshl_b32 s57, s52, 8
    s_add_u32 s56, s56, s57
    s_waitcnt lgkmcnt(0)
    v_add_f32 v100, v100, v101
    v_add_f32 v102, v102, v103
    v_add_f32 v104, v104, v105
    v_add_f32 v106, v106, v107
    v_add_f32 v100, v100, v102
    v_add_f32 v104, v104, v106
    v_add_f32 v100, v100, v104
    buffer_store_dword v100, v110, s[40:43], s56 offen
    """)
    fin(a, 0, "K0_end")
    return dict(name="k0_kernel", body=a.text(), vgpr=128, sgpr=64, grid=256, block=512, lds=43008)

CP_STR, CH_STR = 4160, 16640
UR_BASE, UR_STR = 4*16640, 4640
def gen_k1():
    a = Asm()
    head(a, 256, "K1_end")
    a(f"""
    s_load_dwordx4 s[4:7], s[0:1], {KSSM}
    s_load_dwordx2 s[10:11], s[0:1], {KWS}
    v_lshrrev_b32 v1, 6, v0
    v_and_b32 v2, 63, v0
    v_readfirstlane_b32 s3, v1
    s_and_b32 s44, s2, 7
    s_lshr_b32 s45, s2, 3
    s_lshl_b32 s44, s44, 5
    s_add_u32 s44, s44, s45          ; cq
    s_lshl_b32 s45, s44, 2
    s_add_u32 s45, s45, s3           ; channel d
    s_lshl_b32 s46, s45, 12
    v_lshl_add_u32 v3, v2, 4, s46
    s_lshl_b32 s47, s44, 14          ; cq*16384
    s_lshl_b32 s48, s3, 12
    s_add_u32 s48, s48, s47
    v_lshl_add_u32 v4, v2, 4, s48    ; U offset
    s_mul_i32 s49, s3, {CH_STR}      ; chbase
    s_waitcnt lgkmcnt(0)
    """)
    srd(a, 16, 4, MB4); srd(a, 20, 6, 2048); srd(a, 24, 10, MB4, WS_U); srd(a, 28, 10, MB4, WS_Y)
    nt = cfg.nt_in
    for j in range(4):
        a(f"buffer_load_dwordx4 {vr(176+4*j,4)}, v4, s[24:27], 0 offen offset:{1024*j}")
    for j in range(4):
        for sft in range(3):
            a(f"buffer_load_dwordx4 {vr(32+12*j+4*sft,4)}, v3, s[16:19], 0 offen offset:{1024*j+4*sft} {nt}")
    a(f"""
    s_lshl_b32 s50, s45, 1
    v_mov_b32 v5, s50
    buffer_load_ushort v6, v5, s[20:23], 0 offen
    v_and_b32 v7, 3, v2
    v_mul_u32_u24 v7, {UR_STR}, v7
    v_lshrrev_b32 v8, 2, v2
    v_lshlrev_b32 v8, 4, v8
    v_sub_u32 v7, v7, v8
    s_lshl_b32 s50, s3, 10
    s_sub_u32 s50, {UR_BASE + 255*16 - 3*256}, s50
    v_add_u32 v7, s50, v7
    v_mov_b32 v12, 0
    v_mov_b32 v13, 0
    v_mov_b32 v14, 0
    v_mov_b32 v15, 0
    s_mul_i32 s51, s3, {UR_STR}
    s_add_u32 s51, s51, {UR_BASE}    ; URc
    v_lshl_add_u32 v8, v2, 4, s51
    s_mov_b64 exec, 0x3fffffff
    ds_write_b128 v8, v[12:15] offset:4096
    s_mov_b64 exec, -1
    v_lshl_add_u32 v9, v2, 4, s49
    v_and_b32 v10, 15, v2            ; i' / a'
    v_lshrrev_b32 v11, 4, v2         ; g
    v_add_u32 v16, 1, v10            ; o+16
    v_and_b32 v17, 3, v16            ; c'
    v_sub_u32 v16, v16, v17          ; o-c'+16
    v_lshlrev_b32 v16, 1, v16        ; 2(o-c')+32
    v_mul_u32_u24 v17, {CP_STR}, v17
    v_add_u32 v16, v16, v17
    v_lshl_add_u32 v16, v11, 4, v16
    v_add_u32 v16, s49, v16          ; vA
    v_lshlrev_b32 v17, 5, v10
    v_sub_u32 v17, 480, v17
    v_lshl_add_u32 v17, v11, 4, v17
    v_add_u32 v17, s51, v17          ; vB
    ; e = 15 - i' - 8g
    v_lshlrev_b32 v18, 3, v11
    v_add_u32 v18, v18, v10
    v_sub_u32 v18, 15, v18
    s_waitcnt vmcnt(13)
    """)
    stamp(a, 0)
    for j in range(4):
        a(f"ds_write_b128 v7, {vr(176+4*j,4)} offset:{256*(3-j)}")
    for j in range(4):
        A, B, C = 32+12*j, 36+12*j, 40+12*j
        a(f"s_waitcnt vmcnt({1+3*(3-j)})")
        o1, o3 = 80+8*j, 84+8*j
        for i in range(4): a(f"v_alignbit_b32 v{o1+i}, v{B+i}, v{A+i}, 16")
        for i in range(4): a(f"v_alignbit_b32 v{o3+i}, v{C+i}, v{B+i}, 16")
        a(f"ds_write_b128 v9, {vr(A,4)} offset:{32+1024*j}")
        a(f"ds_write_b128 v9, {vr(B,4)} offset:{2*CP_STR+32+1024*j}")
        a(f"ds_write_b128 v9, {vr(o1,4)} offset:{CP_STR+32+1024*j}")
        a(f"ds_write_b128 v9, {vr(o3,4)} offset:{3*CP_STR+32+1024*j}")
    a(f"""
    v_readfirstlane_b32 s52, v32
    v_readfirstlane_b32 s53, v33
    s_nop 1
    s_lshl_b32 s54, s52, 16
    s_lshr_b32 s55, s52, 16
    s_lshl_b32 s56, s53, 16
    s_or_b32 s55, s55, s56
    v_writelane_b32 v15, s54, 3
    v_writelane_b32 v15, s52, 5
    v_writelane_b32 v14, s54, 7
    v_writelane_b32 v15, s55, 7
    v_lshrrev_b32 v19, 1, v2
    v_mul_u32_u24 v19, {CP_STR}, v19
    v_and_b32 v20, 1, v2
    v_lshl_add_u32 v19, v20, 4, v19
    v_add_u32 v19, s49, v19
    s_mov_b64 exec, 0xff
    ds_write_b128 v19, v[12:15]
    s_mov_b64 exec, -1
    s_waitcnt vmcnt(0)
    v_lshlrev_b32 v21, 16, v6
    """)
    for j in range(4):
        a(f"v_cmp_eq_u32 vcc, {2*j}, v18")
        a("s_nop 1")
        a(f"v_cndmask_b32 v{24+j}, 0, v6, vcc")
        a(f"v_cmp_eq_u32 vcc, {2*j+1}, v18")
        a("s_nop 1")
        a(f"v_cndmask_b32 v{24+j}, v{24+j}, v21, vcc")
    a("s_waitcnt lgkmcnt(0)")
    a("s_barrier")
    stamp(a, 1)
    ACC = 192
    FA = lambda s, w: 32 + 64*s + 4*w
    FB = lambda s, v: 64 + 64*s + 4*v
    def reads(z0):
        s = z0 & 1
        R = []
        for i in range(8):
            R.append(f"ds_read_b128 {vr(FB(s,i),4)}, v17 offset:{512*(7-i)+64*z0}")
            R.append(f"ds_read_b64 {vr(FA(s,i),2)}, v16 offset:{512*i+64*z0}")
            R.append(f"ds_read_b64 {vr(FA(s,i)+2,2)}, v16 offset:{512*i+64*z0+8}")
        return R
    for r in reads(0): a(r)
    a("s_waitcnt lgkmcnt(0)")
    for n in range(8):
        a(f"v_mfma_f32_16x16x32_bf16 {vr(ACC+4*n,4)}, v[24:27], {vr(FB(0,n),4)}, 0")
    for z0 in range(8):
        s = z0 & 1
        R = reads(z0+1) if z0 < 7 else []
        M = [(w, v) for w in range(8) for v in range(8-w)]
        for i, (w, v) in enumerate(M):
            a(f"v_mfma_f32_16x16x32_bf16 {vr(ACC+4*(w+v),4)}, {vr(FA(s,w),4)}, {vr(FB(s,v),4)}, {vr(ACC+4*(w+v),4)}")
            if i < len(R): a(R[i])
        if z0 < 7: a("s_waitcnt lgkmcnt(0)")
    stamp(a, 2)
    a(f"""
    v_lshlrev_b32 v20, 5, v10
    v_lshl_add_u32 v20, v11, 3, v20
    v_add_u32 v20, s49, v20
    s_lshl_b32 s50, s3, 10
    v_lshl_add_u32 v21, v2, 2, s50
    s_mov_b32 s56, 0x05040100
    s_mov_b32 s57, 0x07060302
    s_nop 4
    """)
    for n in range(8):
        a(f"v_cvt_pk_bf16_f32 v{32+2*n}, v{ACC+4*n}, v{ACC+4*n+1}")
        a(f"v_cvt_pk_bf16_f32 v{33+2*n}, v{ACC+4*n+2}, v{ACC+4*n+3}")
        a(f"ds_write_b64 v20, {vr(32+2*n,2)} offset:{512*n}")
    a("s_waitcnt lgkmcnt(0)")
    a("s_barrier")
    for j in range(4):
        a(f"ds_read2st64_b32 {vr(64+4*j,2)}, v21 offset0:{j} offset1:{65+j}")
        a(f"ds_read2st64_b32 {vr(66+4*j,2)}, v21 offset0:{130+j} offset1:{195+j}")
    for j in range(4):
        a(f"s_waitcnt lgkmcnt({6-2*j})")
        b = 64+4*j; o = 96+4*j
        a(f"v_perm_b32 v{o}, v{b+1}, v{b}, s56")
        a(f"v_perm_b32 v{o+1}, v{b+3}, v{b+2}, s56")
        a(f"v_perm_b32 v{o+2}, v{b+1}, v{b}, s57")
        a(f"v_perm_b32 v{o+3}, v{b+3}, v{b+2}, s57")
        a(f"buffer_store_dwordx4 {vr(o,4)}, v4, s[28:31], 0 offen offset:{1024*j} {cfg.st_pol}")
    fin(a, 1, "K1_end")
    return dict(name="k1_kernel", body=a.text(), vgpr=224, sgpr=64, grid=256, block=256, lds=UR_BASE+4*UR_STR)

def wave_stats(a, s1, s2, t, mean_rs, rstd):
    steps = ["quad_perm:[1,0,3,2] row_mask:0xf", "quad_perm:[2,3,0,1] row_mask:0xf", "row_half_mirror row_mask:0xf",
             "row_mirror row_mask:0xf", "row_bcast:15 row_mask:0xa", "row_bcast:31 row_mask:0xc"]
    a("s_nop 1")
    for st in steps:
        a(f"v_add_f32_dpp v{s1}, v{s1}, v{s1} {st} bank_mask:0xf")
        a(f"v_add_f32_dpp v{s2}, v{s2}, v{s2} {st} bank_mask:0xf")
        a("s_nop 0")
    a(f"""
    v_readlane_b32 s60, v{s1}, 63
    v_readlane_b32 s61, v{s2}, 63
    s_nop 1
    v_mul_f32 v{t}, s60, v250             ; mean
    v_mul_f32 v{rstd}, s61, v250          ; E[x^2]
    v_fma_f32 v{rstd}, -v{t}, v{t}, v{rstd}
    v_max_f32 v{rstd}, 0, v{rstd}
    v_add_f32 v{rstd}, {f32(1e-5)}, v{rstd}
    v_rsq_f32 v{rstd}, v{rstd}
    s_nop 0
    v_mul_f32 v{mean_rs}, v{t}, v{rstd}
    v_sub_f32 v{mean_rs}, 0, v{mean_rs}
    """.replace("v250", "v126"))

def gen_kb():
    a = Asm()
    head(a, 256, "KB_end")
    MODL = 16384
    a(f"""
    s_load_dwordx2 s[4:5], s[0:1], {KQ}
    s_load_dwordx2 s[10:11], s[0:1], {KWS}
    s_load_dwordx2 s[6:7], s[0:1], {KW1}
    s_load_dwordx2 s[8:9], s[0:1], {KW2}
    v_lshrrev_b32 v1, 6, v0
    v_and_b32 v2, 63, v0
    v_readfirstlane_b32 s3, v1
    s_and_b32 s44, s2, 7
    s_lshr_b32 s45, s2, 3
    s_lshl_b32 s44, s44, 5
    s_add_u32 s44, s44, s45
    s_lshl_b32 s45, s44, 3
    s_add_u32 s45, s45, s3           ; row
    s_lshl_b32 s46, s45, 11
    v_lshl_add_u32 v3, v2, 4, s46
    v_lshrrev_b32 v4, 2, v2
    v_and_b32 v5, 7, v4
    v_lshlrev_b32 v5, 1, v5
    v_lshrrev_b32 v4, 3, v4
    v_add_u32 v5, v5, v4             ; G (0..15)
    v_lshrrev_b32 v6, 3, v5
    v_and_b32 v7, 3, v2
    v_xor_b32 v6, v6, v7
    v_lshlrev_b32 v5, 14, v5
    s_lshl_b32 s47, s3, 19           ; (2w*16)*16384
    s_lshl_b32 s48, s44, 6
    s_add_u32 s47, s47, s48
    v_add_u32 v5, s47, v5
    v_lshl_add_u32 v8, v6, 4, v5
    v_xor_b32 v6, 2, v6
    v_lshl_add_u32 v9, v6, 4, v5
    v_lshlrev_b32 v10, 4, v0
    s_mov_b32 s49, 0x40000
    s_mov_b32 s50, 8192
    s_mov_b32 s51, 16384
    s_mov_b32 s52, 24576
    s_mov_b32 s53, 32768
    s_mov_b32 s54, 40960
    s_waitcnt lgkmcnt(0)
    """)
    srd(a, 16, 4, MB4); srd(a, 20, 10, MB4, WS_Y); srd(a, 24, 10, 2*6144*4, WS_MODP)
    srd(a, 28, 10, MB4, WS_X1); srd(a, 32, 10, MB4, WS_Y2); srd(a, 36, 10, 8192+65536, 0x3000000)
    a("""
    s_mul_i32 s55, s2, 288
    v_lshl_add_u32 v11, v0, 2, s55
    v_mov_b32 v12, 0
    v_cmp_gt_u32 vcc, 72, v0
    s_and_saveexec_b64 s[56:57], vcc
    s_cbranch_execz KB_nz
    buffer_store_dword v12, v11, s[36:39], 0 offen
    KB_nz:
    s_mov_b64 exec, -1
    """)
    a(f"""
    s_lshl_b32 s55, s3, 11
    s_mov_b32 m0, s55
    buffer_load_dwordx4 v[16:19], v10, s[24:27], 0 offen
    buffer_load_dwordx4 v8, s[20:23], 0 offen lds
    s_add_u32 m0, s55, 1024
    buffer_load_dwordx4 v[20:23], v10, s[24:27], s52 offen
    buffer_load_dwordx4 v9, s[20:23], s49 offen lds
    buffer_load_dwordx4 v[24:27], v10, s[24:27], s50 offen
    buffer_load_dwordx4 v[28:31], v10, s[24:27], s53 offen
    buffer_load_dwordx4 v[32:35], v10, s[24:27], s51 offen
    buffer_load_dwordx4 v[36:39], v10, s[24:27], s54 offen
    buffer_load_dwordx4 v[40:43], v3, s[16:19], 0 offen {cfg.nt_in}
    buffer_load_dwordx4 v[44:47], v3, s[16:19], 0 offen offset:1024 {cfg.nt_in}
    v_lshrrev_b32 v11, 7, v0         ; (vec&1)*2 + h
    v_lshlrev_b32 v11, 11, v11
    v_and_b32 v12, 1, v0
    v_lshl_add_u32 v11, v12, 10, v11
    v_bfe_u32 v12, v0, 1, 6
    v_lshl_add_u32 v11, v12, 4, v11
    v_cmp_le_u32 vcc, 256, v0
    v_mov_b32 v126, {f32(1.0/1024)}
    s_nop 0
    v_cndmask_b32_e64 v13, 0, 1.0, vcc
    v_sub_f32 v14, 1.0, v13
    v_lshrrev_b32 v4, 3, v2
    v_lshlrev_b32 v4, 10, v4
    v_and_b32 v5, 7, v2
    v_lshl_add_u32 v4, v5, 6, v4
    v_bfe_u32 v5, v2, 2, 2
    s_lshr_b32 s56, s3, 1
    v_xor_b32 v5, s56, v5
    v_lshl_add_u32 v4, v5, 4, v4
    s_and_b32 s56, s3, 1
    s_lshl_b32 s56, s56, 3
    v_add_u32 v4, s56, v4
    v_lshlrev_b32 v5, 4, v2
    s_waitcnt vmcnt(2)
    """)
    stamp(a, 0)
    for i in range(3):
        for e in range(4):
            a(f"v_add_f32 v{16+8*i+e}, v{16+8*i+e}, v{20+8*i+e}")
        if i != 1:
            for e in range(4):
                a(f"v_add_f32 v{16+8*i+e}, v{16+8*i+e}, v{13 if i == 0 else 14}")
        a(f"ds_write_b128 v11, {vr(16+8*i,4)} offset:{MODL+8192*i}")
    srd(a, 40, 10, 2048, WS_GB)
    a("""
    s_cmp_lg_u32 s2, 0
    s_cbranch_scc1 KB_nogb
    s_cmp_lt_u32 s3, 4
    s_cbranch_scc1 KB_nogb
    v_cvt_pk_bf16_f32 v36, v32, v33
    v_cvt_pk_bf16_f32 v37, v34, v35
    v_lshlrev_b32 v38, 3, v0
    v_add_u32 v38, 0xfffff800, v38
    buffer_store_dwordx2 v[36:37], v38, s[40:43], 0 offen
    KB_nogb:
    """)
    a("s_waitcnt vmcnt(0)")
    Q, Y, T = 48, 64, 80
    for j in range(8):
        a(f"v_lshlrev_b32 v{Q+2*j}, 16, v{40+j}")
        a(f"v_and_b32 v{Q+2*j+1}, 0xffff0000, v{40+j}")
    a("s_waitcnt lgkmcnt(0)")
    a("s_barrier")
    stamp(a, 1)
    if cfg.kb_pf:
        a(f"""
        s_cmp_lt_u32 s3, 4
        s_cselect_b32 s64, s6, s8
        s_cselect_b32 s65, s7, s9
        s_mov_b32 s66, 7340032
        s_mov_b32 s67, 0x20000
        s_mul_i32 s55, s2, 28672
        s_and_b32 s56, s3, 3
        s_mul_i32 s56, s56, 7168
        s_add_u32 s55, s55, s56
        v_lshl_add_u32 v15, v2, 4, s55
        s_mov_b32 s55, 4096
        """)
        if cfg.kb_pf == 1:
            a("s_cmp_lt_u32 s3, 4")
            a("s_cbranch_scc0 KB_nopf")
        for i in range(7):
            a(f"buffer_load_dwordx4 {vr(144+4*i,4)}, v15, s[64:67], {'0' if i < 4 else 's55'} offen offset:{1024*(i%4)}")
        a("KB_nopf:")
    for h in range(2):
        for e in range(2):
            a(f"ds_read_b64 {vr(40+4*h+2*e,2)}, v4 offset:{8192*h+512*e}")
    def modread(vec, dst):
        for h in range(2):
            for half in range(2):
                a(f"ds_read_b128 {vr(dst+8*h+4*half,4)}, v5 offset:{MODL+4096*vec+2048*h+1024*half}")
    M0, M1, M2 = 16, 96, 112
    M2 = 128
    modread(1, M0); modread(0, M1); modread(2, M2)
    def stats(X):
        a(f"v_add_f32 v6, v{X}, v{X+1}")
        a(f"v_mul_f32 v7, v{X}, v{X}")
        a(f"v_fmac_f32 v7, v{X+1}, v{X+1}")
        for j in range(2, 16):
            a(f"v_add_f32 v6, v6, v{X+j}")
            a(f"v_fmac_f32 v7, v{X+j}, v{X+j}")
        wave_stats(a, 6, 7, 8, 9, 10)
    stats(Q)
    a("s_waitcnt lgkmcnt(0)")
    for j in range(8):
        a(f"v_lshlrev_b32 v{Y+2*j}, 16, v{40+j}")
        a(f"v_and_b32 v{Y+2*j+1}, 0xffff0000, v{40+j}")
    for j in range(16): a(f"v_fma_f32 v{T+j}, v{Q+j}, v10, v9")
    for j in range(16): a(f"v_fma_f32 v{T+j}, v{T+j}, v{M0+j}, v{M1+j}")
    modread(4, M0); modread(3, M1)
    for j in range(16): a(f"v_mul_f32 v{T+j}, v{T+j}, v{Y+j}")
    for j in range(16): a(f"v_fmac_f32 v{Q+j}, v{T+j}, v{M2+j}")
    for j in range(8): a(f"v_cvt_pk_bf16_f32 v{40+j}, v{Q+2*j}, v{Q+2*j+1}")
    a(f"buffer_store_dwordx4 v[40:43], v3, s[28:31], 0 offen {cfg.st_pol}")
    a(f"buffer_store_dwordx4 v[44:47], v3, s[28:31], 0 offen offset:1024 {cfg.st_pol}")
    stats(Q)
    a("s_waitcnt lgkmcnt(0)")
    for j in range(16): a(f"v_fma_f32 v{T+j}, v{Q+j}, v10, v9")
    for j in range(16): a(f"v_fma_f32 v{T+j}, v{T+j}, v{M0+j}, v{M1+j}")
    stats(T)
    for j in range(16): a(f"v_fma_f32 v{T+j}, v{T+j}, v10, v9")
    for j in range(8): a(f"v_cvt_pk_bf16_f32 v{Y+j}, v{T+2*j}, v{T+2*j+1}")
    stamp(a, 2)
    a(f"buffer_store_dwordx4 {vr(Y,4)}, v3, s[32:35], 0 offen {cfg.st_pol}")
    a(f"buffer_store_dwordx4 {vr(Y+4,4)}, v3, s[32:35], 0 offen offset:1024 {cfg.st_pol}")
    fin(a, 2, "KB_end")
    return dict(name="kb_kernel", body=a.text(), vgpr=176, sgpr=72, grid=256, block=512, lds=MODL+24576)

def gen_diag():
    ka, wa, fa, kb, wb, fb = [int(x) for x in cfg.diag.split(",")]
    off = lambda k, w, f: WS_ST + ((k*256)*16 + w)*64 + 4*f
    first = 6 if "pf" in cfg.extra else 0
    a = Asm()
    a(f"""
    s_cmp_lg_u32 s2, 0
    s_cbranch_scc1 DG_end
    s_load_dwordx2 s[4:5], s[0:1], {KWS}
    s_waitcnt lgkmcnt(0)
    s_add_u32 s6, s4, {off(first,0,0)}
    s_addc_u32 s7, s5, 0
    s_add_u32 s8, s4, {off(ka,wa,fa)}
    s_addc_u32 s9, s5, 0
    s_add_u32 s10, s4, {off(kb,wb,fb)}
    s_addc_u32 s11, s5, 0
    s_load_dword s12, s[6:7], 0
    s_load_dword s13, s[8:9], 0
    s_load_dword s14, s[10:11], 0
    s_waitcnt lgkmcnt(0)
    s_sub_u32 s14, s14, s13
    s_min_u32 s14, s14, 60000
    {"s_lshl_b32 s14, s14, 2" if (fa < 2 or cfg.rt) else "s_lshr_b32 s14, s14, 2"}
    s_add_u32 s14, s14, 20000
    s_mov_b32 s15, 0
    DG_loop:
    s_memrealtime s[16:17]
    s_waitcnt lgkmcnt(0)
    s_sub_u32 s16, s16, s12
    s_add_u32 s15, s15, 1
    s_cmp_gt_u32 s15, 200000
    s_cbranch_scc1 DG_end
    s_cmp_lt_u32 s16, s14
    s_cbranch_scc1 DG_loop
    DG_end:
    s_endpgm
    """)
    return dict(name="dg_kernel", body=a.text(), vgpr=8, sgpr=32, grid=8, block=64, lds=0)

def gen_nop():
    a = Asm()
    a("s_endpgm")
    return dict(name="nop_kernel", body=a.text(), vgpr=8, sgpr=16, grid=256, block=64, lds=0)

def gen_pf():
    a = Asm()
    head(a, 256, "PF_end")
    a(f"""
    s_load_dwordx2 s[4:5], s[0:1], {KW1}
    s_load_dwordx2 s[6:7], s[0:1], {KW2}
    s_mul_i32 s44, s2, 28672
    v_lshl_add_u32 v1, v0, 4, s44
    s_waitcnt lgkmcnt(0)
    """)
    srd(a, 16, 4, 7340032); srd(a, 20, 6, 7340032)
    a("s_mov_b32 s45, 0")
    for i in range(7):
        a(f"buffer_load_dwordx4 {vr(4+8*i,4)}, v1, s[16:19], s45 offen {cfg.pf_pol}")
        a(f"buffer_load_dwordx4 {vr(8+8*i,4)}, v1, s[20:23], s45 offen {cfg.pf_pol}")
        a("s_add_u32 s45, s45, 4096")
    a("s_waitcnt vmcnt(0)")
    fin(a, 6, "PF_end")
    return dict(name="pf_kernel", body=a.text(), vgpr=64, sgpr=64, grid=256, block=256, lds=0)

def emit(kernels):
    ref = open(f"cdna_kernels/{NAME}.s.ref").read().splitlines()
    hdr = [l for l in ref if l.startswith(";") and "@launch" not in l and "Override" not in l and "grid=ceil" not in l]
    out = list(hdr)
    for k in kernels:
        out.append(f"; @launch kernel={k['name']} grid=({k['grid']},1,1) block=({k['block']},1,1) lds={k['lds']}")
    out.append('.amdgcn_target "amdgcn-amd-amdhsa--gfx950"')
    out.append(".text")
    seen = []
    for k in kernels:
        if k['name'] in seen: continue
        seen.append(k['name'])
        out.append(kernel_text(k['name'], k['body']))
    out.append(".fill 128, 4, 0xbf800000")
    out.append('.section .rodata,"a"')
    seen = []
    for k in kernels:
        if k['name'] in seen: continue
        seen.append(k['name'])
        out.append(".p2align 6")
        out.append(kernel_desc(k['name'], k['vgpr'], 102 if cfg.stamps else k['sgpr'], k.get('accum')))
    return "\n".join(out) + "\n"

def main():
    import gemm
    for arg in sys.argv[2:]:
        k, v = arg.split("=")
        cur = getattr(cfg, k)
        setattr(cfg, k, (v == "1") if isinstance(cur, bool) else type(cur)(v.replace("+", " ")))
    import kg
    if cfg.fused: ks = [gen_k0(), gen_k1(), gen_kb(), kg.gen_kg()]
    else: ks = [gen_k0(), gen_k1(), gen_kb(), gemm.gen_kc(), gemm.gen_kd(), gemm.gen_ke()]
    if cfg.fuseA:
        import ka
        ks = [ka.gen_ka()] + ks[2:]
    if cfg.merged:
        import ka2, km
        ks = [ka2.gen_ka(), km.gen_km()]
    if "pf" in cfg.extra: ks = [gen_pf()] + ks
    if "nop" in cfg.extra: ks = ks + [gen_nop()]
    if "nop4" in cfg.extra: ks = ks + [gen_nop()]*3
    if cfg.diag: ks = ks + [gen_diag()]
    dst = sys.argv[1] if len(sys.argv) > 1 else f"cdna_kernels/{NAME}.s"
    open(dst, "w").write(emit(ks))
    print("wrote", dst)

if __name__ == "__main__":
    import gen
    gen.main()
```
